```python
import torch

def _softmax(x, axis=-1):
    return torch.softmax(x, dim=axis)
def _gelu(x):
    return torch.nn.functional.gelu(x, approximate="tanh")
def _silu(x):
    return torch.nn.functional.silu(x)
def _sigmoid(x):
    return torch.sigmoid(x)
def _layernorm(x, axis=-1, eps=1e-5):
    m = x.mean(dim=axis, keepdim=True)
    v = x.var(dim=axis, keepdim=True, unbiased=False)
    return (x - m) / torch.sqrt(v + eps)
def _scatter_add(tgt, idx, src, axis=0):
    return tgt.clone().index_add_(axis, idx, src)
def _segment_sum(src, seg, n):
    out = torch.zeros((n,) + src.shape[1:], dtype=src.dtype)
    return out.index_add_(0, seg, src)
def _pad(x, pw):
    flat = tuple(v for pair in reversed(pw) for v in pair)
    return torch.nn.functional.pad(x, flat)

kernel_name = 'sequential_preLN__sliding_local_dilated__dense_activation_squared_relu__prompt'

def setup_inputs():

    _w = (lambda a: (lambda t: t.to(torch.bfloat16) if t.is_floating_point() else t)(torch.as_tensor(a)))
    def _A_setup():
        B, S, D = 1, 2048, 640
        return {
            "x": _w((lambda *s: torch.randn(*s, dtype=torch.bfloat16) * 0.05)(B, S, D)),
            "wqkv": _w((lambda *s: torch.randn(*s, dtype=torch.bfloat16) * 0.05)(D, 3 * D)),
            "wo": _w((lambda *s: torch.randn(*s, dtype=torch.bfloat16) * 0.05)(D, D)),
        }
    _A_in = _A_setup()

    def _B_setup():
        B, S, D, F = 1, 2048, 640, 1536
        return {
            "x": _w((lambda *s: torch.randn(*s, dtype=torch.bfloat16) * 0.05)(B, S, D)),
            "w1": _w((lambda *s: torch.randn(*s, dtype=torch.bfloat16) * 0.05)(D, F)),
            "b1": _w((lambda *s: torch.randn(*s, dtype=torch.bfloat16) * 0.4)(F)),
            "w2": _w((lambda *s: torch.randn(*s, dtype=torch.bfloat16) * 0.05)(F, D)),
            "b2": _w((lambda *s: torch.randn(*s, dtype=torch.bfloat16) * 1.6)(D)),
        }
    _B_in = _B_setup()

    return {
        "A_x": _A_in["x"],
        "A_wqkv": _A_in["wqkv"],
        "A_wo": _A_in["wo"],
        "B_x": _B_in["x"],
        "B_w1": _B_in["w1"],
        "B_b1": _B_in["b1"],
        "B_w2": _B_in["w2"],
        "B_b2": _B_in["b2"],
    }

def reference(A_x, A_wqkv, A_wo, B_x, B_w1, B_b1, B_w2, B_b2):
    def _A_ref(x, wqkv, wo):
        B, S, D = x.shape
        H = 32; Dh = D // H
        W, dil = 8, 2
        qkv = (lambda x, *d: x.permute(*d))((x @ wqkv).reshape(B, S, 3, H, Dh), 2, 0, 3, 1, 4)
        q, k, v = qkv[0], qkv[1], qkv[2]
        scale = Dh ** -0.5
        pos = torch.arange(S)
        off = torch.arange(W) * dil
        idx = pos[:, None] - off[None, :]
        mask = idx >= 0
        idx_c = torch.where(mask, idx, 0).reshape(-1)
        kg = k[:, :, idx_c, :].reshape(B, H, S, W, Dh)
        vg = v[:, :, idx_c, :].reshape(B, H, S, W, Dh)
        logits = torch.einsum("bhsd,bhswd->bhsw", q, kg) * scale
        logits = torch.where(mask[None, None, :, :], logits, -1e9)
        attn = _softmax(logits, axis=-1)
        o = torch.einsum("bhsw,bhswd->bhsd", attn, vg)
        return (lambda x, *d: x.permute(*d))(o, 0, 2, 1, 3).reshape(B, S, D) @ wo

    def _B_ref(x, w1, b1, w2, b2):
        h = torch.einsum("bsd,df->bsf", x, w1) + b1
        zero = torch.zeros_like(h)
        r = torch.where(h > zero, h, zero)
        h = r * r
        out = torch.einsum("bsf,fd->bsd", h, w2) + b2
        return out

    x = A_x
    h = x + _A_ref(_layernorm(x, axis=-1), A_wqkv, A_wo)
    h2 = h + _B_ref(_layernorm(h, axis=-1), B_w1, B_b1, B_w2, B_b2)
    return h2
```

```python
import re

REG_RE = re.compile(r'^(v|a|s)(\d+)$|^(v|a|s)\[(\d+):(\d+)\]$')

def regs_of(tok):
    tok = tok.strip()
    if tok.startswith('-'): tok = tok[1:]
    if tok.startswith('|') and tok.endswith('|'): tok = tok[1:-1]
    if tok.startswith('neg(') or tok.startswith('abs('): tok = tok[4:-1]
    m = REG_RE.match(tok)
    if m:
        if m.group(1): return {(m.group(1), int(m.group(2)))}
        return {(m.group(3), i) for i in range(int(m.group(4)), int(m.group(5)) + 1)}
    if tok in ('vcc', 'vcc_lo', 'vcc_hi'): return {('x', 'vcc')}
    if tok in ('exec', 'exec_lo', 'exec_hi'): return {('x', 'exec')}
    if tok == 'm0': return {('x', 'm0')}
    return set()

TRANS = ('v_exp_f32', 'v_log_f32', 'v_rcp_f32', 'v_rsq_f32', 'v_sqrt_f32', 'v_sin_f32', 'v_cos_f32', 'v_rcp_iflag_f32')

class Ins:
    def __init__(self, text):
        self.text = text
        body = text.split(';')[0].strip()
        parts = body.split(None, 1)
        self.op = parts[0]
        rest = parts[1] if len(parts) > 1 else ''
        ops, cur, depth = [], '', 0
        for ch in rest:
            if ch in '[(': depth += 1
            if ch in '])': depth -= 1
            if ch == ',' and depth == 0:
                ops.append(cur.strip()); cur = ''
            else:
                cur += ch
        if cur.strip(): ops.append(cur.strip())
        mods = ''
        if ops:
            last = ops[-1].split(None, 1)
            ops[-1] = last[0]
            mods = last[1] if len(last) > 1 else ''
        self.ops, self.mods = ops, mods
        op = self.op
        self.is_mfma = op.startswith('v_mfma')
        self.is_valu = op.startswith('v_') and not self.is_mfma
        self.is_dot = op.startswith('v_dot')
        self.is_trans = any(op.startswith(t) for t in TRANS)
        self.is_ds = op.startswith('ds_')
        self.is_vmem = op.startswith('buffer_') or op.startswith('global_') or op.startswith('flat_')
        self.is_salu = op.startswith('s_')
        self.is_dpp = ('_dpp' in op) or ('row_' in mods) or ('quad_perm' in mods)
        self.is_perml = op.startswith('v_permlane')
        self.is_rdlane = op.startswith('v_readlane') or op.startswith('v_readfirstlane')
        self.is_ldsdma = self.is_vmem and (' lds' in (' ' + mods) or 'load_lds' in op)
        self.wide_store = False
        self.w, self.r = set(), set()
        self.srcC = set(); self.srcAB = set(); self.sdata = set()
        R = [regs_of(o) for o in ops]
        if self.is_mfma:
            self.w = R[0]; self.srcAB = R[1] | R[2]; self.srcC = R[3]; self.r = self.srcAB | self.srcC
            self.passes = 8 if '32x32' in op else 4
        elif self.is_valu:
            if op.startswith('v_nop'):
                pass
            elif 'swap' in op:
                self.w = R[0] | R[1]; self.r = R[0] | R[1]
            elif op.startswith('v_cmpx'):
                self.w = {('x', 'exec')} | R[0]
                for x in R[1:]: self.r |= x
            elif re.match(r'v_(add|sub|subrev)_co_u32|v_(addc|subb|subbrev)_co_u32|v_div_scale|v_mad_u64_u32', op):
                self.w = R[0] | R[1]
                for x in R[2:]: self.r |= x
            else:
                self.w = R[0]
                for x in R[1:]: self.r |= x
                if re.match(r'v_(fmac|mac|dot2c|dot4c|pk_fmac|writelane)', op) or self.is_dpp or 'sdwa' in op:
                    self.r |= R[0]
                if op.startswith('v_cndmask') and len(ops) == 3: self.r |= {('x', 'vcc')}
        elif self.is_ds:
            if op.startswith('ds_read') or 'rtn' in op or op.startswith('ds_bpermute') or op.startswith('ds_permute') or op.startswith('ds_swizzle'):
                self.w = R[0]
                for x in R[1:]: self.r |= x
            else:
                for x in R: self.r |= x
        elif self.is_vmem:
            if 'load' in op and not self.is_ldsdma:
                self.w = R[0]
                for x in R[1:]: self.r |= x
            elif self.is_ldsdma:
                for x in R: self.r |= x
                self.r |= {('x', 'm0')}
            else:
                for x in R: self.r |= x
                if 'atomic' in op and 'sc0' in mods: self.w = R[0]
                if 'store' in op and ('x3' in op or 'x4' in op):
                    self.wide_store = True
                    self.sdata = R[0] if op.startswith('buffer_') else R[1]
        elif self.is_salu:
            if op.startswith('s_cmp') or op.startswith('s_bitcmp') or op in ('s_waitcnt', 's_nop', 's_barrier', 's_endpgm', 's_sleep', 's_setprio') or op.startswith('s_cbranch') or op == 's_branch':
                for x in R: self.r |= x
            else:
                if R: self.w = R[0]
                for x in R[1:]: self.r |= x
                if 'saveexec' in op: self.w |= {('x', 'exec')}
        self.states = 1
        if op == 's_nop': self.states = int(ops[0], 0) + 1

def isv(s): return {x for x in s if x[0] in 'va'}
def iss(s): return {x for x in s if x[0] == 's' or x == ('x', 'vcc')}

def need(p, c):
    n = 0
    if p.is_valu:
        wv = isv(p.w); ws = iss(p.w)
        if c.is_mfma and (wv & c.r): n = max(n, 3 if p.is_dot else 2)
        if c.is_dpp and (wv & c.r): n = max(n, 2)
        if c.is_perml and (wv & c.r): n = max(n, 2)
        if c.is_rdlane and (wv & c.r): n = max(n, 1)
        if p.is_trans and c.is_valu and (wv & c.r): n = max(n, 1)
        if p.is_trans and (c.is_mfma) and (wv & c.r): n = max(n, 2)
        if ws:
            if c.is_vmem and (ws & c.r): n = max(n, 5)
            if c.is_valu and (ws & c.r): n = max(n, 4 if (c.is_rdlane or c.op.startswith('v_writelane') or c.op.startswith('v_div_fmas')) else 2)
        if ('x', 'exec') in p.w:
            if c.is_dpp: n = max(n, 5)
            if c.is_mfma or c.is_perml or c.is_rdlane: n = max(n, 4)
            if c.is_valu and ('x', 'exec') in c.r: n = max(n, 2)
        if p.is_dot and (wv & (c.r | c.w)) and (c.is_valu or c.is_mfma or c.is_ds or c.is_vmem):
            if c.op == p.op and c.is_dot:
                ab = set()
                idx = (1, 2)
                for i in idx: ab |= regs_of(c.ops[i])
                if wv & ab: n = max(n, 3)
            else:
                n = max(n, 3)
        if ('sdwa' in p.op or 'op_sel' in p.mods) and c.is_valu and (wv & (c.r | c.w)): n = max(n, 1)
    if p.is_mfma:
        d = p.w
        full = 8 if p.passes == 4 else 12
        if c.is_mfma:
            if d & c.srcAB: n = max(n, full)
            if d & c.srcC:
                if not (d == c.srcC and p.passes == c.passes): n = max(n, 6 if p.passes == 4 else 10)
            elif d & c.w: n = max(n, full)
        elif (c.is_valu or c.is_ds or c.is_vmem) and (d & (c.r | c.w)):
            n = max(n, full)
        if c.is_valu and (p.srcC & c.w): n = max(n, 3 if p.passes == 4 else 7)
        if (c.is_ds or c.is_vmem) and (p.srcC & c.w): n = max(n, 3 if p.passes == 4 else 7)
    if p.wide_store and (p.sdata & c.w):
        n = max(n, 2)
    if p.is_ds and p.op in ('ds_write_b128', 'ds_write_b96', 'ds_write2_b64') and c.is_valu:
        pass
    if p.is_salu and ('x', 'm0') in p.w and (c.is_ldsdma or 'addtid' in c.op): n = max(n, 1)
    return n

MAXD = 13

class Asm:
    def __init__(self):
        self.items = []
        self.nlab = 0
    def __call__(self, text):
        for line in text.split('\n'):
            s = line.strip()
            if not s: continue
            if s.startswith(';') or s.startswith('.'):
                if s.endswith(':'): self.items.append(('l', s[:-1]))
                else: self.items.append(('t', s))
            elif re.match(r'^[\w.$]+:$', s):
                self.items.append(('l', s[:-1]))
            else:
                self.items.append(('i', Ins(s)))
    def label(self, name): self.items.append(('l', name))
    def newlabel(self, base='L'):
        self.nlab += 1
        return f'.{base}_{self.nlab}'
    def pad(self):
        items = self.items
        total = 0
        def index_br():
            br = {}
            for i, (k, x) in enumerate(items):
                if k == 'i' and (x.op.startswith('s_cbranch') or x.op == 's_branch'):
                    br.setdefault(x.ops[0], []).append(i)
            return br
        br = index_br()
        i = 0
        while i < len(items):
            k, c = items[i]
            if k != 'i' or c.is_salu:
                i += 1; continue
            worst = 0
            stack = [(i - 1, 0)]
            seen = {}
            while stack:
                j, dist = stack.pop()
                while j >= 0 and dist < MAXD:
                    if seen.get(j, 99) <= dist: break
                    seen[j] = dist
                    kk, p = items[j]
                    if kk == 'l':
                        for b in br.get(p, []):
                            stack.append((b, dist))
                        j -= 1
                        jj = j
                        while jj >= 0 and items[jj][0] == 't': jj -= 1
                        if jj >= 0 and items[jj][0] == 'i' and items[jj][1].op in ('s_branch', 's_endpgm'):
                            break
                        continue
                    if kk == 't':
                        j -= 1; continue
                    nd = need(p, c)
                    if nd > dist: worst = max(worst, nd - dist)
                    dist += p.states
                    j -= 1
            if worst > 0:
                items.insert(i, ('i', Ins(f's_nop {worst - 1}   ; auto')))
                total += 1
                br = index_br()
                i += 1
            i += 1
        return total
    def text(self):
        out = []
        for k, x in self.items:
            if k == 'i': out.append('    ' + x.text)
            elif k == 'l': out.append(x + ':')
            else: out.append(x)
        return '\n'.join(out) + '\n'

class Alloc:
    def __init__(self, kind, start, limit):
        self.kind, self.n, self.limit = kind, start, limit
        self.hi = start
    def __call__(self, cnt=1, align=1):
        if cnt > 1 and align == 1: align = 2 if self.kind != 's' else (4 if cnt >= 4 else 2)
        self.n = (self.n + align - 1) // align * align
        r = self.n
        self.n += cnt
        assert self.n <= self.limit, f'out of {self.kind} regs'
        self.hi = max(self.hi, self.n)
        return r
    def mark(self): return self.n
    def release(self, m): self.n = m

def v(n, cnt=1): return f'v{n}' if cnt == 1 else f'v[{n}:{n+cnt-1}]'
def s(n, cnt=1): return f's{n}' if cnt == 1 else f's[{n}:{n+cnt-1}]'
```

```python
import sys, os
sys.path.insert(0, os.path.dirname(os.path.abspath(__file__)))
from asmlib import Asm, Alloc, v, s

NAME = 'sequential_preLN__sliding_local_dilated__dense_activation_squared_relu__prompt'

WS_OF  = 0
WS_HF  = 4 << 20
WS_DF  = 8 << 20
WS_ST  = 16 << 20
WS_WO  = 20 << 20
WS_W1  = 22 << 20
WS_W2  = 24 << 20
WS_FL  = 28 << 20
WS_SIZE = 32 << 20

S_PX, S_PWQKV, S_PWO, S_PBX, S_PW1, S_PB1, S_PW2, S_PB2 = 16, 18, 20, 22, 24, 26, 28, 30
S_POUT, S_PDBG, S_PWS = 32, 34, 36
SRD_WS = 4
SRD_A  = 8
SRD_B  = 12
S_W, S_XCD, S_R, S_C, S_J, S_C64, S_J8 = 38, 39, 40, 41, 42, 43, 44
S_FREE = 46

MFMA = 'v_mfma_f32_16x16x32_bf16'

def srd(a, dst, ptr, size):
    a(f's_mov_b32 {s(dst)}, {s(ptr)}')
    a(f's_and_b32 {s(dst+1)}, {s(ptr+1)}, 0xffff')
    a(f's_mov_b32 {s(dst+2)}, {size}')
    a(f's_mov_b32 {s(dst+3)}, 0x00020000')

def prologue(a, endlab):
    a(f's_cmp_ge_u32 s2, 256')
    a(f's_cbranch_scc1 {endlab}')
    a(f's_load_dwordx16 s[16:31], s[0:1], 0')
    a(f's_load_dwordx4 s[32:35], s[0:1], 64')
    a(f's_load_dwordx2 s[36:37], s[0:1], 80')
    a(f'v_lshrrev_b32 v1, 6, v0')
    a(f'v_and_b32 v0, 63, v0')
    a(f'v_readfirstlane_b32 {s(S_W)}, v1')
    a(f's_and_b32 {s(S_XCD)}, s2, 7')
    a(f's_lshr_b32 {s(S_R)}, s2, 3')
    a(f's_lshr_b32 {s(S_C)}, {s(S_R)}, 4')
    a(f's_lshl1_add_u32 {s(S_C)}, {s(S_XCD)}, {s(S_C)}')
    a(f's_and_b32 {s(S_J)}, {s(S_R)}, 15')
    a(f's_lshr_b32 {s(S_C64)}, {s(S_J)}, 3')
    a(f's_lshl1_add_u32 {s(S_C64)}, {s(S_C)}, {s(S_C64)}')
    a(f's_and_b32 {s(S_J8)}, {s(S_J)}, 7')
    a(f's_waitcnt lgkmcnt(0)')
    srd(a, SRD_WS, S_PWS, WS_SIZE)

def bf16r(a, x, tmp=None):
    a(f'v_cvt_pk_bf16_f32 {v(x)}, {v(x)}, {v(x)}')
    a(f'v_lshlrev_b32 {v(x)}, 16, {v(x)}')

def xg_reduce(a, x, tmp, op):
    a(f'v_mov_b32 {v(tmp)}, {v(x)}')
    a(f'v_permlane32_swap_b32 {v(x)}, {v(tmp)}')
    a(f'{op} {v(x)}, {v(x)}, {v(tmp)}')
    a(f'v_mov_b32 {v(tmp)}, {v(x)}')
    a(f'v_permlane16_swap_b32 {v(x)}, {v(tmp)}')
    a(f'{op} {v(x)}, {v(x)}, {v(tmp)}')

def ln_stats(a, vsum, vsq, t0):
    inv = 0x3ACCCCCD
    a(f'v_mul_f32 {v(vsum)}, {hex(inv)}, {v(vsum)}')
    a(f'v_mul_f32 {v(vsq)}, {hex(inv)}, {v(vsq)}')
    a(f'v_fma_f32 {v(vsq)}, -{v(vsum)}, {v(vsum)}, {v(vsq)}')
    a(f'v_max_f32 {v(vsq)}, 0, {v(vsq)}')
    bf16r(a, vsq)
    a(f'v_add_f32 {v(vsq)}, 0x3727C5AC, {v(vsq)}')
    bf16r(a, vsq)
    a(f'v_sqrt_f32 {v(vsq)}, {v(vsq)}')
    bf16r(a, vsum)
    bf16r(a, vsq)
    a(f'v_rcp_f32 {v(t0)}, {v(vsq)}')
    a(f'v_mul_f32 {v(vsq)}, {v(vsum)}, {v(t0)}')
    a(f'v_mov_b32 {v(vsum)}, {v(t0)}')

L_STAGE = 122880
def compaction_issue(a, sa, va, skip):
    sU, sKs, sCb, sT, sRS, sBase, sG, sJs = [sa() for _ in range(8)]
    sDst = [sa(), sa()]; sDel = [sa(), sa()]; sSh = [sa(), sa()]; sAB = [sa(), sa()]
    sTile, sKsB, sReg = sa(), sa(), sa()
    a(f's_lshl_b32 {s(sU)}, {s(S_W)}, 8')
    a(f's_add_u32 {s(sU)}, {s(sU)}, s2')
    a(f's_cmp_ge_u32 {s(sU)}, 1160')
    a(f's_cbranch_scc1 {skip}')
    l_w1, l_w2, l_dec5, l_go = a.newlabel('cw1'), a.newlabel('cw2'), a.newlabel('cd5'), a.newlabel('cgo')
    a(f's_cmp_ge_u32 {s(sU)}, 680')
    a(f's_cbranch_scc1 {l_w2}')
    a(f's_cmp_ge_u32 {s(sU)}, 200')
    a(f's_cbranch_scc1 {l_w1}')
    srd(a, SRD_B, S_PWO, 640 * 1280)
    a(f's_mul_i32 {s(sKs)}, {s(sU)}, 205')
    a(f's_lshr_b32 {s(sKs)}, {s(sKs)}, 11')
    a(f's_mul_i32 {s(sT)}, {s(sKs)}, 10')
    a(f's_sub_u32 {s(sCb)}, {s(sU)}, {s(sT)}')
    a(f's_mov_b32 {s(sRS)}, 1280')
    a(f's_mov_b32 {s(sJs)}, 20')
    a(f's_mul_i32 {s(sBase)}, {s(sKs)}, 40')
    a(f's_mul_i32 {s(sT)}, {s(sKs)}, 160')
    a(f's_sub_u32 {s(sT)}, {s(sT)}, {16*160-16}')
    a(f's_cmp_lt_u32 {s(sKs)}, 16')
    a(f's_cselect_b32 {s(sBase)}, {s(sBase)}, {s(sT)}')
    a(f's_cselect_b32 {s(sG)}, 4, 40')
    a(f's_mov_b32 {s(sTile)}, {20*5*1024}')
    a(f's_mov_b32 {s(sReg)}, {WS_WO}')
    a(f's_branch {l_dec5}')
    a.label(l_w2)
    srd(a, SRD_B, S_PW2, 1536 * 1280)
    a(f's_sub_u32 {s(sU)}, {s(sU)}, 680')
    a(f's_mul_i32 {s(sKs)}, {s(sU)}, 205')
    a(f's_lshr_b32 {s(sKs)}, {s(sKs)}, 11')
    a(f's_mul_i32 {s(sT)}, {s(sKs)}, 10')
    a(f's_sub_u32 {s(sCb)}, {s(sU)}, {s(sT)}')
    a(f's_mov_b32 {s(sRS)}, 1280')
    a(f's_mov_b32 {s(sJs)}, 4')
    a(f's_mov_b32 {s(sG)}, 8')
    a(f's_lshl_b32 {s(sBase)}, {s(sKs)}, 5')
    a(f's_mov_b32 {s(sTile)}, {48*5*1024}')
    a(f's_mov_b32 {s(sReg)}, {WS_W2}')
    a.label(l_dec5)
    a(f's_mul_i32 {s(sKsB)}, {s(sKs)}, 5120')
    a(f's_add_u32 {s(sKsB)}, {s(sKsB)}, {s(sReg)}')
    for bl in range(2):
        sBe, sAa = sU, sKs
        a(f's_lshl_b32 {s(sBe)}, {s(sCb)}, 1')
        if bl: a(f's_add_u32 {s(sBe)}, {s(sBe)}, 1')
        a(f's_mul_i32 {s(sAa)}, {s(sBe)}, 52')
        a(f's_lshr_b32 {s(sAa)}, {s(sAa)}, 8')
        a(f's_mul_i32 {s(sT)}, {s(sAa)}, 5')
        a(f's_sub_u32 {s(sBe)}, {s(sBe)}, {s(sT)}')
        a(f's_lshl_b32 {s(sAa)}, {s(sAa)}, 1')
        a(f's_cmp_ge_u32 {s(sBe)}, 3')
        a(f's_cselect_b32 {s(sT)}, 1, 0')
        a(f's_add_u32 {s(sAa)}, {s(sAa)}, {s(sT)}')
        a(f's_mul_i32 {s(sT)}, {s(sT)}, 3')
        a(f's_sub_u32 {s(sBe)}, {s(sBe)}, {s(sT)}')
        a(f's_mul_i32 {s(sDst[bl])}, {s(sAa)}, {s(sTile)}')
        a(f's_lshl_b32 {s(sT)}, {s(sBe)}, 11')
        a(f's_add_u32 {s(sDst[bl])}, {s(sDst[bl])}, {s(sT)}')
        a(f's_add_u32 {s(sDst[bl])}, {s(sDst[bl])}, {s(sKsB)}')
        a(f's_cmp_eq_u32 {s(sBe)}, 2')
        a(f's_cselect_b32 {s(sDel[bl])}, {s(sTile)}, 1024')
        a(f's_cselect_b32 {s(sSh[bl])}, 3, 4')
        a(f's_cselect_b32 {s(sAB[bl])}, 32, 8')
    a(f's_branch {l_go}')
    a.label(l_w1)
    srd(a, SRD_B, S_PW1, 640 * 3072)
    a(f's_sub_u32 {s(sU)}, {s(sU)}, 200')
    a(f's_mul_i32 {s(sKs)}, {s(sU)}, 683')
    a(f's_lshr_b32 {s(sKs)}, {s(sKs)}, 14')
    a(f's_mul_i32 {s(sT)}, {s(sKs)}, 24')
    a(f's_sub_u32 {s(sCb)}, {s(sU)}, {s(sT)}')
    a(f's_mov_b32 {s(sRS)}, 3072')
    a(f's_mov_b32 {s(sJs)}, 4')
    a(f's_mov_b32 {s(sG)}, 8')
    a(f's_lshl_b32 {s(sBase)}, {s(sKs)}, 5')
    a(f's_mul_i32 {s(sKsB)}, {s(sKs)}, 6144')
    a(f's_add_u32 {s(sKsB)}, {s(sKsB)}, {WS_W1}')
    for bl in range(2):
        sBe, sAa = sU, sKs
        a(f's_lshl_b32 {s(sBe)}, {s(sCb)}, 1')
        if bl: a(f's_add_u32 {s(sBe)}, {s(sBe)}, 1')
        a(f's_mul_i32 {s(sAa)}, {s(sBe)}, 86')
        a(f's_lshr_b32 {s(sAa)}, {s(sAa)}, 8')
        a(f's_mul_i32 {s(sT)}, {s(sAa)}, 3')
        a(f's_sub_u32 {s(sBe)}, {s(sBe)}, {s(sT)}')
        a(f's_mul_i32 {s(sDst[bl])}, {s(sAa)}, 122880')
        a(f's_lshl_b32 {s(sT)}, {s(sBe)}, 11')
        a(f's_add_u32 {s(sDst[bl])}, {s(sDst[bl])}, {s(sT)}')
        a(f's_add_u32 {s(sDst[bl])}, {s(sDst[bl])}, {s(sKsB)}')
        a(f's_mov_b32 {s(sDel[bl])}, 1024')
        a(f's_mov_b32 {s(sSh[bl])}, 4')
        a(f's_mov_b32 {s(sAB[bl])}, 8')
    a.label(l_go)
    t0, t1 = va(), va()
    a(f'v_lshrrev_b32 {v(t0)}, 5, v0')
    a(f'v_mul_lo_u32 {v(t0)}, {v(t0)}, {s(sJs)}')
    a(f'v_bfe_u32 {v(t1)}, v0, 3, 2')
    a(f'v_add_u32 {v(t0)}, {v(t0)}, {v(t1)}')
    a(f'v_mul_lo_u32 {v(t0)}, {v(t0)}, {s(sRS)}')
    a(f'v_and_b32 {v(t1)}, 7, v0')
    a(f'v_lshl_add_u32 {v(t0)}, {v(t1)}, 4, {v(t0)}')
    a(f's_mul_i32 {s(sBase)}, {s(sBase)}, {s(sRS)}')
    a(f's_lshl_b32 {s(sT)}, {s(sCb)}, 7')
    a(f's_add_u32 {s(sBase)}, {s(sBase)}, {s(sT)}')
    a(f's_mul_i32 {s(sG)}, {s(sG)}, {s(sRS)}')
    a(f's_lshl_b32 {s(sT)}, {s(S_W)}, 12')
    a(f's_add_u32 {s(sT)}, {s(sT)}, {L_STAGE}')
    for g in range(4):
        a(f's_mov_b32 m0, {s(sT)}')
        a(f's_add_u32 {s(sT)}, {s(sT)}, 1024')
        a(f'buffer_load_dwordx4 {v(t0)}, {s(SRD_B,4)}, {s(sBase)} offen lds')
        if g < 3: a(f's_add_u32 {s(sBase)}, {s(sBase)}, {s(sG)}')
    return dict(sDst=sDst, sDel=sDel, sSh=sSh, sAB=sAB, t0=t0, t1=t1, sT=sT)

def compaction_finish(a, va, R, sc):
    t0, t1, sT = R['t0'], R['t1'], R['sT']
    F = va(16, 4)
    t2, t3 = va(), va()
    a(f'v_lshrrev_b32 {v(t0)}, 4, v0')
    a(f'v_lshlrev_b32 {v(t0)}, 10, {v(t0)}')
    a(f'v_bfe_u32 {v(t1)}, v0, 2, 2')
    a(f'v_lshl_add_u32 {v(t0)}, {v(t1)}, 7, {v(t0)}')
    a(f's_lshl_b32 {s(sT)}, {s(S_W)}, 12')
    a(f's_add_u32 {s(sT)}, {s(sT)}, {L_STAGE}')
    a(f'v_add_u32 {v(t0)}, {s(sT)}, {v(t0)}')
    a(f'v_and_b32 {v(t1)}, 3, v0')
    for bl in range(2):
        a(f'v_lshlrev_b32 {v(t2)}, {s(R["sSh"][bl])}, {v(t1)}')
        a(f'v_add_u32 {v(t2)}, {v(t2)}, {v(t0)}')
        a(f'v_add_u32 {v(t3)}, {s(R["sAB"][bl])}, {v(t2)}')
        for ab in range(2):
            for jh in range(2):
                f = F + (bl * 2 + ab) * 4 + jh * 2
                a(f'ds_read_b64_tr_b16 {v(f,2)}, {v(t3 if ab else t2)} offset:{bl*64 + jh*512}')
    a(f'v_lshlrev_b32 {v(t0)}, 4, v0')
    a(f's_waitcnt lgkmcnt(0)')
    for bl in range(2):
        a(f'buffer_store_dwordx4 {v(F+bl*8,4)}, {v(t0)}, {s(SRD_WS,4)}, {s(R["sDst"][bl])} offen{sc}')
        a(f's_add_u32 {s(sT)}, {s(R["sDst"][bl])}, {s(R["sDel"][bl])}')
        a(f'buffer_store_dwordx4 {v(F+bl*8+4,4)}, {v(t0)}, {s(SRD_WS,4)}, {s(sT)} offen{sc}')

SLOT = 40960
L_XIMG = 30720
L_STAT = 155648
DROW = 488

def phase1(a, sc=''):
    sa = Alloc('s', S_FREE, 100)
    va = Alloc('v', 1, 256)
    acc = [[va(4, 4) for m in range(5)] for n in range(2)]
    fX = [[va(4, 4) for m in range(5)] for st in range(2)]
    fS = [va(4, 4) for st in range(2)]
    fW = [[va(4, 4) for n in range(2)] for st in range(2)]
    vOff = [va() for _ in range(5)]
    vX = [va(), va()]; vS = [va(), va()]; vW = va()
    vSum = va(2); vSq = vSum + 1; vOne = va()
    t0, t1, t2, t3 = va(), va(), va(), va()
    sStep, sOff, sWrap, sM0, sI, sDelta, sT, sT2 = [sa() for _ in range(8)]
    sMask = sa(2)
    lx, ldone = a.newlabel('p1x'), a.newlabel('p1d')
    a(f's_cmp_ge_u32 {s(S_W)}, 6')
    a(f's_cbranch_scc1 {lx}')
    srd(a, SRD_A, S_PWQKV, 640 * 3840)
    a(f's_mov_b32 {s(sStep)}, {64*3840}')
    a(f's_mul_i32 {s(sT)}, {s(S_W)}, 320')
    a(f's_mul_i32 {s(sT2)}, {s(S_J8)}, 160')
    for i in range(5):
        a(f'v_add_u32 {v(t0)}, {s(sT)}, v0')
        if i: a(f'v_add_u32 {v(t0)}, {64*i}, {v(t0)}')
        a(f'v_mul_u32_u24 {v(t1)}, 2185, {v(t0)}')
        a(f'v_lshrrev_b32 {v(t1)}, 16, {v(t1)}')
        a(f'v_mul_u32_u24 {v(t2)}, 30, {v(t1)}')
        a(f'v_sub_u32 {v(t0)}, {v(t0)}, {v(t2)}')
        a(f'v_mul_u32_u24 {v(t2)}, 26, {v(t0)}')
        a(f'v_lshrrev_b32 {v(t2)}, 8, {v(t2)}')
        a(f'v_mul_u32_u24 {v(t2)}, {1280-160}, {v(t2)}')
        a(f'v_lshl_add_u32 {v(t0)}, {v(t0)}, 4, {v(t2)}')
        a(f'v_and_b32 {v(t2)}, 0x33, {v(t1)}')
        a(f'v_and_b32 {v(t3)}, 4, {v(t1)}')
        a(f'v_lshl_or_b32 {v(t2)}, {v(t3)}, 1, {v(t2)}')
        a(f'v_bfe_u32 {v(t3)}, {v(t1)}, 3, 1')
        a(f'v_lshl_or_b32 {v(t2)}, {v(t3)}, 2, {v(t2)}')
        a(f'v_mul_u32_u24 {v(t2)}, 3840, {v(t2)}')
        a(f'v_add3_u32 {v(vOff[i])}, {v(t0)}, {v(t2)}, {s(sT2)}')
    a(f's_mov_b64 {s(sMask,2)}, -1')
    a(f's_branch {ldone}')
    a.label(lx)
    srd(a, SRD_A, S_PX, 2048 * 1280)
    a(f's_mov_b32 {s(sStep)}, 128')
    a(f's_sub_u32 {s(sT)}, {s(S_W)}, 6')
    a(f's_mul_i32 {s(sT)}, {s(sT)}, 40')
    a(f's_lshl_b32 {s(sT2)}, {s(S_C64)}, 6')
    for i in range(5):
        a(f'v_lshrrev_b32 {v(t0)}, 3, v0')
        a(f'v_add_u32 {v(t0)}, {s(sT)}, {v(t0)}')
        if i: a(f'v_add_u32 {v(t0)}, {8*i}, {v(t0)}')
        a(f'v_and_b32 {v(t1)}, 31, {v(t0)}')
        a(f'v_lshlrev_b32 {v(t1)}, 1, {v(t1)}')
        a(f'v_lshrrev_b32 {v(t2)}, 5, {v(t0)}')
        a(f'v_add_u32 {v(t1)}, {v(t1)}, {v(t2)}')
        a(f'v_and_b32 {v(t2)}, 7, {v(t0)}')
        a(f'v_lshlrev_b32 {v(t2)}, 1, {v(t2)}')
        a(f'v_bfe_u32 {v(t3)}, {v(t0)}, 3, 1')
        a(f'v_add3_u32 {v(t2)}, {v(t2)}, {v(t3)}, -16')
        a(f'v_cmp_le_u32 vcc, 64, {v(t0)}')
        a(f'v_cndmask_b32 {v(t1)}, {v(t1)}, {v(t2)}, vcc')
        a(f'v_add_u32 {v(t1)}, {s(sT2)}, {v(t1)}')
        a(f'v_max_i32 {v(t1)}, 0, {v(t1)}')
        a(f'v_mul_u32_u24 {v(t1)}, 1280, {v(t1)}')
        a(f'v_bfe_u32 {v(t2)}, {v(t0)}, 1, 3')
        a(f'v_and_b32 {v(t3)}, 7, v0')
        a(f'v_xor_b32 {v(t2)}, {v(t2)}, {v(t3)}')
        a(f'v_lshl_add_u32 {v(vOff[i])}, {v(t2)}, 4, {v(t1)}')
    a(f's_mov_b64 {s(sMask,2)}, -1')
    a(f's_cmp_eq_u32 {s(S_W)}, 7')
    a(f's_cselect_b32 {s(sMask)}, 0xffffff00, -1')
    a.label(ldone)
    a(f's_lshr_b32 {s(sT)}, {s(S_R)}, 3')
    a(f's_mul_i32 {s(sT)}, {s(sT)}, 5')
    a(f's_add_u32 {s(sT)}, {s(sT)}, 1')
    a(f's_lshr_b32 {s(sT)}, {s(sT)}, 1')
    a(f's_add_u32 {s(sT)}, {s(sT)}, {s(S_J8)}')
    a(f's_mul_i32 {s(sT2)}, {s(S_XCD)}, 3')
    a(f's_add_u32 {s(sT)}, {s(sT)}, {s(sT2)}')
    a(f's_mul_i32 {s(sT2)}, {s(sT)}, 205')
    a(f's_lshr_b32 {s(sT2)}, {s(sT2)}, 11')
    a(f's_mul_i32 {s(sT2)}, {s(sT2)}, 10')
    a(f's_sub_u32 {s(sT)}, {s(sT)}, {s(sT2)}')
    a(f's_mul_i32 {s(sOff)}, {s(sT)}, {s(sStep)}')
    a(f's_mul_i32 {s(sWrap)}, {s(sStep)}, 10')
    a(f's_mul_i32 {s(sM0)}, {s(S_W)}, 5120')

    def dma_parts():
        parts = []
        for i in range(5):
            p = []
            p.append(f's_mov_b32 m0, {s(sM0)}' if i == 0 else f's_add_u32 m0, m0, 1024')
            if i == 3: p.append(f's_mov_b64 exec, {s(sMask,2)}')
            else: p.append('s_nop 0')
            p.append(f'buffer_load_dwordx4 {v(vOff[i])}, {s(SRD_A,4)}, {s(sOff)} offen lds')
            if i == 3: p.append(f's_mov_b64 exec, -1')
            parts.append(p)
        adv = [f's_add_u32 {s(sOff)}, {s(sOff)}, {s(sStep)}',
               f's_cmp_eq_u32 {s(sOff)}, {s(sWrap)}',
               f's_cselect_b32 {s(sOff)}, 0, {s(sOff)}',
               f's_add_u32 {s(sM0)}, {s(sM0)}, {SLOT}',
               f's_sub_u32 {s(sT)}, {s(sM0)}, {3*SLOT}',
               f's_cmp_ge_u32 {s(sM0)}, {3*SLOT}',
               f's_cselect_b32 {s(sM0)}, {s(sT)}, {s(sM0)}']
        parts.append(adv)
        return parts
    for c in range(2):
        for p in dma_parts():
            for x in p: a(x)
    lcs = a.newlabel('cskip')
    m_s, m_v = sa.mark(), va.mark()
    R = compaction_issue(a, sa, va, lcs)
    a(f's_waitcnt vmcnt(0)')
    compaction_finish(a, va, R, sc)
    a.label(lcs)
    sa.release(m_s); va.release(m_v)
    a(f'v_and_b32 {v(t0)}, 15, v0')
    a(f'v_lshrrev_b32 {v(t1)}, 4, v0')
    a(f'v_lshrrev_b32 {v(t2)}, 1, {v(t0)}')
    a(f'v_xor_b32 {v(t2)}, {v(t2)}, {v(t1)}')
    a(f'v_lshlrev_b32 {v(t2)}, 4, {v(t2)}')
    a(f'v_lshl_add_u32 {v(t2)}, {v(t0)}, 7, {v(t2)}')
    a(f'v_add_u32 {v(vX[0])}, {L_XIMG}, {v(t2)}')
    a(f'v_xor_b32 {v(vX[1])}, 64, {v(vX[0])}')
    a(f's_min_u32 {s(sT)}, {s(S_W)}, 4')
    a(f's_lshl_b32 {s(sT)}, {s(sT)}, 11')
    a(f'v_add_u32 {v(vS[0])}, {s(sT)}, {v(vX[0])}')
    a(f'v_add_u32 {v(vS[1])}, {s(sT)}, {v(vX[1])}')
    a(f'v_lshrrev_b32 {v(t2)}, 5, v0')
    a(f'v_lshlrev_b32 {v(t2)}, 4, {v(t2)}')
    a(f'v_bfe_u32 {v(t3)}, v0, 2, 3')
    a(f'v_add_u32 {v(t2)}, {v(t2)}, {v(t3)}')
    a(f'v_mul_u32_u24 {v(t2)}, 480, {v(t2)}')
    a(f'v_and_b32 {v(t3)}, 3, v0')
    a(f'v_lshl_add_u32 {v(t2)}, {v(t3)}, 3, {v(t2)}')
    a(f's_lshl_b32 {s(sT)}, {s(S_W)}, 6')
    a(f'v_add_u32 {v(vW)}, {s(sT)}, {v(t2)}')
    a(f'v_mov_b32 {v(vOne)}, 0x3f803f80')
    a(f'v_and_b32 {v(t2)}, 31, v0')
    a(f'v_lshlrev_b32 {v(t2)}, 2, {v(t2)}')
    a(f'v_add_u32 {v(t3)}, {SLOT}, {v(t2)}')
    a(f'ds_write_b32 {v(t2)}, {v(vOne)} offset:{L_XIMG + 64*128}')
    a(f'ds_write_b32 {v(t3)}, {v(vOne)} offset:{L_XIMG + 64*128}')
    a(f'v_add_u32 {v(t3)}, {2*SLOT}, {v(t2)}')
    a(f'ds_write_b32 {v(t3)}, {v(vOne)} offset:{L_XIMG + 64*128}')
    for n in range(2):
        for m in range(5):
            for r in range(4): a(f'v_mov_b32 {v(acc[n][m]+r)}, 0')
    for r in range(4):
        for m in range(5): a(f'v_mov_b32 {v(fX[1][m]+r)}, 0')
        a(f'v_mov_b32 {v(fS[1]+r)}, 0')
        for n in range(2): a(f'v_mov_b32 {v(fW[1][n]+r)}, 0')
    a(f'v_mov_b32 {v(vSum)}, 0')
    a(f'v_mov_b32 {v(vSq)}, 0')
    a(f's_mov_b32 {s(sI)}, 0')
    a(f's_mov_b32 {s(sDelta)}, 0')

    def reads(st):
        L = []
        for n in range(2):
            for jh in range(2):
                L.append(f'ds_read_b64_tr_b16 {v(fW[st][n]+2*jh,2)}, {v(vW)} offset:{st*15360 + jh*3840 + n*32}')
        for m in range(5):
            L.append(f'ds_read_b128 {v(fX[st][m],4)}, {v(vX[st])} offset:{m*2048}')
        L.append(f'ds_read_b128 {v(fS[st],4)}, {v(vS[st])}')
        return L
    def mfmas(st):
        L = []
        for m in range(5):
            for n in range(2):
                L.append(f'{MFMA} {v(acc[n][m],4)}, {v(fW[st][n],4)}, {v(fX[st][m],4)}, {v(acc[n][m],4)}')
        return L
    def dots(st):
        L = []
        for r in range(4):
            L.append(f'v_dot2_f32_bf16 {v(vSq)}, {v(fS[st]+r)}, {v(fS[st]+r)}, {v(vSq)}')
            L.append(f'v_dot2_f32_bf16 {v(vSum)}, {v(fS[st]+r)}, {v(vOne)}, {v(vSum)}')
        return L

    lloop, lw5, lnodma, lj = a.newlabel('p1loop'), a.newlabel('p1w'), a.newlabel('p1nd'), a.newlabel('p1j')
    a.label(lloop)
    a(f's_cmp_lt_u32 {s(sI)}, 9')
    a(f's_cbranch_scc1 {lw5}')
    a(f's_waitcnt vmcnt(0)')
    a.label(lw5)
    a(f's_waitcnt vmcnt(5) lgkmcnt(0)')
    a(f's_barrier')
    for x in reads(0): a(x)
    M, D = mfmas(1), dots(1)
    a(f's_cmp_ge_u32 {s(sI)}, 8')
    a(f's_cbranch_scc1 {lnodma}')
    parts = dma_parts()
    for i in range(10):
        a(M[i])
        if i < 8: a(D[i])
        if i % 2 == 1 and i // 2 < 5:
            for x in parts[i // 2]: a(x)
    for x in parts[5]: a(x)
    a(f's_branch {lj}')
    a.label(lnodma)
    for i in range(10):
        a(M[i])
        if i < 8: a(D[i])
    a.label(lj)
    for x in reads(1): a(x)
    a(f's_add_u32 {s(sT)}, {s(sDelta)}, {SLOT}')
    a(f's_cmp_eq_u32 {s(sT)}, {3*SLOT}')
    a(f's_cselect_b32 {s(sT)}, 0, {s(sT)}')
    a(f's_sub_u32 {s(sT2)}, {s(sT)}, {s(sDelta)}')
    a(f's_mov_b32 {s(sDelta)}, {s(sT)}')
    a(f's_waitcnt lgkmcnt(10)')
    M, D = mfmas(0), dots(0)
    upd = [vX[0], vX[1], vS[0], vS[1], vW]
    for i in range(10):
        a(M[i])
        if i < 8: a(D[i])
        if i >= 5: a(f'v_add_u32 {v(upd[i-5])}, {s(sT2)}, {v(upd[i-5])}')
    a(f's_add_u32 {s(sI)}, {s(sI)}, 1')
    a(f's_cmp_lt_u32 {s(sI)}, 10')
    a(f's_cbranch_scc1 {lloop}')
    a(f's_waitcnt lgkmcnt(0)')
    M, D = mfmas(1), dots(1)
    for x in D: a(x)
    for x in M: a(x)
    xg_reduce(a, vSum, t0, 'v_add_f32')
    xg_reduce(a, vSq, t0, 'v_add_f32')
    ln_stats(a, vSum, vSq, t0)
    assert vSq == vSum + 1
    lns = a.newlabel('p1ns')
    a(f'v_and_b32 {v(t1)}, 15, v0')
    a(f'v_lshlrev_b32 {v(t1)}, 3, {v(t1)}')
    a(f'v_add_u32 {v(t1)}, {L_STAT}, {v(t1)}')
    a(f's_cmp_ge_u32 {s(S_W)}, 5')
    a(f's_cbranch_scc1 {lns}')
    a(f's_lshl_b32 {s(sT)}, {s(S_W)}, 7')
    a(f'v_add_u32 {v(t2)}, {s(sT)}, {v(t1)}')
    if vSum % 2:
        raise SystemExit('vSum must be even aligned')
    a(f'ds_write_b64 {v(t2)}, {v(vSum,2)}')
    a.label(lns)
    a(f's_waitcnt lgkmcnt(0)')
    a(f's_barrier')
    st = fX[0][0]
    cs = fX[1][0]
    pk = fW[0][0]
    for m in range(5):
        a(f'ds_read_b64 {v(st+2*m,2)}, {v(t1)} offset:{m*128}')
    for n in range(2):
        for r in range(4):
            a(f'v_mov_b32_dpp {v(cs+4*n+r)}, {v(acc[n][4]+r)} row_newbcast:0 row_mask:0xf bank_mask:0xf')
    a(f'v_and_b32 {v(t0)}, 15, v0')
    a(f'v_mul_u32_u24 {v(t0)}, {DROW}, {v(t0)}')
    a(f'v_lshrrev_b32 {v(t2)}, 4, v0')
    a(f'v_lshl_add_u32 {v(t0)}, {v(t2)}, 3, {v(t0)}')
    a(f's_lshl_b32 {s(sT)}, {s(S_W)}, 6')
    a(f'v_add_u32 {v(t2)}, {s(sT)}, {v(t0)}')
    a(f's_waitcnt lgkmcnt(0)')
    lsk = a.newlabel('p1sk')
    for n in range(2):
        if n == 1:
            a(f's_cmp_eq_u32 {s(S_W)}, 7')
            a(f's_cbranch_scc1 {lsk}')
        for m in range(5):
            A = acc[n][m]
            for r in range(4):
                a(f'v_mul_f32 {v(A+r)}, {v(A+r)}, {v(st+2*m)}')
            for r in range(4):
                a(f'v_fma_f32 {v(A+r)}, -{v(st+2*m+1)}, {v(cs+4*n+r)}, {v(A+r)}')
            p = pk + 2 * (m % 4)
            a(f'v_cvt_pk_bf16_f32 {v(p)}, {v(A)}, {v(A+1)}')
            a(f'v_cvt_pk_bf16_f32 {v(p+1)}, {v(A+2)}, {v(A+3)}')
            a(f'ds_write_b64 {v(t2)}, {v(p,2)} offset:{m*16*DROW + n*32}')
    a.label(lsk)
    va2 = Alloc('v', 4, acc[1][4] + 4 + 64)
    assert va2.limit <= vOff[0]
    sTau, sHp, sCur, sPrev = sa(), sa(), sa(), sa()
    a(f's_and_b32 {s(sTau)}, {s(S_W)}, 3')
    a(f's_lshr_b32 {s(sHp)}, {s(S_W)}, 2')
    a(f's_lshl_b32 {s(sCur)}, {s(sTau)}, 4')
    a(f's_sub_u32 {s(sPrev)}, {s(sCur)}, 16')
    a(f's_lshl_b32 {s(sT)}, {s(sTau)}, 2')
    a(f's_add_u32 {s(sT)}, {s(sT)}, 56')
    a(f's_bitcmp1_b32 {s(sTau)}, 0')
    a(f's_cselect_b32 {s(sPrev)}, {s(sPrev)}, {s(sT)}')
    a(f's_mul_i32 {s(sT)}, {s(sHp)}, 80')
    a(f's_mul_i32 {s(sCur)}, {s(sCur)}, {DROW}')
    a(f's_mul_i32 {s(sPrev)}, {s(sPrev)}, {DROW}')
    a(f's_add_u32 {s(sCur)}, {s(sCur)}, {s(sT)}')
    a(f's_add_u32 {s(sPrev)}, {s(sPrev)}, {s(sT)}')
    aC, aP, aVc, aVp, aVc4, aVp4 = vOff[0], vOff[1], vOff[2], vOff[3], vOff[4], vW
    a(f'v_add_u32 {v(aC)}, {s(sCur)}, {v(t0)}')
    a(f'v_add_u32 {v(aP)}, {s(sPrev)}, {v(t0)}')
    a(f'v_lshrrev_b32 {v(t1)}, 2, v0')
    a(f'v_mul_u32_u24 {v(t1)}, {DROW}, {v(t1)}')
    a(f'v_add_u32 {v(aVc4)}, {s(sCur)}, {v(t1)}')
    a(f'v_add_u32 {v(aVp4)}, {s(sPrev)}, {v(t1)}')
    a(f'v_and_b32 {v(t1)}, 3, v0')
    a(f'v_lshl_add_u32 {v(aVc)}, {v(t1)}, 3, {v(aVc4)}')
    a(f'v_lshl_add_u32 {v(aVp)}, {v(t1)}, 3, {v(aVp4)}')
    Cc, Cp = va2(4, 4), va2(4, 4)
    Mc, Mp = va2(2), va2(2)
    vG0 = va2()
    sThr = sa()
    a(f's_or_b32 {s(sT)}, {s(S_C64)}, {s(sTau)}')
    a(f's_and_b32 {s(sT)}, {s(sT)}, 0xfffffffd')
    a(f's_or_b32 {s(sT)}, {s(sT)}, {s(S_C64)}')
    a(f's_cmp_eq_u32 {s(sT)}, 0')
    a(f's_cselect_b32 {s(sThr)}, 100, 9')
    a(f'v_lshrrev_b32 {v(t1)}, 4, v0')
    a(f'v_lshlrev_b32 {v(t1)}, 2, {v(t1)}')
    a(f'v_and_b32 {v(t2)}, 15, v0')
    a(f'v_sub_u32 {v(t1)}, {v(t1)}, {v(t2)}')
    a(f'v_mov_b32 {v(t3)}, 0xf149f2ca')
    for r in range(4):
        a(f'v_add_u32 {v(t2)}, {r+7}, {v(t1)}')
        a(f'v_cmp_ge_u32 vcc, 7, {v(t2)}')
        a(f'v_cndmask_b32 {v(Cc+r)}, {v(t3)}, 0, vcc')
        a(f'v_add_u32 {v(t2)}, {r}, {v(t1)}')
        a(f'v_cmp_le_i32 vcc, {s(sThr)}, {v(t2)}')
        a(f'v_cndmask_b32 {v(Cp+r)}, {v(t3)}, 0, vcc')
        a(f'v_cmp_ge_i32 vcc, 0, {v(t2)}')
        half = '0xffff' if r % 2 == 0 else '0xffff0000'
        a(f'v_mov_b32 {v(vG0)}, {half}')
        if r % 2 == 0:
            a(f'v_cndmask_b32 {v(Mc+r//2)}, 0, {v(vG0)}, vcc')
        else:
            a(f'v_cndmask_b32 {v(vG0)}, 0, {v(vG0)}, vcc')
            a(f'v_or_b32 {v(Mc+r//2)}, {v(Mc+r//2)}, {v(vG0)}')
    a(f'v_not_b32 {v(Mp)}, {v(Mc)}')
    a(f'v_not_b32 {v(Mp+1)}, {v(Mc+1)}')
    a(f'v_cmp_gt_u32 vcc, 16, v0')
    a(f'v_cndmask_b32 {v(vG0)}, 0, -1, vcc')
    a(f's_waitcnt lgkmcnt(0)')
    a(f's_barrier')
    Q = [va2(4, 4) for _ in range(2)]; Kc = [va2(4, 4) for _ in range(2)]; Kp = [va2(4, 4) for _ in range(2)]
    Vm = [va2(4, 4) for _ in range(2)]; V4 = [va2(4, 4) for _ in range(2)]
    Sc = [va2(4, 4) for _ in range(2)]; Sp = [va2(4, 4) for _ in range(2)]
    Om, O4 = va2(4, 4), va2(4, 4)
    for h in range(2):
        a(f'ds_read2_b64 {v(Q[h],4)}, {v(aC)} offset0:{5*h} offset1:{5*h+4}')
        a(f'ds_read2_b64 {v(Kc[h],4)}, {v(aC)} offset0:{20+5*h} offset1:{24+5*h}')
        a(f'ds_read2_b64 {v(Kp[h],4)}, {v(aP)} offset0:{20+5*h} offset1:{24+5*h}')
    for h in range(2):
        a(f'ds_read_b64_tr_b16 {v(Vm[h],2)}, {v(aVp)} offset:{320+40*h}')
        a(f'ds_read_b64_tr_b16 {v(Vm[h]+2,2)}, {v(aVc)} offset:{320+40*h}')
        a(f'ds_read_b64_tr_b16 {v(V4[h],2)}, {v(aVp4)} offset:{320+40*h+32}')
        a(f'ds_read_b64_tr_b16 {v(V4[h]+2,2)}, {v(aVc4)} offset:{320+40*h+32}')
    for h in range(2):
        a(f's_waitcnt lgkmcnt({8 + 3*(1-h)})')
        a(f'v_and_b32 {v(Q[h]+2)}, {v(Q[h]+2)}, {v(vG0)}')
        a(f'v_and_b32 {v(Q[h]+3)}, {v(Q[h]+3)}, {v(vG0)}')
        a(f'{MFMA} {v(Sc[h],4)}, {v(Kc[h],4)}, {v(Q[h],4)}, {v(Cc,4)}')
        a(f'{MFMA} {v(Sp[h],4)}, {v(Kp[h],4)}, {v(Q[h],4)}, {v(Cp,4)}')
    import struct, math
    cexp = struct.unpack('<I', struct.pack('<f', 20 ** -0.5 * math.log2(math.e)))[0]
    sCexp = sa()
    a(f's_mov_b32 {s(sCexp)}, {hex(cexp)}')
    mx = [t0, t1]; tm = [t2, t3]
    for h in range(2):
        for r in range(4): a(f'v_max_f32 {v(Sc[h]+r)}, {v(Sc[h]+r)}, {v(Sp[h]+r)}')
        a(f'v_max3_f32 {v(mx[h])}, {v(Sc[h])}, {v(Sc[h]+1)}, {v(Sc[h]+2)}')
        a(f'v_max_f32 {v(mx[h])}, {v(mx[h])}, {v(Sc[h]+3)}')
    def red2(op):
        for h in range(2): a(f'v_mov_b32 {v(tm[h])}, {v(mx[h])}')
        for h in range(2): a(f'v_permlane32_swap_b32 {v(mx[h])}, {v(tm[h])}')
        for h in range(2): a(f'{op} {v(mx[h])}, {v(mx[h])}, {v(tm[h])}')
        for h in range(2): a(f'v_mov_b32 {v(tm[h])}, {v(mx[h])}')
        for h in range(2): a(f'v_permlane16_swap_b32 {v(mx[h])}, {v(tm[h])}')
        for h in range(2): a(f'{op} {v(mx[h])}, {v(mx[h])}, {v(tm[h])}')
    red2('v_max_f32')
    for h in range(2):
        for r in range(4): a(f'v_sub_f32 {v(Sc[h]+r)}, {v(Sc[h]+r)}, {v(mx[h])}')
        for r in range(4): a(f'v_mul_f32 {v(Sc[h]+r)}, {s(sCexp)}, {v(Sc[h]+r)}')
        for r in range(4): a(f'v_exp_f32 {v(Sc[h]+r)}, {v(Sc[h]+r)}')
    for h in range(2):
        a(f'v_add_f32 {v(mx[h])}, {v(Sc[h])}, {v(Sc[h]+1)}')
        a(f'v_add_f32 {v(tm[h])}, {v(Sc[h]+2)}, {v(Sc[h]+3)}')
        a(f'v_add_f32 {v(mx[h])}, {v(mx[h])}, {v(tm[h])}')
    red2('v_add_f32')
    for h in range(2): a(f'v_rcp_f32 {v(mx[h])}, {v(mx[h])}')
    for h in range(2):
        for r in range(4): a(f'v_mul_f32 {v(Sc[h]+r)}, {v(Sc[h]+r)}, {v(mx[h])}')
        a(f'v_cvt_pk_bf16_f32 {v(Sc[h])}, {v(Sc[h])}, {v(Sc[h]+1)}')
        a(f'v_cvt_pk_bf16_f32 {v(Sc[h]+1)}, {v(Sc[h]+2)}, {v(Sc[h]+3)}')
        a(f'v_and_b32 {v(Sp[h])}, {v(Sc[h])}, {v(Mp)}')
        a(f'v_and_b32 {v(Sp[h]+1)}, {v(Sc[h]+1)}, {v(Mp+1)}')
        a(f'v_and_b32 {v(Sp[h]+2)}, {v(Sc[h])}, {v(Mc)}')
        a(f'v_and_b32 {v(Sp[h]+3)}, {v(Sc[h]+1)}, {v(Mc+1)}')
    a(f's_waitcnt lgkmcnt(0)')
    for h in range(2):
        a(f'{MFMA} {v(Q[h],4)}, {v(Vm[h],4)}, {v(Sp[h],4)}, 0')
        a(f'{MFMA} {v(Kc[h],4)}, {v(V4[h],4)}, {v(Sp[h],4)}, 0')
    sO1, sO2 = sCur, sPrev
    a(f's_lshl2_add_u32 {s(sT)}, {s(S_C64)}, {s(sTau)}')
    a(f's_mul_i32 {s(sT)}, {s(sT)}, 20480')
    a(f's_lshl1_add_u32 {s(sT2)}, {s(S_J8)}, {s(sHp)}')
    a(f's_lshl_b32 {s(sO1)}, {s(sT2)}, 10')
    a(f's_add_u32 {s(sO1)}, {s(sO1)}, {s(sT)}')
    a(f's_lshr_b32 {s(sO2)}, {s(sT2)}, 2')
    a(f's_lshl_b32 {s(sO2)}, {s(sO2)}, 10')
    a(f's_add_u32 {s(sO2)}, {s(sO2)}, {s(sT)}')
    a(f's_add_u32 {s(sO2)}, {s(sO2)}, {16*1024 + WS_OF}')
    if WS_OF: a(f's_add_u32 {s(sO1)}, {s(sO1)}, {WS_OF}')
    a(f's_and_b32 {s(sT2)}, {s(sT2)}, 3')
    a(f's_lshl_b32 {s(sT2)}, {s(sT2)}, 4')
    a(f's_mov_b64 {s(sMask,2)}, 0xffff')
    a(f's_lshl_b64 {s(sMask,2)}, {s(sMask,2)}, {s(sT2)}')
    a(f'v_lshlrev_b32 {v(t0)}, 4, v0')
    for h in range(2):
        a(f'v_cvt_pk_bf16_f32 {v(Om+2*h)}, {v(Q[h])}, {v(Q[h]+1)}')
        a(f'v_cvt_pk_bf16_f32 {v(Om+2*h+1)}, {v(Q[h]+2)}, {v(Q[h]+3)}')
        a(f'v_cvt_pk_bf16_f32 {v(O4+2*h)}, {v(Kc[h])}, {v(Kc[h]+1)}')
        a(f'v_cvt_pk_bf16_f32 {v(O4+2*h+1)}, {v(Kc[h]+2)}, {v(Kc[h]+3)}')
    a(f'buffer_store_dwordx4 {v(Om,4)}, {v(t0)}, {s(SRD_WS,4)}, {s(sO1)} offen{sc}')
    a(f's_mov_b64 exec, {s(sMask,2)}')
    a(f'buffer_store_dwordx4 {v(O4,4)}, {v(t0)}, {s(SRD_WS,4)}, {s(sO2)} offen{sc}')
    a(f's_mov_b64 exec, -1')
    return va.hi

def tile80_addr(a, sa, va):
    sTau, sKh, sT, sBeta, sB4, sTile = [sa() for _ in range(6)]
    vRowP, vRow4, vL16, vH4 = va(), va(), va(), va()
    t0 = va()
    a(f's_and_b32 {s(sTau)}, {s(S_W)}, 3')
    a(f's_lshr_b32 {s(sKh)}, {s(S_W)}, 2')
    a(f's_lshl2_add_u32 {s(sTile)}, {s(S_C64)}, {s(sTau)}')
    a(f's_lshr_b32 {s(sB4)}, {s(S_J8)}, 1')
    a(f's_mul_i32 {s(sB4)}, {s(sB4)}, 5')
    a(f's_and_b32 {s(sT)}, {s(S_J8)}, 1')
    a(f's_mul_i32 {s(sBeta)}, {s(sT)}, 3')
    a(f's_add_u32 {s(sBeta)}, {s(sBeta)}, {s(sB4)}')
    a(f's_add_u32 {s(sBeta)}, {s(sBeta)}, {s(sKh)}')
    a(f's_add_u32 {s(sB4)}, {s(sB4)}, 2')
    a(f's_lshl1_add_u32 {s(sB4)}, {s(sB4)}, {s(sT)}')
    sRow = sa()
    a(f's_and_b32 {s(sRow)}, {s(sTau)}, 1')
    a(f's_lshl_b32 {s(sRow)}, {s(sRow)}, 5')
    a(f's_lshr_b32 {s(sT)}, {s(sTau)}, 1')
    a(f's_add_u32 {s(sRow)}, {s(sRow)}, {s(sT)}')
    a(f's_lshl_b32 {s(sT)}, {s(S_C64)}, 6')
    a(f's_add_u32 {s(sRow)}, {s(sRow)}, {s(sT)}')
    a(f's_mul_i32 {s(sRow)}, {s(sRow)}, 1280')
    sRowP, sRow4, sHP, sH4 = sa(), sa(), sa(), sa()
    a(f's_lshl_b32 {s(sT)}, {s(sBeta)}, 6')
    a(f's_add_u32 {s(sRowP)}, {s(sRow)}, {s(sT)}')
    a(f's_lshl_b32 {s(sT)}, {s(sB4)}, 5')
    a(f's_add_u32 {s(sRow4)}, {s(sRow)}, {s(sT)}')
    a(f's_mul_i32 {s(sH4)}, {s(sTile)}, 20480')
    a(f's_add_u32 {s(sH4)}, {s(sH4)}, {WS_HF}')
    a(f's_lshl_b32 {s(sT)}, {s(sBeta)}, 10')
    a(f's_add_u32 {s(sHP)}, {s(sH4)}, {s(sT)}')
    a(f's_lshl_b32 {s(sT)}, {s(sB4)}, 9')
    a(f's_add_u32 {s(sH4)}, {s(sH4)}, {s(sT)}')
    a(f'v_and_b32 {v(t0)}, 15, v0')
    a(f'v_mul_u32_u24 {v(vRowP)}, 2560, {v(t0)}')
    a(f'v_lshlrev_b32 {v(vH4)}, 4, {v(t0)}')
    a(f'v_lshrrev_b32 {v(t0)}, 4, v0')
    a(f'v_lshl_add_u32 {v(vRow4)}, {v(t0)}, 3, {v(vRowP)}')
    a(f'v_lshl_add_u32 {v(vRowP)}, {v(t0)}, 4, {v(vRowP)}')
    a(f'v_lshlrev_b32 {v(vL16)}, 4, v0')
    a(f'v_and_b32 {v(t0)}, 1, {v(t0)}')
    a(f'v_lshl_add_u32 {v(vH4)}, {v(t0)}, 3, {v(vH4)}')
    a(f'v_lshrrev_b32 {v(t0)}, 5, v0')
    a(f'v_lshl_add_u32 {v(vH4)}, {v(t0)}, 8, {v(vH4)}')
    return dict(sTau=sTau, sKh=sKh, sT=sT, sBeta=sBeta, sB4=sB4, sTile=sTile, sRowP=sRowP, sRow4=sRow4,
                sHP=sHP, sH4=sH4, vRowP=vRowP, vRow4=vRow4, vL16=vL16, vH4=vH4, t0=t0)

def exchange(a, A, acc, tmp, xbase):
    sT, t0, vL16 = A['sT'], A['t0'], A['vL16']
    a(f's_mul_i32 {s(sT)}, {s(S_W)}, 3072')
    a(f's_add_u32 {s(sT)}, {s(sT)}, {xbase}')
    a(f'v_add_u32 {v(t0)}, {s(sT)}, {v(vL16)}')
    for i in range(3):
        a(f'ds_write_b128 {v(t0)}, {v(acc[2+i],4)} offset:{i*1024}')
    a(f's_xor_b32 {s(sT)}, {s(S_W)}, 4')
    a(f's_mul_i32 {s(sT)}, {s(sT)}, 3072')
    a(f's_add_u32 {s(sT)}, {s(sT)}, {xbase}')
    a(f's_waitcnt lgkmcnt(0)')
    a(f'v_add_u32 {v(t0)}, {s(sT)}, {v(vL16)}')
    a(f's_barrier')
    for i in range(3):
        a(f'ds_read_b128 {v(tmp+4*i,4)}, {v(t0)} offset:{i*1024}')
    for i, d in enumerate((0, 1, 4)):
        a(f's_waitcnt lgkmcnt({2-i})')
        for r in range(4):
            a(f'v_add_f32 {v(acc[d]+r)}, {v(acc[d]+r)}, {v(tmp+4*i+r)}')

def add_bf16_pairs(a, dst_regs, src, tmp):
    for i in range(len(dst_regs) // 2):
        a(f'v_lshlrev_b32 {v(tmp)}, 16, {v(src+i)}')
        a(f'v_add_f32 {v(dst_regs[2*i])}, {v(dst_regs[2*i])}, {v(tmp)}')
        a(f'v_and_b32 {v(tmp)}, 0xffff0000, {v(src+i)}')
        a(f'v_add_f32 {v(dst_regs[2*i+1])}, {v(dst_regs[2*i+1])}, {v(tmp)}')

def dma5(a, voff, srdreg, sSrc, sDst, sTmp, cnt=5, sc=''):
    a(f's_mov_b32 m0, {s(sDst)}')
    a(f's_add_u32 {s(sTmp)}, {s(sSrc)}, 4096')
    for i in range(min(cnt, 4)):
        a(f'buffer_load_dwordx4 {v(voff)}, {s(srdreg,4)}, {s(sSrc)} offen offset:{i*1024}{sc} lds')
    if cnt > 4:
        a(f's_add_u32 m0, m0, 4096')
        a(f's_nop 0')
        for i in range(cnt - 4):
            a(f'buffer_load_dwordx4 {v(voff)}, {s(srdreg,4)}, {s(sTmp)} offen offset:{i*1024}{sc} lds')

def phase2(a, sc=''):
    sa = Alloc('s', S_FREE, 100)
    va = Alloc('v', 1, 256)
    A = tile80_addr(a, sa, va)
    sT, sKh, sTau = A['sT'], A['sKh'], A['sTau']
    acc = [va(4, 4) for _ in range(5)]
    fO = [va(4, 4) for _ in range(10)]
    fW = [[va(4, 4) for n in range(5)] for _ in range(2)]
    xP, x4 = va(4, 4), va(2)
    vWo, vWt, vW4 = va(), va(), va()
    vSum = va(2); vSq = vSum + 1
    vOne, t1 = va(), va()
    sSrc, sDst, sTmp = sa(), sa(), sa()
    a(f's_mul_i32 {s(sDst)}, {s(sKh)}, 10')
    a(f's_add_u32 {s(sDst)}, {s(sDst)}, {s(sTau)}')
    a(f's_mul_i32 {s(sDst)}, {s(sDst)}, 5120')
    a(f's_mul_i32 {s(sSrc)}, {s(S_J8)}, 102400')
    a(f's_add_u32 {s(sSrc)}, {s(sSrc)}, {WS_WO}')
    a(f's_add_u32 {s(sSrc)}, {s(sSrc)}, {s(sDst)}')
    lsk = a.newlabel('p2s')
    for i in range(3):
        if i == 2:
            a(f's_cmp_ge_u32 {s(sTau)}, 2')
            a(f's_cbranch_scc1 {lsk}')
        dma5(a, A['vL16'], SRD_WS, sSrc, sDst, sTmp, sc=sc)
        if i < 2:
            a(f's_add_u32 {s(sSrc)}, {s(sSrc)}, 20480')
            a(f's_add_u32 {s(sDst)}, {s(sDst)}, 20480')
    a.label(lsk)
    srd(a, SRD_A, S_PX, 2048 * 1280)
    a(f'buffer_load_dwordx4 {v(xP,4)}, {v(A["vRowP"])}, {s(SRD_A,4)}, {s(A["sRowP"])} offen')
    a(f'buffer_load_dwordx2 {v(x4,2)}, {v(A["vRow4"])}, {s(SRD_A,4)}, {s(A["sRow4"])} offen')
    a(f's_mul_i32 {s(sSrc)}, {s(A["sTile"])}, 20480')
    a(f's_mul_i32 {s(sT)}, {s(sKh)}, 10240')
    a(f's_add_u32 {s(sSrc)}, {s(sSrc)}, {s(sT)}')
    if WS_OF: a(f's_add_u32 {s(sSrc)}, {s(sSrc)}, {WS_OF}')
    for k in range(10):
        if k and k % 4 == 0: a(f's_add_u32 {s(sSrc)}, {s(sSrc)}, 4096')
        a(f'buffer_load_dwordx4 {v(fO[k],4)}, {v(A["vL16"])}, {s(SRD_WS,4)}, {s(sSrc)} offen offset:{(k%4)*1024}{sc}')
    a(f's_mul_i32 {s(sT)}, {s(sKh)}, {51200+2048}')
    a(f'v_add_u32 {v(vWo)}, {s(sT)}, {v(A["vL16"])}')
    a(f's_mul_i32 {s(sT)}, {s(sKh)}, {51200-2048}')
    a(f's_add_u32 {s(sT)}, {s(sT)}, 2048')
    a(f'v_add_u32 {v(vWt)}, {s(sT)}, {v(A["vL16"])}')
    a(f's_mul_i32 {s(sT)}, {s(sKh)}, 51200')
    a(f'v_add_u32 {v(vW4)}, {s(sT)}, {v(A["vL16"])}')
    a(f'v_mov_b32 {v(vOne)}, 0x3f803f80')
    a(f'v_mov_b32 {v(vSum)}, 0')
    a(f'v_mov_b32 {v(vSq)}, 0')
    a(f's_waitcnt vmcnt(12)')
    a(f's_barrier')
    def rd(k):
        st = k % 2
        a(f'ds_read_b128 {v(fW[st][0],4)}, {v(vWo)} offset:{k*5120}')
        a(f'ds_read_b128 {v(fW[st][1],4)}, {v(vWo)} offset:{k*5120+1024}')
        a(f'ds_read_b128 {v(fW[st][2],4)}, {v(vWt)} offset:{k*5120}')
        a(f'ds_read_b128 {v(fW[st][3],4)}, {v(vWt)} offset:{k*5120+1024}')
        a(f'ds_read_b128 {v(fW[st][4],4)}, {v(vW4)} offset:{k*5120+4096}')
    rd(0)
    for k in range(10):
        if k < 9: rd(k + 1)
        a(f's_waitcnt vmcnt({9-k}) lgkmcnt({5 if k < 9 else 0})')
        for n in range(5):
            c = '0' if k == 0 else v(acc[n], 4)
            a(f'{MFMA} {v(acc[n],4)}, {v(fW[k%2][n],4)}, {v(fO[k],4)}, {c}')
    exchange(a, A, acc, fW[0][0], 102400)
    own = [acc[0] + r for r in range(4)] + [acc[1] + r for r in range(4)]
    add_bf16_pairs(a, own, xP, t1)
    hP, h4 = fO[0], fO[1]
    for i in range(4):
        a(f'v_cvt_pk_bf16_f32 {v(hP+i)}, {v(own[2*i])}, {v(own[2*i+1])}')
    a(f'buffer_store_dwordx4 {v(hP,4)}, {v(A["vL16"])}, {s(SRD_WS,4)}, {s(A["sHP"])} offen{sc}')
    for i in range(4):
        a(f'v_dot2_f32_bf16 {v(vSq)}, {v(hP+i)}, {v(hP+i)}, {v(vSq)}')
        a(f'v_dot2_f32_bf16 {v(vSum)}, {v(hP+i)}, {v(vOne)}, {v(vSum)}')
    l4 = a.newlabel('p2t4')
    a(f's_cmp_eq_u32 {s(sKh)}, 1')
    a(f's_cbranch_scc1 {l4}')
    o4 = [acc[4] + r for r in range(4)]
    add_bf16_pairs(a, o4, x4, t1)
    for i in range(2):
        a(f'v_cvt_pk_bf16_f32 {v(h4+i)}, {v(o4[2*i])}, {v(o4[2*i+1])}')
    a(f'buffer_store_dwordx2 {v(h4,2)}, {v(A["vH4"])}, {s(SRD_WS,4)}, {s(A["sH4"])} offen{sc}')
    for i in range(2):
        a(f'v_dot2_f32_bf16 {v(vSq)}, {v(h4+i)}, {v(h4+i)}, {v(vSq)}')
        a(f'v_dot2_f32_bf16 {v(vSum)}, {v(h4+i)}, {v(vOne)}, {v(vSum)}')
    a.label(l4)
    xg_reduce(a, vSum, t1, 'v_add_f32')
    xg_reduce(a, vSq, t1, 'v_add_f32')
    a(f's_lshl_b32 {s(sSrc)}, {s(A["sTile"])}, 11')
    a(f's_lshl_b32 {s(sT)}, {s(S_J8)}, 8')
    a(f's_add_u32 {s(sSrc)}, {s(sSrc)}, {s(sT)}')
    a(f's_lshl_b32 {s(sT)}, {s(sKh)}, 7')
    a(f's_add_u32 {s(sSrc)}, {s(sSrc)}, {s(sT)}')
    a(f's_add_u32 {s(sSrc)}, {s(sSrc)}, {WS_ST}')
    a(f'v_lshlrev_b32 {v(t1)}, 3, v0')
    a(f's_mov_b64 exec, 0xffff')
    a(f'buffer_store_dwordx2 {v(vSum,2)}, {v(t1)}, {s(SRD_WS,4)}, {s(sSrc)} offen{sc}')
    a(f's_mov_b64 exec, -1')
    return va.hi

def phase3(a, sc=''):
    sa = Alloc('s', S_FREE, 100)
    va = Alloc('v', 1, 256)
    vL16, vW0, vW1, t0, t1 = va(), va(), va(), va(), va()
    acc = [va(4, 4) for _ in range(6)]
    fH = [va(4, 4) for _ in range(20)]
    fW = [[va(4, 4) for n in range(6)] for _ in range(2)]
    cs = [va(4, 4) for _ in range(6)]
    b1 = [va(4, 4) for _ in range(3)]
    stp = [va(2) for _ in range(4)]
    ones = va(4, 4)
    sSrc, sDst, sTmp, sT, sTile = [sa() for _ in range(5)]
    L_CS = 122880
    a(f'v_lshlrev_b32 {v(vL16)}, 4, v0')
    a(f's_mul_i32 {s(sDst)}, {s(S_W)}, 15360')
    a(f's_mul_i32 {s(sSrc)}, {s(S_J)}, 122880')
    a(f's_add_u32 {s(sSrc)}, {s(sSrc)}, {WS_W1}')
    a(f's_add_u32 {s(sSrc)}, {s(sSrc)}, {s(sDst)}')
    for i in range(2):
        dma5(a, vL16, SRD_WS, sSrc, sDst, sTmp, cnt=8 if i == 0 else 7, sc=sc)
        if i == 0:
            a(f's_add_u32 {s(sSrc)}, {s(sSrc)}, 8192')
            a(f's_add_u32 {s(sDst)}, {s(sDst)}, 8192')
    srd(a, SRD_A, S_PB1, 1536 * 2)
    a(f'v_lshrrev_b32 {v(t0)}, 4, v0')
    a(f'v_lshlrev_b32 {v(t0)}, 4, {v(t0)}')
    a(f's_mul_i32 {s(sT)}, {s(S_J)}, 192')
    for i in range(3):
        a(f'buffer_load_dwordx4 {v(b1[i],4)}, {v(t0)}, {s(SRD_A,4)}, {s(sT)} offen offset:{i*64}')
    a(f's_lshl3_add_u32 {s(sTile)}, {s(S_C)}, {s(S_W)}')
    a(f's_lshl_b32 {s(sSrc)}, {s(sTile)}, 11')
    a(f's_add_u32 {s(sSrc)}, {s(sSrc)}, {WS_ST}')
    a(f'v_lshlrev_b32 {v(t0)}, 5, {v(t0)}')
    a(f'v_and_b32 {v(t1)}, 15, v0')
    a(f'v_lshl_add_u32 {v(t0)}, {v(t1)}, 3, {v(t0)}')
    for q in range(4):
        a(f'buffer_load_dwordx2 {v(stp[q],2)}, {v(t0)}, {s(SRD_WS,4)}, {s(sSrc)} offen offset:{q*128}{sc}')
    a(f's_mul_i32 {s(sSrc)}, {s(sTile)}, 20480')
    a(f's_add_u32 {s(sSrc)}, {s(sSrc)}, {WS_HF}')
    for k in range(20):
        if k and k % 4 == 0: a(f's_add_u32 {s(sSrc)}, {s(sSrc)}, 4096')
        a(f'buffer_load_dwordx4 {v(fH[k],4)}, {v(vL16)}, {s(SRD_WS,4)}, {s(sSrc)} offen offset:{(k%4)*1024}{sc}')
    for r in range(4): a(f'v_mov_b32 {v(ones+r)}, 0x3f803f80')
    a(f'v_add_u32 {v(vW1)}, 61440, {v(vL16)}')
    a(f's_waitcnt vmcnt(27)')
    a(f's_barrier')
    lcs = a.newlabel('p3cs')
    a(f's_cmp_ge_u32 {s(S_W)}, 6')
    a(f's_cbranch_scc1 {lcs}')
    a(f's_lshl_b32 {s(sT)}, {s(S_W)}, 10')
    a(f'v_add_u32 {v(t0)}, {s(sT)}, {v(vL16)}')
    a(f'v_add_u32 {v(t1)}, {s(sT)}, {v(vW1)}')
    flat = [fW[i // 6][i % 6] for i in range(12)]
    for half in range(2):
        for k in range(10):
            a(f'ds_read_b128 {v(flat[k],4)}, {v(t1 if half else t0)} offset:{k*6144}')
        for k in range(10):
            a(f's_waitcnt lgkmcnt({9-k})')
            c = '0' if (k == 0 and half == 0) else v(acc[0], 4)
            a(f'{MFMA} {v(acc[0],4)}, {v(flat[k],4)}, {v(ones,4)}, {c}')
    a(f'v_add_u32 {v(t0)}, {L_CS - 61440}, {v(t1)}')
    a(f'ds_write_b128 {v(t0)}, {v(acc[0],4)}')
    a(f's_waitcnt lgkmcnt(0)')
    a.label(lcs)
    a(f's_barrier')
    a(f'v_add_u32 {v(t0)}, {L_CS}, {v(vL16)}')
    for n in range(6):
        a(f'ds_read_b128 {v(cs[n],4)}, {v(t0)} offset:{n*1024}')
    def rd(k):
        st = k % 2
        for n in range(6):
            base = vL16 if k < 10 else vW1
            a(f'ds_read_b128 {v(fW[st][n],4)}, {v(base)} offset:{(k%10)*6144 + n*1024}')
    rd(0)
    for k in range(20):
        if k < 19: rd(k + 1)
        a(f's_waitcnt vmcnt({19-k}) lgkmcnt({6 if k < 19 else 0})')
        for n in range(6):
            c = '0' if k == 0 else v(acc[n], 4)
            a(f'{MFMA} {v(acc[n],4)}, {v(fW[k%2][n],4)}, {v(fH[k],4)}, {c}')
        if k == 2:
            vS = stp[0]
            for q in range(1, 4):
                a(f'v_add_f32 {v(vS)}, {v(vS)}, {v(stp[q])}')
                a(f'v_add_f32 {v(vS+1)}, {v(vS+1)}, {v(stp[q]+1)}')
            xg_reduce(a, vS, t0, 'v_add_f32')
            xg_reduce(a, vS + 1, t0, 'v_add_f32')
            ln_stats(a, vS, vS + 1, t0)
        if 4 <= k < 10:
            n = k - 4
            i, ab = n // 2, n % 2
            for rr in range(2):
                src = b1[i] + ab * 2 + rr
                a(f'v_lshlrev_b32 {v(t0)}, 16, {v(src)}')
                a(f'v_fma_f32 {v(cs[n]+2*rr)}, -{v(stp[0]+1)}, {v(cs[n]+2*rr)}, {v(t0)}')
                a(f'v_and_b32 {v(t0)}, 0xffff0000, {v(src)}')
                a(f'v_fma_f32 {v(cs[n]+2*rr+1)}, -{v(stp[0]+1)}, {v(cs[n]+2*rr+1)}, {v(t0)}')
    a(f's_mul_i32 {s(sSrc)}, {s(sTile)}, 49152')
    a(f's_mul_i32 {s(sT)}, {s(S_J)}, 3072')
    a(f's_add_u32 {s(sSrc)}, {s(sSrc)}, {s(sT)}')
    a(f's_add_u32 {s(sSrc)}, {s(sSrc)}, {WS_DF}')
    for i in range(3):
        out = fH[i]
        for ab in range(2):
            A_ = acc[2 * i + ab]
            for r in range(4): a(f'v_fma_f32 {v(A_+r)}, {v(A_+r)}, {v(stp[0])}, {v(cs[2*i+ab]+r)}')
            for r in range(4): a(f'v_max_f32 {v(A_+r)}, 0, {v(A_+r)}')
            for r in range(4): a(f'v_mul_f32 {v(A_+r)}, {v(A_+r)}, {v(A_+r)}')
            a(f'v_cvt_pk_bf16_f32 {v(out+2*ab)}, {v(A_)}, {v(A_+1)}')
            a(f'v_cvt_pk_bf16_f32 {v(out+2*ab+1)}, {v(A_+2)}, {v(A_+3)}')
        a(f'buffer_store_dwordx4 {v(out,4)}, {v(vL16)}, {s(SRD_WS,4)}, {s(sSrc)} offen offset:{i*1024}{sc}')
    return va.hi

def phase4(a, sc=''):
    sa = Alloc('s', S_FREE, 100)
    va = Alloc('v', 1, 256)
    A = tile80_addr(a, sa, va)
    sT, sKh, sTau = A['sT'], A['sKh'], A['sTau']
    acc = [va(4, 4) for _ in range(5)]
    fD = [va(4, 4) for _ in range(24)]
    fW = [[va(4, 4) for n in range(5)] for _ in range(2)]
    hP, h4, bP, b4 = va(4, 4), va(2), va(4, 4), va(2)
    vWo = [va() for _ in range(4)]; vWt = [va() for _ in range(4)]; vW4 = [va() for _ in range(4)]
    t1 = va()
    sSrc, sDst, sTmp, sD = sa(), sa(), sa(), sa()
    a(f's_mul_i32 {s(sSrc)}, {s(sKh)}, 24')
    a(f's_add_u32 {s(sSrc)}, {s(sSrc)}, {s(sTau)}')
    a(f's_mul_i32 {s(sSrc)}, {s(sSrc)}, 5120')
    a(f's_mul_i32 {s(sT)}, {s(S_J8)}, 245760')
    a(f's_add_u32 {s(sSrc)}, {s(sSrc)}, {s(sT)}')
    a(f's_add_u32 {s(sSrc)}, {s(sSrc)}, {WS_W2}')
    a(f's_mul_i32 {s(sDst)}, {s(S_W)}, 5120')
    a(f's_mul_i32 {s(sD)}, {s(A["sTile"])}, 49152')
    a(f's_mul_i32 {s(sT)}, {s(sKh)}, 24576')
    a(f's_add_u32 {s(sD)}, {s(sD)}, {s(sT)}')
    a(f's_add_u32 {s(sD)}, {s(sD)}, {WS_DF}')
    def stage_dma(st):
        dma5(a, A['vL16'], SRD_WS, sSrc, sDst, sTmp, sc=sc)
        a(f's_add_u32 {s(sSrc)}, {s(sSrc)}, 20480')
        if st == 3: a(f's_sub_u32 {s(sDst)}, {s(sDst)}, {3*SLOT}')
        else: a(f's_add_u32 {s(sDst)}, {s(sDst)}, {SLOT}')
    def hid_loads(st):
        for k in range(4):
            a(f'buffer_load_dwordx4 {v(fD[4*st+k],4)}, {v(A["vL16"])}, {s(SRD_WS,4)}, {s(sD)} offen offset:{k*1024}{sc}')
        a(f's_add_u32 {s(sD)}, {s(sD)}, 4096')
    srd(a, SRD_A, S_PB2, 640 * 2)
    a(f'buffer_load_dwordx4 {v(hP,4)}, {v(A["vL16"])}, {s(SRD_WS,4)}, {s(A["sHP"])} offen{sc}')
    a(f'buffer_load_dwordx2 {v(h4,2)}, {v(A["vH4"])}, {s(SRD_WS,4)}, {s(A["sH4"])} offen{sc}')
    a(f'v_lshrrev_b32 {v(t1)}, 4, v0')
    a(f'v_lshlrev_b32 {v(A["t0"])}, 4, {v(t1)}')
    a(f'v_lshlrev_b32 {v(t1)}, 3, {v(t1)}')
    a(f's_lshl_b32 {s(sT)}, {s(A["sBeta"])}, 6')
    a(f'buffer_load_dwordx4 {v(bP,4)}, {v(A["t0"])}, {s(SRD_A,4)}, {s(sT)} offen')
    a(f's_lshl_b32 {s(sT)}, {s(A["sB4"])}, 5')
    a(f'buffer_load_dwordx2 {v(b4,2)}, {v(t1)}, {s(SRD_A,4)}, {s(sT)} offen')
    for st in range(4):
        stage_dma(st); hid_loads(st)
    hid_loads(4); hid_loads(5)
    for q in range(4):
        base = q * SLOT
        a(f's_mul_i32 {s(sT)}, {s(sKh)}, {20480+2048}')
        a(f's_add_u32 {s(sT)}, {s(sT)}, {base}')
        a(f'v_add_u32 {v(vWo[q])}, {s(sT)}, {v(A["vL16"])}')
        a(f's_mul_i32 {s(sT)}, {s(sKh)}, {20480-2048}')
        a(f's_add_u32 {s(sT)}, {s(sT)}, {base+2048}')
        a(f'v_add_u32 {v(vWt[q])}, {s(sT)}, {v(A["vL16"])}')
        a(f's_mul_i32 {s(sT)}, {s(sKh)}, 20480')
        a(f's_add_u32 {s(sT)}, {s(sT)}, {base+4096}')
        a(f'v_add_u32 {v(vW4[q])}, {s(sT)}, {v(A["vL16"])}')
    srd(a, SRD_B, S_POUT, 2048 * 1280)
    def rd(k):
        st, kk, q = k % 2, k % 4, (k // 4) % 4
        a(f'ds_read_b128 {v(fW[st][0],4)}, {v(vWo[q])} offset:{kk*5120}')
        a(f'ds_read_b128 {v(fW[st][1],4)}, {v(vWo[q])} offset:{kk*5120+1024}')
        a(f'ds_read_b128 {v(fW[st][2],4)}, {v(vWt[q])} offset:{kk*5120}')
        a(f'ds_read_b128 {v(fW[st][3],4)}, {v(vWt[q])} offset:{kk*5120+1024}')
        a(f'ds_read_b128 {v(fW[st][4],4)}, {v(vW4[q])} offset:{kk*5120}')
    seq = []
    for st in range(4): seq += [('s', st)] * 5 + [('h', 4 * st + k) for k in range(4)]
    seq += [('h', 16 + k) for k in range(8)]
    def outstanding_after(tag):
        idx = max(i for i, t in enumerate(seq) if t == tag)
        return len(seq) - 1 - idx
    for k in range(24):
        st = k // 4
        if k % 4 == 0:
            a(f's_waitcnt vmcnt({outstanding_after(("s", st))}) lgkmcnt(0)')
            a(f's_barrier')
            rd(k)
            if st in (1, 2):
                stage_dma(st + 3)
                seq.extend([('s', st + 3)] * 5)
            if k > 0:
                for n in range(5):
                    a(f'{MFMA} {v(acc[n],4)}, {v(fW[(k-1)%2][n],4)}, {v(fD[k-1],4)}, {v(acc[n],4)}')
        if k % 4 != 3:
            rd(k + 1)
            a(f's_waitcnt vmcnt({outstanding_after(("h", k))}) lgkmcnt(5)')
            for n in range(5):
                c = '0' if k == 0 else v(acc[n], 4)
                a(f'{MFMA} {v(acc[n],4)}, {v(fW[k%2][n],4)}, {v(fD[k],4)}, {c}')
        else:
            a(f's_waitcnt vmcnt({outstanding_after(("h", k))})')
    a(f's_waitcnt lgkmcnt(0)')
    for n in range(5):
        a(f'{MFMA} {v(acc[n],4)}, {v(fW[1][n],4)}, {v(fD[23],4)}, {v(acc[n],4)}')
    exchange(a, A, acc, fW[0][0], 2 * SLOT)
    own = [acc[0] + r for r in range(4)] + [acc[1] + r for r in range(4)]
    add_bf16_pairs(a, own, bP, t1)
    add_bf16_pairs(a, own, hP, t1)
    for i in range(4):
        a(f'v_cvt_pk_bf16_f32 {v(fD[0]+i)}, {v(own[2*i])}, {v(own[2*i+1])}')
    a(f'buffer_store_dwordx4 {v(fD[0],4)}, {v(A["vRowP"])}, {s(SRD_B,4)}, {s(A["sRowP"])} offen')
    l4 = a.newlabel('p4t4')
    a(f's_cmp_eq_u32 {s(sKh)}, 1')
    a(f's_cbranch_scc1 {l4}')
    o4 = [acc[4] + r for r in range(4)]
    add_bf16_pairs(a, o4, b4, t1)
    add_bf16_pairs(a, o4, h4, t1)
    for i in range(2):
        a(f'v_cvt_pk_bf16_f32 {v(fD[1]+i)}, {v(o4[2*i])}, {v(o4[2*i+1])}')
    a(f'buffer_store_dwordx2 {v(fD[1],2)}, {v(A["vRow4"])}, {s(SRD_B,4)}, {s(A["sRow4"])} offen')
    a.label(l4)
    return va.hi

def kernel_desc(name, nv):
    nv = (nv + 7) // 8 * 8
    return f'''.p2align 6
.amdhsa_kernel {name}
  .amdhsa_next_free_vgpr {nv}
  .amdhsa_next_free_sgpr 102
  .amdhsa_accum_offset {nv}
  .amdhsa_group_segment_fixed_size 0
  .amdhsa_kernarg_size 88
  .amdhsa_user_sgpr_count 2
  .amdhsa_user_sgpr_kernarg_segment_ptr 1
  .amdhsa_system_sgpr_workgroup_id_x 1
.end_amdhsa_kernel
'''

def build_multi():
    phases = [('p1_kernel', phase1, 156288), ('p2_kernel', phase2, 102400 + 24576),
              ('p3_kernel', phase3, 122880 + 6144), ('p4_kernel', phase4, 163840)]
    head = '; generated by gen/gen.py (multi-kernel build)\n'
    for n, f, lds in phases:
        head += f'; @launch kernel={n} grid=(256,1,1) block=(512,1,1) lds={lds}\n'
    head += '.amdgcn_target "amdgcn-amd-amdhsa--gfx950"\n.text\n'
    body, desc = '', '.section .rodata,"a"\n'
    a = Asm()
    for n, f, lds in phases:
        a(f'.globl {n}\n.p2align 8\n.type {n},@function')
        a.label(n)
        end = a.newlabel('end')
        prologue(a, end)
        nv = f(a)
        a.label(end)
        a('s_endpgm')
        desc += kernel_desc(n, nv)
        print(n, 'vgprs', nv, file=sys.stderr)
    print('nops inserted', a.pad(), file=sys.stderr)
    return head + a.text() + desc

if __name__ == '__main__':
    out = sys.argv[1] if len(sys.argv) > 1 else f'cdna_kernels/{NAME}.s'
    open(out, 'w').write(build_multi())
```

```python
import sys, os, struct, math
sys.path.insert(0, os.path.dirname(os.path.abspath(__file__)))
from asmlib import Asm, Alloc, v, s

NAME = 'sequential_preLN__sliding_local_dilated__dense_activation_squared_relu__prompt'
def env(n, d): return int(os.environ.get(n, d))
STAMPS = env('STAMPS', 0)
ROT    = env('ROT', 1)
NPRE   = env('NPRE', 0)
XPRE   = env('XPRE', 0)
LPRE   = env('LPRE', 0)
FORCE_SLOW = env('SLOW', 0)
PRE1   = env('PRE1', 0)
PRE2   = env('PRE2', 0)
THR    = env('THR', 0)
D2, D3, D4 = env('D2', 5), env('D3', 5), env('D4', 5)
PRIO   = env('PRIO', 3)

WS_OF  = 0
WS_HF  = 4 << 20
WS_DF  = 8 << 20
WS_ST  = 16 << 20
WS_WO  = 20 << 20
WS_W1  = 22 << 20
WS_W2  = 24 << 20
WS_JUNK = 27 << 20
WS_FL  = 28 << 20
FL_HELLO, FL_WO, FL_W1, FL_W2 = WS_FL + 1024, WS_FL + 4096, WS_FL + 5120, WS_FL + 8192
FL_1, FL_2, FL_3 = WS_FL + 16384, WS_FL + 32768, WS_FL + 49152
WS_TS = 29 << 20
WS_SIZE = 32 << 20

WROW  = 1056
XIMG  = 32 * WROW
SLOT  = XIMG + 10240
L_STAGE = 3 * SLOT
L_R1  = 40960
L_STAT = 143360
L_SAME = L_STAT + 640
L_CS, L_B1 = 0, 384
DROW = 488
LDS_SIZE = 163840
SPIN = 1 << 16

S_PX, S_PWQKV, S_PWO, S_PBX, S_PW1, S_PB1, S_PW2, S_PB2 = 16, 18, 20, 22, 24, 26, 28, 30
S_POUT, S_PDBG, S_PWS = 32, 34, 36
SRD_WS, SRD_A, SRD_B, SRD_C = 4, 8, 12, 48
S_W, S_XCD, S_R, S_C, S_J, S_C64, S_J8, S_TAG, S_SAME, S_CNT = 38, 39, 40, 41, 42, 43, 44, 45, 46, 47
S_FREE = 52
S_LIM = 96
VLIM = 167 if STAMPS else 168
VST = 167
MFMA = 'v_mfma_f32_16x16x32_bf16'

class St:
    n = 0
def stamp(a, real=False, sidx=None, cnt=1):
    if not STAMPS: return
    a(f'{"s_memrealtime" if real else "s_memtime"} s[98:99]')
    a('s_waitcnt lgkmcnt(0)')
    if sidx is None:
        a(f'v_writelane_b32 v{VST}, s98, {St.n}')
    else:
        a(f's_add_u32 m0, {s(sidx)}, {St.n}')
        a(f'v_writelane_b32 v{VST}, s98, m0')
    St.n += cnt
    assert St.n <= 64
def stamps_flush(a):
    if not STAMPS: return
    a('s_waitcnt vmcnt(0)')
    stamp(a); stamp(a, True)
    a(f'v_writelane_b32 v{VST}, {St.n}, 63')
    a(f's_mul_i32 s3, s2, 12')
    a(f's_add_u32 s3, s3, {s(S_W)}')
    a(f's_lshl_b32 s3, s3, 8')
    a(f's_add_u32 s3, s3, {WS_TS}')
    a('s_mov_b64 exec, -1')
    a('v_lshlrev_b32 v1, 2, v0')
    a(f'buffer_store_dword v{VST}, v1, {s(SRD_WS,4)}, s3 offen')

def srd(a, dst, ptr, size):
    a(f's_mov_b32 {s(dst)}, {s(ptr)}')
    a(f's_and_b32 {s(dst+1)}, {s(ptr+1)}, 0xffff')
    a(f's_mov_b32 {s(dst+2)}, {size}')
    a(f's_mov_b32 {s(dst+3)}, 0x00020000')

def bf16r(a, x):
    a(f'v_cvt_pk_bf16_f32 {v(x)}, {v(x)}, {v(x)}')
    a(f'v_lshlrev_b32 {v(x)}, 16, {v(x)}')

def xg_reduce(a, xs, tmps, op):
    for sw in ('v_permlane32_swap_b32', 'v_permlane16_swap_b32'):
        for x, t in zip(xs, tmps): a(f'v_mov_b32 {v(t)}, {v(x)}')
        for x, t in zip(xs, tmps): a(f'{sw} {v(x)}, {v(t)}')
        for x, t in zip(xs, tmps): a(f'{op} {v(x)}, {v(x)}, {v(t)}')

def ln_stats(vsum, vsq, t0):
    L = []
    a = L.append
    inv = 0x3ACCCCCD
    a(f'v_mul_f32 {v(vsum)}, {hex(inv)}, {v(vsum)}')
    a(f'v_mul_f32 {v(vsq)}, {hex(inv)}, {v(vsq)}')
    a(f'v_fma_f32 {v(vsq)}, -{v(vsum)}, {v(vsum)}, {v(vsq)}')
    a(f'v_max_f32 {v(vsq)}, 0, {v(vsq)}')
    bf16r(a, vsq)
    a(f'v_add_f32 {v(vsq)}, 0x3727C5AC, {v(vsq)}')
    bf16r(a, vsq)
    a(f'v_sqrt_f32 {v(vsq)}, {v(vsq)}')
    bf16r(a, vsum)
    bf16r(a, vsq)
    a(f'v_rcp_f32 {v(t0)}, {v(vsq)}')
    a(f'v_mul_f32 {v(vsq)}, {v(vsum)}, {v(t0)}')
    a(f'v_mov_b32 {v(vsum)}, {v(t0)}')
    return L

DEFER = []
def dual(a, lines):
    ls, lj = a.newlabel('slow'), a.newlabel('join')
    a(f's_cmp_eq_u32 {s(S_SAME)}, 0')
    a(f's_cbranch_scc1 {ls}')
    for x in lines: a(x.replace('@', ''))
    a.label(lj)
    DEFER.append((ls, lj, [x.replace('@', ' sc1') for x in lines]))

def publish(a, vT, sFlag):
    a(f'v_mov_b32 {v(vT)}, {s(S_TAG)}')
    a(f's_mov_b64 exec, 1')
    a(f's_waitcnt vmcnt(0)')
    dual(a, [f'buffer_store_dword {v(vT)}, off, {s(SRD_WS,4)}, {s(sFlag)}@'])
    a(f's_mov_b64 exec, -1')

def poll(a, vF, vOff, sOff):
    lp, ld = a.newlabel('poll'), a.newlabel('polld')
    a(f's_mov_b32 {s(S_CNT)}, {SPIN}')
    a.label(lp)
    a(f'buffer_load_dword {v(vF)}, {v(vOff)}, {s(SRD_WS,4)}, {s(sOff)} offen sc1')
    a(f's_sub_u32 {s(S_CNT)}, {s(S_CNT)}, 1')
    a(f's_cbranch_scc1 {ld}')
    a(f's_waitcnt vmcnt(0)')
    a(f'v_cmp_ne_u32 vcc, {s(S_TAG)}, {v(vF)}')
    a(f's_cmp_lg_u64 vcc, 0')
    a(f's_cbranch_scc1 {lp}')
    a.label(ld)

def rot_start(a, sT, sT2):
    if ROT == 2:
        a(f's_lshr_b32 {s(sT)}, {s(S_R)}, 3')
        a(f's_xor_b32 {s(sT)}, {s(sT)}, {s(S_J8)}')
        a(f's_and_b32 {s(sT)}, {s(sT)}, 1')
        a(f's_mul_i32 {s(sT)}, {s(sT)}, 5')
        a(f's_add_u32 {s(sT)}, {s(sT)}, {s(S_XCD)}')
        a(f's_sub_u32 {s(sT2)}, {s(sT)}, 10')
        a(f's_cmp_ge_u32 {s(sT)}, 10')
        a(f's_cselect_b32 {s(sT)}, {s(sT2)}, {s(sT)}')
    elif ROT == 1:
        a(f's_mov_b32 {s(sT)}, {s(S_XCD)}')
    else:
        a(f's_mov_b32 {s(sT)}, 0')

def nonce_to_tag(a, vN):
    a(f'v_readfirstlane_b32 {s(S_TAG)}, {v(vN)}')
    a(f's_and_b32 {s(S_TAG)}, {s(S_TAG)}, 0xfffffff8')
    a(f's_add_u32 {s(S_TAG)}, {s(S_TAG)}, 8')

def loader(a):
    sa = Alloc('s', S_FREE, S_LIM)
    va = Alloc('v', 1, VLIM)
    sL, sT, sT2, sI, sOffW, sOffX, sMW, sMX, sSlot, sPre = [sa() for _ in range(10)]
    sXm = sa(2); sTm = sa(2)
    vL16 = va()
    vW = [va() for _ in range(8)]
    vX = [va() for _ in range(3)]
    vTh, vN, vJ, vF, vFo = va(), va(), va(), va(), va()
    t0, t1, t2, t3 = va(), va(), va(), va()
    WMASK = '0x3fffffff'
    if PRIO: a(f's_setprio {PRIO}')
    a(f's_sub_u32 {s(sL)}, {s(S_W)}, 8')
    a(f'v_and_b32 {v(t0)}, 31, v0')
    a(f'v_lshrrev_b32 {v(t1)}, 5, v0')
    a(f'v_mul_u32_u24 {v(t2)}, 26, {v(t0)}')
    a(f'v_lshrrev_b32 {v(t2)}, 8, {v(t2)}')
    a(f'v_mul_u32_u24 {v(t2)}, 1120, {v(t2)}')
    a(f'v_lshl_add_u32 {v(t2)}, {v(t0)}, 4, {v(t2)}')
    a(f'v_mul_u32_u24 {v(t3)}, {32*3840}, {v(t1)}')
    a(f's_mul_i32 {s(sT)}, {s(S_J8)}, 160')
    a(f's_mul_i32 {s(sT2)}, {s(sL)}, {8*3840}')
    a(f's_add_u32 {s(sT)}, {s(sT)}, {s(sT2)}')
    a(f'v_add3_u32 {v(vW[0])}, {v(t2)}, {v(t3)}, {s(sT)}')
    for i in range(1, 8):
        a(f'v_add_u32 {v(vW[i])}, {i*3840 - (i&3)*WROW}, {v(vW[0])}')
    a(f'v_mul_u32_u24 {v(t1)}, 3840, {v(t1)}')
    a(f'v_lshl_add_u32 {v(t1)}, {v(t0)}, 7, {v(t1)}')
    a(f's_mul_i32 {s(sT)}, {s(S_R)}, 7680')
    a(f'v_add_u32 {v(vTh)}, {s(sT)}, {v(t1)}')
    rot_start(a, sT, sT2)
    a(f's_mul_i32 {s(sOffW)}, {s(sT)}, {64*3840}')
    a(f's_lshl_b32 {s(sOffX)}, {s(sT)}, 7')
    a(f's_lshr_b32 {s(sMW)}, {s(sL)}, 1')
    a(f's_lshl_b32 {s(sMW)}, {s(sMW)}, 2')
    a(f's_and_b32 {s(sT2)}, {s(sL)}, 1')
    a(f's_add_u32 {s(sMW)}, {s(sMW)}, {s(sT2)}')
    a(f's_mul_i32 {s(sMW)}, {s(sMW)}, {4*WROW}')
    a(f's_mul_i32 {s(sMX)}, {s(sL)}, 2560')
    a(f's_add_u32 {s(sMX)}, {s(sMX)}, {XIMG}')
    a(f's_mov_b32 {s(sSlot)}, 0')
    a(f'v_lshlrev_b32 {v(vL16)}, 4, v0')
    if NPRE:
        a(f's_add_u32 {s(sPre)}, {s(sT)}, {s(sL)}')
        a(f's_sub_u32 {s(sT2)}, {s(sPre)}, 10')
        a(f's_cmp_ge_u32 {s(sPre)}, 10')
        a(f's_cselect_b32 {s(sPre)}, {s(sT2)}, {s(sPre)}')
        a(f's_mul_i32 {s(sPre)}, {s(sPre)}, {64*3840}')
    a(f's_waitcnt lgkmcnt(0)')
    srd(a, SRD_A, S_PWQKV, 640 * 3840)
    srd(a, SRD_B, S_PX, 2048 * 1280)
    srd(a, SRD_WS, S_PWS, WS_SIZE)
    if NPRE:
        lnp = a.newlabel('np')
        a(f's_cmp_ge_u32 {s(sL)}, {NPRE}')
        a(f's_cbranch_scc1 {lnp}')
        a(f's_mov_b32 exec_lo, {WMASK}')
        a(f's_mov_b32 exec_hi, {WMASK}')
        a(f'buffer_load_dword {v(vJ)}, {v(vTh)}, {s(SRD_A,4)}, {s(sPre)} offen')
        a(f's_mov_b64 exec, -1')
        a.label(lnp)
    a(f's_mov_b32 {s(sT)}, {WS_FL}')
    a(f'buffer_load_dword {v(vN)}, off, {s(SRD_WS,4)}, {s(sT)} sc1')

    def xpattern():
        a(f's_mul_i32 {s(sT)}, {s(sL)}, 20')
        a(f's_lshl_b32 {s(sT2)}, {s(S_C64)}, 6')
        for i in range(3):
            a(f'v_lshrrev_b32 {v(t0)}, 3, v0')
            a(f'v_add3_u32 {v(t0)}, {v(t0)}, {s(sT)}, {8*i}')
            a(f'v_and_b32 {v(t1)}, 31, {v(t0)}')
            a(f'v_lshrrev_b32 {v(t2)}, 5, {v(t0)}')
            a(f'v_lshl_add_u32 {v(t1)}, {v(t1)}, 1, {v(t2)}')
            a(f'v_and_b32 {v(t2)}, 7, {v(t0)}')
            a(f'v_lshlrev_b32 {v(t2)}, 1, {v(t2)}')
            a(f'v_bfe_u32 {v(t3)}, {v(t0)}, 3, 1')
            a(f'v_add3_u32 {v(t2)}, {v(t2)}, {v(t3)}, -16')
            a(f'v_cmp_le_u32 vcc, 64, {v(t0)}')
            a(f'v_cndmask_b32 {v(t1)}, {v(t1)}, {v(t2)}, vcc')
            a(f'v_add_u32 {v(t1)}, {s(sT2)}, {v(t1)}')
            a(f'v_max_i32 {v(t1)}, 0, {v(t1)}')
            a(f'v_mul_u32_u24 {v(t1)}, 1280, {v(t1)}')
            a(f'v_bfe_u32 {v(t2)}, {v(t0)}, 1, 3')
            a(f'v_and_b32 {v(t3)}, 7, v0')
            a(f'v_xor_b32 {v(t2)}, {v(t2)}, {v(t3)}')
            a(f'v_lshl_add_u32 {v(vX[i])}, {v(t2)}, 4, {v(t1)}')
        a(f's_mov_b32 {s(sXm)}, -1')
        a(f's_cmp_eq_u32 {s(sL)}, 3')
        a(f's_cselect_b32 {s(sXm+1)}, 0xffffff00, -1')
    def chunk_dma():
        P = []
        P.append([f's_add_u32 m0, {s(sSlot)}, {s(sMW)}', f's_mov_b32 exec_lo, {WMASK}', f's_mov_b32 exec_hi, {WMASK}'])
        for i in range(8):
            p = []
            if i == 4: p += [f's_add_u32 m0, m0, {8*WROW}', 's_nop 0']
            p.append(f'buffer_load_dwordx4 {v(vW[i])}, {s(SRD_A,4)}, {s(sOffW)} offen offset:{(i&3)*WROW} lds')
            P.append(p)
        P.append([f's_add_u32 m0, {s(sSlot)}, {s(sMX)}', f's_mov_b64 exec, {s(sXm,2)}',
                  f'buffer_load_dwordx4 {v(vX[0])}, {s(SRD_B,4)}, {s(sOffX)} offen lds'])
        P.append([f's_add_u32 m0, m0, 1024', f's_mov_b64 exec, -1',
                  f'buffer_load_dwordx4 {v(vX[1])}, {s(SRD_B,4)}, {s(sOffX)} offen lds'])
        P.append([f's_add_u32 m0, m0, 1024', f's_mov_b32 exec_hi, 0',
                  f'buffer_load_dwordx4 {v(vX[2])}, {s(SRD_B,4)}, {s(sOffX)} offen lds', f's_mov_b64 exec, -1'])
        P.append([f's_add_u32 {s(sOffW)}, {s(sOffW)}, {64*3840}',
                  f's_add_u32 {s(sOffX)}, {s(sOffX)}, 128',
                  f's_cmp_eq_u32 {s(sOffX)}, 1280',
                  f's_cselect_b32 {s(sOffW)}, 0, {s(sOffW)}',
                  f's_cselect_b32 {s(sOffX)}, 0, {s(sOffX)}',
                  f's_add_u32 {s(sSlot)}, {s(sSlot)}, {SLOT}',
                  f's_cmp_eq_u32 {s(sSlot)}, {3*SLOT}',
                  f's_cselect_b32 {s(sSlot)}, 0, {s(sSlot)}'])
        return P
    NCH = 11
    stamp(a)
    for c in range(2):
        for q, p in enumerate(chunk_dma()):
            if c == 0 and q == 9:
                a(f's_mov_b64 exec, -1')
                xpattern()
            for x in p: a(x)
    if LPRE:
        rot_start(a, sPre, sT2)
        a(f's_add_u32 {s(sPre)}, {s(sPre)}, {LPRE}')
        a(f's_sub_u32 {s(sT2)}, {s(sPre)}, 10')
        a(f's_cmp_ge_u32 {s(sPre)}, 10')
        a(f's_cselect_b32 {s(sPre)}, {s(sT2)}, {s(sPre)}')
        a(f's_mul_i32 {s(sPre)}, {s(sPre)}, {64*3840}')
        a(f's_and_b32 {s(sT)}, {s(sL)}, 1')
        a(f's_mul_i32 {s(sT)}, {s(sT)}, 15')
        a(f's_lshr_b32 {s(sT2)}, {s(sL)}, 1')
        a(f's_lshl_b32 {s(sT2)}, {s(sT2)}, 5')
        a(f's_add_u32 {s(sT)}, {s(sT)}, {s(sT2)}')
        a(f's_mov_b64 {s(sTm,2)}, 0x7fff')
        a(f's_lshl_b64 {s(sTm,2)}, {s(sTm,2)}, {s(sT)}')
    stamp(a)
    sBase, sG, sJs, sRS, sMul, sPPR, sCol, sLR, sCb0, sCb4, sFlag = [sa() for _ in range(11)]
    sD = [sa(), sa(), sa()]
    l_w1, l_w2, l_80, l_go = a.newlabel('cw1'), a.newlabel('cw2'), a.newlabel('c80'), a.newlabel('cgo')
    a(f's_cmp_ge_u32 s2, 136')
    a(f's_cbranch_scc1 {l_w1}')
    a(f's_and_b32 {s(sCol)}, s2, 1')
    a(f's_lshl2_add_u32 {s(sCol)}, {s(sCol)}, {s(sL)}')
    a(f's_cmp_ge_u32 s2, 40')
    a(f's_cbranch_scc1 {l_w2}')
    srd(a, SRD_C, S_PWO, 640 * 1280)
    a(f's_lshr_b32 {s(sT)}, s2, 1')
    a(f's_cmp_ge_u32 {s(sT)}, 10')
    a(f's_cselect_b32 {s(sT2)}, 10, 0')
    a(f's_cselect_b32 {s(sBase)}, 320, 0')
    a(f's_sub_u32 {s(sT2)}, {s(sT)}, {s(sT2)}')
    a(f's_mul_i32 {s(sG)}, {s(sT2)}, 40')
    a(f's_mul_i32 {s(sJs)}, {s(sT2)}, 160')
    a(f's_sub_u32 {s(sJs)}, {s(sJs)}, {8*160-16}')
    a(f's_cmp_lt_u32 {s(sT2)}, 8')
    a(f's_cselect_b32 {s(sG)}, {s(sG)}, {s(sJs)}')
    a(f's_add_u32 {s(sBase)}, {s(sBase)}, {s(sG)}')
    a(f's_cmp_lt_u32 {s(sT2)}, 8')
    a(f's_cselect_b32 {s(sG)}, 4, 40')
    a(f's_mov_b32 {s(sJs)}, 20')
    a(f's_mul_i32 {s(sD[0])}, {s(sCol)}, 102400')
    a(f's_add_u32 {s(sD[0])}, {s(sD[0])}, {WS_WO}')
    a(f's_lshl_b32 {s(sFlag)}, {s(sCol)}, 7')
    a(f's_add_u32 {s(sFlag)}, {s(sFlag)}, {FL_WO}')
    a(f's_branch {l_80}')
    a.label(l_w2)
    srd(a, SRD_C, S_PW2, 1536 * 1280)
    a(f's_sub_u32 {s(sT)}, s2, 40')
    a(f's_lshr_b32 {s(sT)}, {s(sT)}, 1')
    a(f's_lshl_b32 {s(sBase)}, {s(sT)}, 5')
    a(f's_mov_b32 {s(sG)}, 8')
    a(f's_mov_b32 {s(sJs)}, 4')
    a(f's_mul_i32 {s(sD[0])}, {s(sCol)}, 245760')
    a(f's_add_u32 {s(sD[0])}, {s(sD[0])}, {WS_W2}')
    a(f's_lshl_b32 {s(sFlag)}, {s(sCol)}, 8')
    a(f's_add_u32 {s(sFlag)}, {s(sFlag)}, {FL_W2}')
    a.label(l_80)
    a(f's_lshl2_add_u32 {s(sFlag)}, {s(sT)}, {s(sFlag)}')
    a(f's_mul_i32 {s(sT)}, {s(sT)}, 5120')
    a(f's_add_u32 {s(sD[0])}, {s(sD[0])}, {s(sT)}')
    a(f's_add_u32 {s(sD[1])}, {s(sD[0])}, 2048')
    a(f's_add_u32 {s(sD[2])}, {s(sD[0])}, 4096')
    a(f's_bitcmp1_b32 {s(sCol)}, 0')
    a(f's_cselect_b32 {s(sCb0)}, 32, 0')
    a(f's_cselect_b32 {s(sCb4)}, 0, 128')
    a(f's_mul_i32 {s(sCol)}, {s(sCol)}, 160')
    a(f's_mov_b32 {s(sRS)}, 1280')
    a(f's_mov_b32 {s(sMul)}, 6554')
    a(f's_mov_b32 {s(sPPR)}, 10')
    a(f's_mov_b32 {s(sLR)}, 160')
    a(f's_branch {l_go}')
    a.label(l_w1)
    srd(a, SRD_C, S_PW1, 640 * 3072)
    a(f's_sub_u32 {s(sT2)}, s2, 136')
    a(f's_mul_i32 {s(sT)}, {s(sT2)}, 43')
    a(f's_lshr_b32 {s(sT)}, {s(sT)}, 8')
    a(f's_mul_i32 {s(sCol)}, {s(sT)}, 6')
    a(f's_sub_u32 {s(sCol)}, {s(sT2)}, {s(sCol)}')
    a(f's_lshl2_add_u32 {s(sCol)}, {s(sCol)}, {s(sL)}')
    a(f's_lshl_b32 {s(sBase)}, {s(sT)}, 5')
    a(f's_mul_i32 {s(sFlag)}, {s(sCol)}, 80')
    a(f's_lshl2_add_u32 {s(sFlag)}, {s(sT)}, {s(sFlag)}')
    a(f's_add_u32 {s(sFlag)}, {s(sFlag)}, {FL_W1}')
    a(f's_mul_i32 {s(sT)}, {s(sT)}, 6144')
    a(f's_add_u32 {s(sT)}, {s(sT)}, {WS_W1}')
    for bl in range(2):
        a(f's_lshl1_add_u32 {s(sT2)}, {s(sCol)}, {bl}')
        a(f's_mul_i32 {s(sG)}, {s(sT2)}, 86')
        a(f's_lshr_b32 {s(sG)}, {s(sG)}, 8')
        a(f's_mul_i32 {s(sD[bl])}, {s(sG)}, {122880 - 3*2048}')
        a(f's_lshl_b32 {s(sT2)}, {s(sT2)}, 11')
        a(f's_add_u32 {s(sD[bl])}, {s(sD[bl])}, {s(sT2)}')
        a(f's_add_u32 {s(sD[bl])}, {s(sD[bl])}, {s(sT)}')
    a(f's_lshl2_add_u32 {s(sD[2])}, s2, {s(sL)}')
    a(f's_lshl_b32 {s(sD[2])}, {s(sD[2])}, 10')
    a(f's_add_u32 {s(sD[2])}, {s(sD[2])}, {WS_JUNK - 136*4096}')
    a(f's_mov_b32 {s(sG)}, 8')
    a(f's_mov_b32 {s(sJs)}, 4')
    a(f's_mov_b32 {s(sCb0)}, 0')
    a(f's_mov_b32 {s(sCb4)}, 0')
    a(f's_lshl_b32 {s(sCol)}, {s(sCol)}, 7')
    a(f's_mov_b32 {s(sRS)}, 3072')
    a(f's_mov_b32 {s(sMul)}, 8192')
    a(f's_mov_b32 {s(sPPR)}, 8')
    a(f's_mov_b32 {s(sLR)}, 128')
    a.label(l_go)
    a(f's_mul_i32 {s(sBase)}, {s(sBase)}, {s(sRS)}')
    a(f's_add_u32 {s(sBase)}, {s(sBase)}, {s(sCol)}')
    a(f's_mul_i32 {s(sT)}, {s(sL)}, 5120')
    a(f's_add_u32 {s(sCol)}, {s(sT)}, {L_STAGE}')
    for i in range(5):
        a(f'v_add_u32 {v(t0)}, {64*i}, v0')
        a(f'v_mul_lo_u32 {v(t1)}, {v(t0)}, {s(sMul)}')
        a(f'v_lshrrev_b32 {v(t1)}, 16, {v(t1)}')
        a(f'v_mul_lo_u32 {v(t2)}, {v(t1)}, {s(sPPR)}')
        a(f'v_sub_u32 {v(t0)}, {v(t0)}, {v(t2)}')
        a(f'v_min_u32 {v(t1)}, 31, {v(t1)}')
        a(f'v_lshrrev_b32 {v(t2)}, 3, {v(t1)}')
        a(f'v_mul_lo_u32 {v(t2)}, {v(t2)}, {s(sG)}')
        a(f'v_bfe_u32 {v(t3)}, {v(t1)}, 2, 1')
        a(f'v_mul_lo_u32 {v(t3)}, {v(t3)}, {s(sJs)}')
        a(f'v_and_b32 {v(t1)}, 3, {v(t1)}')
        a(f'v_add3_u32 {v(t1)}, {v(t1)}, {v(t2)}, {v(t3)}')
        a(f'v_mul_lo_u32 {v(t1)}, {v(t1)}, {s(sRS)}')
        a(f's_add_u32 m0, {s(sCol)}, {1024*i}')
        a(f'v_lshl_add_u32 {v(t0)}, {v(t0)}, 4, {v(t1)}')
        a(f'buffer_load_dwordx4 {v(t0)}, {s(SRD_C,4)}, {s(sBase)} offen lds')
    fS = [[va(4, 4) for st in range(2)] for tl in range(2)]
    accG = [va(4, 4) for _ in range(2)]; accS = [va(4, 4) for _ in range(2)]
    vOne = va(4, 4)
    vS = [va(), va()]
    F = va(20, 4)
    sFo, sHello = sa(), sa()
    a(f'v_and_b32 {v(t0)}, 15, v0')
    a(f'v_lshrrev_b32 {v(t1)}, 4, v0')
    a(f'v_lshrrev_b32 {v(t2)}, 1, {v(t0)}')
    a(f'v_xor_b32 {v(t2)}, {v(t2)}, {v(t1)}')
    a(f'v_lshlrev_b32 {v(t2)}, 4, {v(t2)}')
    a(f'v_lshl_add_u32 {v(t2)}, {v(t0)}, 7, {v(t2)}')
    a(f's_lshl_b32 {s(sT)}, {s(sL)}, 11')
    a(f's_add_u32 {s(sT)}, {s(sT)}, {XIMG}')
    a(f'v_add_u32 {v(vS[0])}, {s(sT)}, {v(t2)}')
    a(f'v_xor_b32 {v(vS[1])}, 64, {v(vS[0])}')
    for r in range(4):
        a(f'v_mov_b32 {v(vOne+r)}, 0x3f803f80')
        for tl in range(2):
            a(f'v_mov_b32 {v(accG[tl]+r)}, 0')
            a(f'v_mov_b32 {v(accS[tl]+r)}, 0')
    a(f's_lshl_b32 {s(sHello)}, {s(S_C)}, 6')
    a(f's_add_u32 {s(sHello)}, {s(sHello)}, {FL_HELLO}')
    a(f's_mov_b32 {s(sFo)}, {s(sHello)}')
    a(f's_mov_b32 {s(sT2)}, 15')
    a(f's_lshl_b32 {s(sT)}, {s(S_J8)}, 7')
    a(f's_add_u32 {s(sT)}, {s(sT)}, {FL_WO}')
    a(f's_cmp_eq_u32 {s(sL)}, 1')
    a(f's_cselect_b32 {s(sFo)}, {s(sT)}, {s(sFo)}')
    a(f's_cselect_b32 {s(sT2)}, 19, {s(sT2)}')
    a(f's_mul_i32 {s(sT)}, {s(S_J)}, 3')
    a(f's_lshr_b32 {s(sT)}, {s(sT)}, 1')
    a(f's_mul_i32 {s(sT)}, {s(sT)}, 80')
    a(f's_add_u32 {s(sT)}, {s(sT)}, {FL_W1}')
    a(f's_cmp_eq_u32 {s(sL)}, 2')
    a(f's_cselect_b32 {s(sFo)}, {s(sT)}, {s(sFo)}')
    a(f's_cselect_b32 {s(sT2)}, 39, {s(sT2)}')
    a(f's_lshl_b32 {s(sT)}, {s(S_J8)}, 8')
    a(f's_add_u32 {s(sT)}, {s(sT)}, {FL_W2}')
    a(f's_cmp_eq_u32 {s(sL)}, 3')
    a(f's_cselect_b32 {s(sFo)}, {s(sT)}, {s(sFo)}')
    a(f's_cselect_b32 {s(sT2)}, 47, {s(sT2)}')
    a(f'v_min_u32 {v(vFo)}, {s(sT2)}, v0')
    a(f'v_lshlrev_b32 {v(vFo)}, 2, {v(vFo)}')
    a(f's_mov_b32 {s(sI)}, 0')
    sRd = sa()
    a(f's_mov_b32 {s(sRd)}, 0')

    def rng(lo, hi, srcbase_s, ldsbase, sc=' sc1', thr=0):
        n = hi - lo; m = (n + 3) // 4
        a(f's_mul_i32 {s(sT)}, {s(sL)}, {m*1024}')
        if 4 * m != n: a(f's_min_u32 {s(sT)}, {s(sT)}, {(n-m)*1024}')
        a(f's_add_u32 m0, {s(sT)}, {ldsbase + lo*1024}')
        a(f's_add_u32 {s(sT)}, {s(sT)}, {s(srcbase_s)}')
        if lo: a(f's_add_u32 {s(sT)}, {s(sT)}, {lo*1024}')
        for i in range(m):
            if i and i % 4 == 0:
                a(f's_add_u32 m0, m0, 4096')
                a(f's_add_u32 {s(sT)}, {s(sT)}, 4096')
            if thr and i >= thr: a(f's_waitcnt vmcnt({thr-1})')
            a(f'buffer_load_dwordx4 {v(vL16)}, {s(SRD_WS,4)}, {s(sT)} offen offset:{(i%4)*1024}{sc} lds')
        return m

    sWo, sW1, sW2 = sa(), sa(), sa()
    a(f's_mul_i32 {s(sWo)}, {s(S_J8)}, 102400')
    a(f's_add_u32 {s(sWo)}, {s(sWo)}, {WS_WO}')
    a(f's_mul_i32 {s(sW1)}, {s(S_J)}, 122880')
    a(f's_add_u32 {s(sW1)}, {s(sW1)}, {WS_W1}')
    a(f's_mul_i32 {s(sW2)}, {s(S_J8)}, 245760')
    a(f's_add_u32 {s(sW2)}, {s(sW2)}, {WS_W2}')

    def stat_reads():
        l1 = a.newlabel('sr')
        for st in range(2): a(f'ds_read_b128 {v(fS[0][st],4)}, {v(vS[st])}')
        a(f's_cmp_lg_u32 {s(sL)}, 0')
        a(f's_cbranch_scc1 {l1}')
        for st in range(2): a(f'ds_read_b128 {v(fS[1][st],4)}, {v(vS[st])} offset:8192')
        a.label(l1)
    def stat_mfma():
        l1 = a.newlabel('smf')
        a(f's_waitcnt lgkmcnt(0)')
        for tl in range(2):
            if tl:
                a(f's_cmp_lg_u32 {s(sL)}, 0')
                a(f's_cbranch_scc1 {l1}')
            for st in range(2):
                a(f'{MFMA} {v(accG[tl],4)}, {v(fS[tl][st],4)}, {v(fS[tl][st],4)}, {v(accG[tl],4)}')
                a(f'{MFMA} {v(accS[tl],4)}, {v(vOne,4)}, {v(fS[tl][st],4)}, {v(accS[tl],4)}')
        a.label(l1)
        a(f's_add_u32 {s(sRd)}, {s(sRd)}, {SLOT}')
        a(f's_cmp_eq_u32 {s(sRd)}, {3*SLOT}')
        a(f's_cselect_b32 {s(sRd)}, 0, {s(sRd)}')
        a(f's_movk_i32 {s(sT)}, {SLOT//16}'); a(f's_cmovk_i32 {s(sT)}, {(-2*SLOT//16) & 0xffff}'); a(f's_mul_i32 {s(sT)}, {s(sT)}, 16')
        for st in range(2): a(f'v_add_u32 {v(vS[st])}, {s(sT)}, {v(vS[st])}')

    lloop, lw, lev, lback, le2, le4, le6 = [a.newlabel(x) for x in ('ll', 'lw', 'lev', 'lbk', 'le2', 'le4', 'le6')]
    stamp(a)
    a.label(lloop)
    NX = NCH + (1 if LPRE else 0)
    a(f's_lshr_b32 {s(sT)}, 0xb, {s(sI)}')
    a(f's_bitcmp1_b32 {s(sT)}, 0')
    a(f's_cbranch_scc1 {lw}')
    a(f's_waitcnt vmcnt({NX})')
    a.label(lw)
    a(f's_waitcnt vmcnt({NCH + 5})')
    stamp(a, sidx=sI, cnt=8)
    a(f's_barrier')
    stamp(a, sidx=sI, cnt=8)
    stat_reads()
    a(f's_bitcmp0_b32 {s(sI)}, 0')
    a(f's_cbranch_scc1 {lev}')
    a.label(lback)
    if LPRE:
        a(f's_mov_b64 exec, {s(sTm,2)}')
        a(f'buffer_load_dword {v(vJ)}, {v(vTh)}, {s(SRD_A,4)}, {s(sPre)} offen')
        a(f's_add_u32 {s(sPre)}, {s(sPre)}, {64*3840}')
        a(f's_cmp_eq_u32 {s(sPre)}, {640*3840}')
        a(f's_cselect_b32 {s(sPre)}, 0, {s(sPre)}')
    for p in chunk_dma():
        for x in p: a(x)
    stat_mfma()
    a(f's_add_u32 {s(sI)}, {s(sI)}, 1')
    a(f's_cmp_lt_u32 {s(sI)}, 8')
    a(f's_cbranch_scc1 {lloop}')
    lafter = a.newlabel('laft')
    a(f's_branch {lafter}')
    a.label(lev)
    a(f's_cmp_eq_u32 {s(sI)}, 2')
    a(f's_cbranch_scc1 {le2}')
    a(f's_cmp_eq_u32 {s(sI)}, 4')
    a(f's_cbranch_scc1 {le4}')
    a(f's_cmp_eq_u32 {s(sI)}, 6')
    a(f's_cbranch_scc1 {le6}')
    nonce_to_tag(a, vN)
    a(f's_branch {lback}')
    a.label(le2)
    a(f'v_lshrrev_b32 {v(t0)}, 4, v0')
    a(f'v_lshlrev_b32 {v(t0)}, 3, {v(t0)}')
    a(f'v_bfe_u32 {v(t1)}, v0, 2, 2')
    a(f'v_add_u32 {v(t0)}, {v(t0)}, {v(t1)}')
    a(f'v_mul_lo_u32 {v(t0)}, {v(t0)}, {s(sLR)}')
    a(f'v_add_u32 {v(t0)}, {s(sCol)}, {v(t0)}')
    a(f'v_and_b32 {v(t1)}, 3, v0')
    a(f'v_lshl_add_u32 {v(t2)}, {v(t1)}, 3, {v(t0)}')
    a(f'v_lshl_add_u32 {v(t0)}, {v(t1)}, 4, {v(t0)}')
    a(f'v_add_u32 {v(t0)}, {s(sCb0)}, {v(t0)}')
    a(f'v_add_u32 {v(t2)}, {s(sCb4)}, {v(t2)}')
    a(f's_lshl_b32 {s(sT)}, {s(sLR)}, 2')
    a(f'v_add_u32 {v(t1)}, {s(sT)}, {v(t0)}')
    a(f'v_add_u32 {v(t3)}, {s(sT)}, {v(t2)}')
    for n in range(4):
        for jh in range(2):
            a(f'ds_read_b64_tr_b16 {v(F+4*n+2*jh,2)}, {v(t1 if jh else t0)} offset:{64*(n>>1) + 8*(n&1)}')
    for jh in range(2):
        a(f'ds_read_b64_tr_b16 {v(F+16+2*jh,2)}, {v(t3 if jh else t2)}')
    for n in range(5):
        a(f's_waitcnt lgkmcnt({8-2*n})')
        a(f'buffer_store_dwordx4 {v(F+4*n,4)}, {v(vL16)}, {s(SRD_WS,4)}, {s(sD[n>>1])} offen offset:{(n&1)*1024} sc1')
    a(f's_branch {lback}')
    a.label(le4)
    a(f'v_mov_b32 {v(vN)}, {s(S_TAG)}')
    a(f's_mov_b64 exec, 1')
    a(f'buffer_store_dword {v(vN)}, off, {s(SRD_WS,4)}, {s(sFlag)} sc1')
    a(f's_branch {lback}')
    a.label(le6)
    a(f'buffer_load_dword {v(vF)}, {v(vFo)}, {s(SRD_WS,4)}, {s(sFo)} offen sc1')
    a(f's_branch {lback}')
    a.label(lafter)
    lchk, lok = a.newlabel('chk'), a.newlabel('ok')
    a(f's_mov_b32 {s(S_CNT)}, {SPIN}')
    a(f's_waitcnt vmcnt({NX})')
    a.label(lchk)
    a(f'v_and_b32 {v(t0)}, -8, {v(vF)}')
    a(f'v_cmp_ne_u32 vcc, {s(S_TAG)}, {v(t0)}')
    a(f's_cmp_eq_u64 vcc, 0')
    a(f's_cbranch_scc1 {lok}')
    a(f's_sub_u32 {s(S_CNT)}, {s(S_CNT)}, 1')
    a(f's_cbranch_scc1 {lok}')
    a(f'buffer_load_dword {v(vF)}, {v(vFo)}, {s(SRD_WS,4)}, {s(sFo)} offen sc1')
    a(f's_waitcnt vmcnt(0)')
    a(f's_branch {lchk}')
    a.label(lok)
    lns = a.newlabel('ns')
    a(f's_cmp_lg_u32 {s(sL)}, 0')
    a(f's_cbranch_scc1 {lns}')
    a(f'v_readfirstlane_b32 {s(sT)}, {v(vF)}')
    a(f'v_cmp_ne_u32 vcc, {s(sT)}, {v(vF)}')
    a(f's_cmp_eq_u64 vcc, 0')
    a(f's_cselect_b32 {s(sT)}, {0 if FORCE_SLOW else 1}, 0')
    a(f'v_mov_b32 {v(t0)}, {s(sT)}')
    a(f'v_mov_b32 {v(t1)}, {L_SAME}')
    a(f'ds_write_b32 {v(t1)}, {v(t0)}')
    a.label(lns)
    stamp(a)
    a(f's_barrier')
    stat_reads()
    n8 = rng(3, 46, sWo, L_R1)
    stat_mfma()
    a(f's_waitcnt vmcnt({n8})')
    stamp(a)
    a(f's_barrier')
    stat_reads()
    stat_mfma()
    vSum = F; vSq = F + 1
    a(f'v_and_b32 {v(t2)}, 3, v0')
    a(f'v_and_b32 {v(t1)}, 15, v0')
    a(f's_lshl_b32 {s(sT)}, {s(sL)}, 7')
    a(f's_add_u32 {s(sT)}, {s(sT)}, {L_STAT}')
    a(f'v_lshl_add_u32 {v(t1)}, {v(t1)}, 3, {s(sT)}')
    lst = a.newlabel('lst')
    for tl in range(2):
        if tl:
            a(f's_cmp_lg_u32 {s(sL)}, 0')
            a(f's_cbranch_scc1 {lst}')
        G = accG[tl]
        a(f'v_cmp_eq_u32 vcc, 1, {v(t2)}')
        a(f'v_cndmask_b32 {v(vSq)}, {v(G)}, {v(G+1)}, vcc')
        a(f'v_cmp_eq_u32 vcc, 2, {v(t2)}')
        a(f'v_cndmask_b32 {v(vSq)}, {v(vSq)}, {v(G+2)}, vcc')
        a(f'v_cmp_eq_u32 vcc, 3, {v(t2)}')
        a(f'v_cndmask_b32 {v(vSq)}, {v(vSq)}, {v(G+3)}, vcc')
        a(f'v_mov_b32 {v(vSum)}, {v(accS[tl])}')
        for x in ln_stats(vSum, vSq, t0): a(x)
        a(f's_mov_b32 exec_lo, 0x00f0000f')
        a(f's_mov_b32 exec_hi, 0xf0000f00')
        a(f'ds_write_b64 {v(t1)}, {v(vSum,2)} offset:{512*tl}')
        a(f's_mov_b64 exec, -1')
        a(f's_waitcnt lgkmcnt(0)')
    a.label(lst)
    rng(89, 100, sWo, L_R1)
    rng(102, 120, sW1, L_R1)
    srd(a, SRD_C, S_PB1, 1536 * 2)
    a(f'v_lshlrev_b32 {v(t0)}, 2, v0')
    a(f's_mul_i32 {s(sT)}, {s(S_J)}, 192')
    a(f'buffer_load_dword {v(vN)}, {v(t0)}, {s(SRD_C,4)}, {s(sT)} offen')
    stamp(a)
    a(f's_barrier')
    rng(46, 78, sWo, L_R1)
    stamp(a)
    a(f's_barrier')
    rng(78, 89, sWo, L_R1)
    rng(0, 3, sWo, L_R1)
    def thin(sbase, nlines, part, nparts, lo=0):
        per = nlines // nparts
        m = (per + 255) // 256
        a(f'v_lshlrev_b32 {v(t0)}, 7, v0')
        a(f's_mul_i32 {s(sT)}, {s(part)}, {per*128}')
        a(f's_add_u32 {s(sT)}, {s(sT)}, {s(sbase)}')
        a(f's_mul_i32 {s(sT2)}, {s(sL)}, {(per//4)*128}')
        a(f's_add_u32 {s(sT)}, {s(sT)}, {s(sT2)}')
        if lo: a(f's_add_u32 {s(sT)}, {s(sT)}, {lo*128}')
        for i in range(m):
            rem = per // 4 - 64 * i
            if rem < 64: a(f's_bfm_b64 exec, {rem}, 0')
            a(f'buffer_load_dword {v(vJ)}, {v(t0)}, {s(SRD_WS,4)}, {s(sT)} offen sc1')
            if i + 1 < m: a(f's_add_u32 {s(sT)}, {s(sT)}, 8192')
        a(f's_mov_b64 exec, -1')
        return m
    nth = 0
    if PRE1:
        sP = sa()
        a(f's_and_b32 {s(sP)}, {s(S_C)}, 1')
        nth = thin(sW1, 816, sP, 2)
    a(f's_waitcnt vmcnt({nth})')
    stamp(a)
    a(f's_barrier')
    a(f's_add_u32 {s(sT2)}, {s(sW2)}, {24*5120 - 20*1024}')
    rng(24, 40, sT2, 0)
    stamp(a)
    a(f's_barrier')
    rng(0, 102, sW1, L_R1, thr=THR)
    stamp(a)
    a(f's_waitcnt vmcnt(0)')
    stamp(a)
    a(f's_barrier')
    fl = [va(4, 4) for _ in range(10)]
    lcs, lb1 = a.newlabel('lcs'), a.newlabel('lb1')
    a(f's_lshl_b32 {s(sT)}, {s(sL)}, 10')
    a(f's_add_u32 {s(sT)}, {s(sT)}, {L_R1}')
    a(f'v_add_u32 {v(t0)}, {s(sT)}, {v(vL16)}')
    a(f'v_add_u32 {v(t1)}, 61440, {v(t0)}')
    a(f'v_and_b32 {v(t2)}, 0x30, v0')
    a(f's_lshl_b32 {s(sT)}, {s(sL)}, 6')
    a(f'v_add_u32 {v(t2)}, {s(sT)}, {v(t2)}')
    for rep in range(2):
        if rep:
            a(f's_cmp_ge_u32 {s(sL)}, 2')
            a(f's_cbranch_scc1 {lb1}')
        for half in range(2):
            for k in range(10):
                a(f'ds_read_b128 {v(fl[k],4)}, {v(t1 if half else t0)} offset:{k*6144 + rep*4096}')
            for k in range(10):
                a(f's_waitcnt lgkmcnt({9-k})')
                c = '0' if (k == 0 and half == 0) else v(accG[0], 4)
                a(f'{MFMA} {v(accG[0],4)}, {v(fl[k],4)}, {v(vOne,4)}, {c}')
        a(f's_mov_b32 exec_lo, 0x00010001')
        a(f's_mov_b32 exec_hi, 0x00010001')
        a(f'ds_write_b128 {v(t2)}, {v(accG[0],4)} offset:{L_CS + rep*256}')
        a(f's_mov_b64 exec, -1')
        a(f's_waitcnt lgkmcnt(0)')
    a(f's_branch {lcs}')
    a.label(lb1)
    a(f'v_lshrrev_b32 {v(t0)}, 4, v0')
    a(f'v_lshlrev_b32 {v(t0)}, 7, {v(t0)}')
    a(f'v_bfe_u32 {v(t1)}, v0, 1, 1')
    a(f'v_lshl_add_u32 {v(t0)}, {v(t1)}, 6, {v(t0)}')
    a(f'v_bfe_u32 {v(t1)}, v0, 2, 2')
    a(f'v_lshl_add_u32 {v(t0)}, {v(t1)}, 4, {v(t0)}')
    a(f'v_and_b32 {v(t1)}, 1, v0')
    a(f'v_lshl_add_u32 {v(t0)}, {v(t1)}, 3, {v(t0)}')
    a(f'v_lshlrev_b32 {v(F)}, 16, {v(vN)}')
    a(f'v_and_b32 {v(F+1)}, 0xffff0000, {v(vN)}')
    a(f's_mov_b32 exec_hi, 0xffff')
    a(f'ds_write_b64 {v(t0)}, {v(F,2)} offset:{L_B1}')
    a(f's_mov_b64 exec, -1')
    a(f's_waitcnt lgkmcnt(0)')
    a.label(lcs)
    stamp(a)
    rng(4, 20, sW2, 0)
    rng(20, 24, sT2, 0)
    a(f's_barrier')
    if PRE2:
        sP2 = sa()
        a(f's_and_b32 {s(sP2)}, {s(S_C64)}, 3')
        thin(sW2, 1920, sP2, 4)
    a(f's_barrier')
    rng(0, 4, sW2, 0)
    sSrc, sDst = sa(), sa()
    a(f's_lshr_b32 {s(sSrc)}, {s(sL)}, 1')
    a(f's_mul_i32 {s(sSrc)}, {s(sSrc)}, {20*5120}')
    a(f's_mul_i32 {s(sDst)}, {s(sL)}, 10240')
    a(f's_add_u32 {s(sSrc)}, {s(sSrc)}, {s(sDst)}')
    a(f's_add_u32 {s(sSrc)}, {s(sSrc)}, {s(sW2)}')
    def stage(st):
        a(f's_add_u32 m0, {s(sDst)}, {(st % 4) * 40960}')
        a(f's_add_u32 {s(sT)}, {s(sSrc)}, {st * 20480}')
        for i in range(10):
            if i and i % 4 == 0:
                a(f's_add_u32 m0, m0, 4096')
                a(f's_add_u32 {s(sT)}, {s(sT)}, 4096')
            if THR and st < 4 and (st - 1) * 10 + i >= THR: a(f's_waitcnt vmcnt({THR-1})')
            a(f'buffer_load_dwordx4 {v(vL16)}, {s(SRD_WS,4)}, {s(sT)} offen offset:{(i%4)*1024} sc1 lds')
    for st in (1, 2, 3): stage(st)
    stamp(a)
    for st, n in enumerate((30, 20, 20, 20, 10, 0)):
        a(f's_waitcnt vmcnt({n})')
        stamp(a)
        a(f's_barrier')
        if st in (1, 2): stage(st + 3)
    lend = a.newlabel('lend')
    a(f's_or_b32 {s(sT)}, s2, {s(sL)}')
    a(f's_cmp_lg_u32 {s(sT)}, 0')
    a(f's_cbranch_scc1 {lend}')
    lp, ld = a.newlabel('bp'), a.newlabel('bd')
    a(f's_mov_b32 {s(S_CNT)}, {SPIN}')
    a(f's_mov_b32 {s(sT)}, {FL_HELLO}')
    a.label(lp)
    a(f'buffer_load_dwordx4 {v(F,4)}, {v(vL16)}, {s(SRD_WS,4)}, {s(sT)} offen sc1')
    a(f's_sub_u32 {s(S_CNT)}, {s(S_CNT)}, 1')
    a(f's_cbranch_scc1 {ld}')
    a(f's_waitcnt vmcnt(0)')
    for r in range(4): a(f'v_xor_b32 {v(F+r)}, {s(S_TAG)}, {v(F+r)}')
    a(f'v_or3_b32 {v(F)}, {v(F)}, {v(F+1)}, {v(F+2)}')
    a(f'v_or_b32 {v(F)}, {v(F)}, {v(F+3)}')
    a(f'v_cmp_lt_u32 vcc, 7, {v(F)}')
    a(f's_cmp_lg_u64 vcc, 0')
    a(f's_cbranch_scc1 {lp}')
    a.label(ld)
    a(f'v_mov_b32 {v(t0)}, {s(S_TAG)}')
    a(f's_mov_b32 {s(sT)}, {WS_FL}')
    a(f's_mov_b64 exec, 1')
    a(f'buffer_store_dword {v(t0)}, off, {s(SRD_WS,4)}, {s(sT)} sc1')
    a.label(lend)
    stamps_flush(a)
    a('s_endpgm')
    return va.hi

def add_bf16_pairs(a, dst_regs, src, tmp):
    for i in range(len(dst_regs) // 2):
        a(f'v_lshlrev_b32 {v(tmp)}, 16, {v(src+i)}')
        a(f'v_add_f32 {v(dst_regs[2*i])}, {v(dst_regs[2*i])}, {v(tmp)}')
        a(f'v_and_b32 {v(tmp)}, 0xffff0000, {v(src+i)}')
        a(f'v_add_f32 {v(dst_regs[2*i+1])}, {v(dst_regs[2*i+1])}, {v(tmp)}')

def compute(a):
    sa = Alloc('s', S_FREE, S_LIM)
    vL16 = 1
    sT, sT2, sI, sRd = sa(), sa(), sa(), sa()
    sTau, sKh, sTile = sa(), sa(), sa()
    sO1, sO2, sF1w, sF1r, sOsrc, sRowP, sRow4, sHP, sH4, sSTw, sF2w = [sa() for _ in range(11)]
    sF2r, sSTr, sHsrc, sDdst, sF3w, sF3r, sDsrc, sBeta, sB4, sXw, sXr, sCexp = [sa() for _ in range(12)]
    sMask = sa(2)
    hi = [0]
    va = Alloc('v', 2, VLIM)
    t0, t1, t2, t3 = va(), va(), va(), va()
    vX = [va(), va()]
    wk0 = va.n
    acc = [[va(4, 4) for m in range(5)] for n in range(2)]
    fX = [[va(4, 4) for m in range(5)] for st in range(2)]
    fW = [[va(4, 4) for n in range(2)] for st in range(2)]
    wk1 = va.n
    Cc, Cp = va(4, 4), va(4, 4)
    xP = va(4, 4); x4 = va(2)
    Mc, Mp = va(2), va(2)
    vW, vG0, vDump, vStat, vN = va(), va(), va(), va(), va()
    aC, aP, aVc, aVp, aVc4, aVp4 = [va() for _ in range(6)]
    vRowP, vRow4, vH4, vFo = va(), va(), va(), va()
    hi[0] = va.hi
    a(f'v_lshlrev_b32 {v(vL16)}, 4, v0')
    a(f'v_and_b32 {v(t0)}, 15, v0')
    a(f'v_lshrrev_b32 {v(t1)}, 4, v0')
    a(f'v_lshrrev_b32 {v(t2)}, 1, {v(t0)}')
    a(f'v_xor_b32 {v(t2)}, {v(t2)}, {v(t1)}')
    a(f'v_lshlrev_b32 {v(t2)}, 4, {v(t2)}')
    a(f'v_lshl_add_u32 {v(t2)}, {v(t0)}, 7, {v(t2)}')
    a(f'v_add_u32 {v(vX[0])}, {XIMG}, {v(t2)}')
    a(f'v_xor_b32 {v(vX[1])}, 64, {v(vX[0])}')
    a(f'v_lshrrev_b32 {v(t2)}, 5, v0')
    a(f'v_lshlrev_b32 {v(t2)}, 4, {v(t2)}')
    a(f'v_bfe_u32 {v(t3)}, v0, 2, 3')
    a(f'v_add_u32 {v(t2)}, {v(t2)}, {v(t3)}')
    a(f'v_mul_u32_u24 {v(t2)}, {WROW}, {v(t2)}')
    a(f'v_and_b32 {v(t3)}, 3, v0')
    a(f'v_lshl_add_u32 {v(t2)}, {v(t3)}, 3, {v(t2)}')
    a(f's_lshl_b32 {s(sT)}, {s(S_W)}, 6')
    a(f'v_add_u32 {v(vW)}, {s(sT)}, {v(t2)}')
    a(f'v_mov_b32 {v(vN)}, 0x3f803f80')
    a(f'v_and_b32 {v(t2)}, 31, v0')
    a(f'v_lshlrev_b32 {v(t2)}, 2, {v(t2)}')
    a(f'v_add_u32 {v(t3)}, {SLOT}, {v(t2)}')
    a(f'ds_write_b32 {v(t2)}, {v(vN)} offset:{XIMG + 64*128}')
    a(f'ds_write_b32 {v(t3)}, {v(vN)} offset:{XIMG + 64*128}')
    a(f'v_add_u32 {v(t3)}, {2*SLOT}, {v(t2)}')
    a(f'ds_write_b32 {v(t3)}, {v(vN)} offset:{XIMG + 64*128}')
    a(f's_waitcnt lgkmcnt(0)')
    srd(a, SRD_WS, S_PWS, WS_SIZE)
    srd(a, SRD_A, S_PX, 2048 * 1280)
    if XPRE:
        lx = a.newlabel('xp')
        a(f's_cmp_ge_u32 {s(S_W)}, 2')
        a(f's_cbranch_scc1 {lx}')
        a(f's_lshl3_add_u32 {s(sT2)}, {s(S_C64)}, {s(S_J8)}')
        a(f's_mul_i32 {s(sT2)}, {s(sT2)}, 10240')
        a(f's_mul_i32 {s(sI)}, {s(S_W)}, 5120')
        a(f's_add_u32 {s(sT2)}, {s(sT2)}, {s(sI)}')
        a(f'v_lshlrev_b32 {v(t2)}, 7, v0')
        a(f's_mov_b32 exec_hi, 0xff')
        a(f'buffer_load_dword {v(vN)}, {v(t2)}, {s(SRD_A,4)}, {s(sT2)} offen')
        a(f's_mov_b64 exec, -1')
        a.label(lx)
    a(f's_mov_b32 {s(sT2)}, {WS_FL}')
    a(f'buffer_load_dword {v(vN)}, off, {s(SRD_WS,4)}, {s(sT2)} sc1')
    srd(a, SRD_B, S_POUT, 2048 * 1280)
    srd(a, SRD_C, S_PB2, 640 * 2)
    for n in range(2):
        for m in range(5):
            for r in range(4): a(f'v_mov_b32 {v(acc[n][m]+r)}, 0')
    for r in range(4):
        for m in range(5): a(f'v_mov_b32 {v(fX[1][m]+r)}, 0')
        for n in range(2): a(f'v_mov_b32 {v(fW[1][n]+r)}, 0')
    a(f'v_lshlrev_b32 {v(vStat)}, 3, {v(t0)}')
    a(f'v_add_u32 {v(vStat)}, {L_STAT}, {v(vStat)}')
    a(f'v_mul_u32_u24 {v(t2)}, {DROW}, {v(t0)}')
    a(f'v_lshl_add_u32 {v(t2)}, {v(t1)}, 3, {v(t2)}')
    a(f'v_add_u32 {v(vDump)}, {s(sT)}, {v(t2)}')
    sCur, sPrev = sO1, sO2
    a(f's_and_b32 {s(sTau)}, {s(S_W)}, 3')
    a(f's_lshr_b32 {s(sKh)}, {s(S_W)}, 2')
    a(f's_lshl_b32 {s(sCur)}, {s(sTau)}, 4')
    a(f's_sub_u32 {s(sPrev)}, {s(sCur)}, 16')
    a(f's_lshl_b32 {s(sT)}, {s(sTau)}, 2')
    a(f's_add_u32 {s(sT)}, {s(sT)}, 56')
    a(f's_bitcmp1_b32 {s(sTau)}, 0')
    a(f's_cselect_b32 {s(sPrev)}, {s(sPrev)}, {s(sT)}')
    a(f's_mul_i32 {s(sT)}, {s(sKh)}, 80')
    a(f's_mul_i32 {s(sCur)}, {s(sCur)}, {DROW}')
    a(f's_mul_i32 {s(sPrev)}, {s(sPrev)}, {DROW}')
    a(f's_add_u32 {s(sCur)}, {s(sCur)}, {s(sT)}')
    a(f's_add_u32 {s(sPrev)}, {s(sPrev)}, {s(sT)}')
    a(f'v_add_u32 {v(aC)}, {s(sCur)}, {v(t2)}')
    a(f'v_add_u32 {v(aP)}, {s(sPrev)}, {v(t2)}')
    a(f'v_lshrrev_b32 {v(t2)}, 2, v0')
    a(f'v_mul_u32_u24 {v(t2)}, {DROW}, {v(t2)}')
    a(f'v_add_u32 {v(aVc4)}, {s(sCur)}, {v(t2)}')
    a(f'v_add_u32 {v(aVp4)}, {s(sPrev)}, {v(t2)}')
    a(f'v_and_b32 {v(t2)}, 3, v0')
    a(f'v_lshl_add_u32 {v(aVc)}, {v(t2)}, 3, {v(aVc4)}')
    a(f'v_lshl_add_u32 {v(aVp)}, {v(t2)}, 3, {v(aVp4)}')
    def tile80_vec(vRowP, vRow4, vH4, t):
        a(f'v_and_b32 {v(t)}, 15, v0')
        a(f'v_mul_u32_u24 {v(vRowP)}, 2560, {v(t)}')
        a(f'v_lshlrev_b32 {v(vH4)}, 4, {v(t)}')
        a(f'v_lshrrev_b32 {v(t)}, 4, v0')
        a(f'v_lshl_add_u32 {v(vRow4)}, {v(t)}, 3, {v(vRowP)}')
        a(f'v_lshl_add_u32 {v(vRowP)}, {v(t)}, 4, {v(vRowP)}')
        a(f'v_and_b32 {v(t)}, 1, {v(t)}')
        a(f'v_lshl_add_u32 {v(vH4)}, {v(t)}, 3, {v(vH4)}')
        a(f'v_lshrrev_b32 {v(t)}, 5, v0')
        a(f'v_lshl_add_u32 {v(vH4)}, {v(t)}, 8, {v(vH4)}')
    tile80_vec(vRowP, vRow4, vH4, t2)
    a(f'v_and_b32 {v(vFo)}, 7, v0')
    a(f'v_lshlrev_b32 {v(vFo)}, 2, {v(vFo)}')
    a(f's_and_b32 {s(sT)}, {s(sTau)}, 1')
    a(f's_or_b32 {s(sT)}, {s(sT)}, {s(S_C64)}')
    a(f's_cmp_eq_u32 {s(sT)}, 0')
    a(f's_cselect_b32 {s(sT)}, 100, 9')
    a(f'v_lshlrev_b32 {v(t1)}, 2, {v(t1)}')
    a(f'v_sub_u32 {v(t1)}, {v(t1)}, {v(t0)}')
    a(f'v_mov_b32 {v(t3)}, 0xf149f2ca')
    for r in range(4):
        a(f'v_add_u32 {v(t2)}, {r+7}, {v(t1)}')
        a(f'v_cmp_ge_u32 vcc, 7, {v(t2)}')
        a(f'v_cndmask_b32 {v(Cc+r)}, {v(t3)}, 0, vcc')
        a(f'v_add_u32 {v(t2)}, {r}, {v(t1)}')
        a(f'v_cmp_le_i32 vcc, {s(sT)}, {v(t2)}')
        a(f'v_cndmask_b32 {v(Cp+r)}, {v(t3)}, 0, vcc')
        a(f'v_cmp_ge_i32 vcc, 0, {v(t2)}')
        half = '0xffff' if r % 2 == 0 else '0xffff0000'
        a(f'v_mov_b32 {v(vG0)}, {half}')
        if r % 2 == 0:
            a(f'v_cndmask_b32 {v(Mc+r//2)}, 0, {v(vG0)}, vcc')
        else:
            a(f'v_cndmask_b32 {v(vG0)}, 0, {v(vG0)}, vcc')
            a(f'v_or_b32 {v(Mc+r//2)}, {v(Mc+r//2)}, {v(vG0)}')
    a(f'v_not_b32 {v(Mp)}, {v(Mc)}')
    a(f'v_not_b32 {v(Mp+1)}, {v(Mc+1)}')
    a(f'v_cmp_gt_u32 vcc, 16, v0')
    a(f'v_cndmask_b32 {v(vG0)}, 0, -1, vcc')
    cexp = struct.unpack('<I', struct.pack('<f', 20 ** -0.5 * math.log2(math.e)))[0]
    a(f's_mov_b32 {s(sCexp)}, {hex(cexp)}')
    a(f's_lshl2_add_u32 {s(sTile)}, {s(S_C64)}, {s(sTau)}')
    a(f's_mul_i32 {s(sOsrc)}, {s(sTile)}, 20480')
    if WS_OF: a(f's_add_u32 {s(sOsrc)}, {s(sOsrc)}, {WS_OF}')
    a(f's_lshl1_add_u32 {s(sT2)}, {s(S_J8)}, {s(sKh)}')
    a(f's_lshr_b32 {s(sT)}, {s(sT2)}, 3')
    a(f's_lshl1_add_u32 {s(sO1)}, {s(sT)}, {s(sT2)}')
    a(f's_lshl_b32 {s(sO1)}, {s(sO1)}, 10')
    a(f's_add_u32 {s(sO1)}, {s(sO1)}, {s(sOsrc)}')
    a(f's_mul_i32 {s(sO2)}, {s(sT)}, 10')
    a(f's_bfe_u32 {s(sT)}, {s(sT2)}, 0x10002')
    a(f's_add_u32 {s(sO2)}, {s(sO2)}, {s(sT)}')
    a(f's_add_u32 {s(sO2)}, {s(sO2)}, 8')
    a(f's_lshl_b32 {s(sO2)}, {s(sO2)}, 10')
    a(f's_add_u32 {s(sO2)}, {s(sO2)}, {s(sOsrc)}')
    a(f's_and_b32 {s(sT)}, {s(sT2)}, 3')
    a(f's_lshl_b32 {s(sT)}, {s(sT)}, 4')
    a(f's_mov_b64 {s(sMask,2)}, 0xffff')
    a(f's_lshl_b64 {s(sMask,2)}, {s(sMask,2)}, {s(sT)}')
    a(f's_lshl_b32 {s(sT)}, {s(sTile)}, 7')
    a(f's_lshl2_add_u32 {s(sF1w)}, {s(sT2)}, {s(sT)}')
    a(f's_add_u32 {s(sF2w)}, {s(sF1w)}, {FL_2}')
    a(f's_add_u32 {s(sF1w)}, {s(sF1w)}, {FL_1}')
    a(f's_lshl_b32 {s(sF1r)}, {s(sKh)}, 5')
    a(f's_add_u32 {s(sF1r)}, {s(sF1r)}, {s(sT)}')
    a(f's_add_u32 {s(sF3r)}, {s(sF1r)}, {FL_3}')
    a(f's_add_u32 {s(sF1r)}, {s(sF1r)}, {FL_1}')
    a(f's_lshl_b32 {s(sSTw)}, {s(sTile)}, 11')
    a(f's_lshl_b32 {s(sT)}, {s(sT2)}, 7')
    a(f's_add_u32 {s(sSTw)}, {s(sSTw)}, {s(sT)}')
    a(f's_add_u32 {s(sSTw)}, {s(sSTw)}, {WS_ST}')
    a(f's_add_u32 {s(sH4)}, {s(sOsrc)}, {WS_HF - WS_OF}')
    a(f's_mul_i32 {s(sT)}, {s(sKh)}, 10240')
    a(f's_add_u32 {s(sOsrc)}, {s(sOsrc)}, {s(sT)}')
    a(f's_lshr_b32 {s(sB4)}, {s(S_J8)}, 1')
    a(f's_mul_i32 {s(sB4)}, {s(sB4)}, 5')
    a(f's_and_b32 {s(sT)}, {s(S_J8)}, 1')
    a(f's_mul_i32 {s(sBeta)}, {s(sT)}, 3')
    a(f's_add_u32 {s(sBeta)}, {s(sBeta)}, {s(sB4)}')
    a(f's_add_u32 {s(sBeta)}, {s(sBeta)}, {s(sKh)}')
    a(f's_add_u32 {s(sB4)}, {s(sB4)}, 2')
    a(f's_lshl1_add_u32 {s(sB4)}, {s(sB4)}, {s(sT)}')
    a(f's_lshl_b32 {s(sT)}, {s(sBeta)}, 10')
    a(f's_add_u32 {s(sHP)}, {s(sH4)}, {s(sT)}')
    a(f's_lshl_b32 {s(sT)}, {s(sB4)}, 9')
    a(f's_add_u32 {s(sH4)}, {s(sH4)}, {s(sT)}')
    a(f's_lshl_b32 {s(sBeta)}, {s(sBeta)}, 6')
    a(f's_lshl_b32 {s(sB4)}, {s(sB4)}, 5')
    a(f's_and_b32 {s(sRow4)}, {s(sTau)}, 1')
    a(f's_lshl_b32 {s(sRow4)}, {s(sRow4)}, 5')
    a(f's_lshr_b32 {s(sT)}, {s(sTau)}, 1')
    a(f's_add_u32 {s(sRow4)}, {s(sRow4)}, {s(sT)}')
    a(f's_lshl_b32 {s(sT)}, {s(S_C64)}, 6')
    a(f's_add_u32 {s(sRow4)}, {s(sRow4)}, {s(sT)}')
    a(f's_mul_i32 {s(sRow4)}, {s(sRow4)}, 1280')
    a(f's_add_u32 {s(sRowP)}, {s(sRow4)}, {s(sBeta)}')
    a(f's_add_u32 {s(sRow4)}, {s(sRow4)}, {s(sB4)}')
    a(f's_mul_i32 {s(sDsrc)}, {s(sTile)}, 49152')
    a(f's_mul_i32 {s(sT)}, {s(sKh)}, 24576')
    a(f's_add_u32 {s(sDsrc)}, {s(sDsrc)}, {s(sT)}')
    a(f's_add_u32 {s(sDsrc)}, {s(sDsrc)}, {WS_DF}')
    a(f's_mul_i32 {s(sXw)}, {s(S_W)}, 3072')
    a(f's_xor_b32 {s(sXr)}, {s(S_W)}, 4')
    a(f's_mul_i32 {s(sXr)}, {s(sXr)}, 3072')
    a(f's_lshl3_add_u32 {s(sT2)}, {s(S_C)}, {s(S_W)}')
    a(f's_lshl_b32 {s(sF2r)}, {s(sT2)}, 7')
    a(f's_lshl2_add_u32 {s(sF3w)}, {s(S_J)}, {s(sF2r)}')
    a(f's_add_u32 {s(sF3w)}, {s(sF3w)}, {FL_3}')
    a(f's_add_u32 {s(sF2r)}, {s(sF2r)}, {FL_2}')
    a(f's_lshl_b32 {s(sSTr)}, {s(sT2)}, 11')
    a(f's_add_u32 {s(sSTr)}, {s(sSTr)}, {WS_ST}')
    a(f's_mul_i32 {s(sHsrc)}, {s(sT2)}, 20480')
    a(f's_add_u32 {s(sHsrc)}, {s(sHsrc)}, {WS_HF}')
    a(f's_mul_i32 {s(sDdst)}, {s(sT2)}, 49152')
    a(f's_mul_i32 {s(sT)}, {s(S_J)}, 3072')
    a(f's_add_u32 {s(sDdst)}, {s(sDdst)}, {s(sT)}')
    a(f's_add_u32 {s(sDdst)}, {s(sDdst)}, {WS_DF}')
    a(f's_mov_b32 {s(sI)}, 0')
    a(f's_mov_b32 {s(sRd)}, 0')
    a(f's_waitcnt vmcnt(0)')
    nonce_to_tag(a, vN)
    lh = a.newlabel('hello')
    a(f's_cmp_lg_u32 {s(S_W)}, 0')
    a(f's_cbranch_scc1 {lh}')
    a(f's_getreg_b32 {s(sT)}, hwreg(HW_REG_XCC_ID, 0, 3)')
    a(f's_or_b32 {s(sT)}, {s(sT)}, {s(S_TAG)}')
    a(f'v_mov_b32 {v(vN)}, {s(sT)}')
    a(f's_lshl4_add_u32 {s(sT)}, {s(S_C)}, {s(S_J)}')
    a(f's_lshl_b32 {s(sT)}, {s(sT)}, 2')
    a(f's_add_u32 {s(sT)}, {s(sT)}, {FL_HELLO}')
    a(f's_mov_b64 exec, 1')
    a(f'buffer_store_dword {v(vN)}, off, {s(SRD_WS,4)}, {s(sT)} sc1')
    a(f's_mov_b64 exec, -1')
    a.label(lh)
    def reads(st):
        L = []
        for n in range(2):
            for jh in range(2):
                L.append(f'ds_read_b64_tr_b16 {v(fW[st][n]+2*jh,2)}, {v(vW)} offset:{st*512 + jh*8*WROW + n*32}')
        for m in range(5):
            L.append(f'ds_read_b128 {v(fX[st][m],4)}, {v(vX[st])} offset:{m*2048}')
        return L
    def mfmas(st):
        return [f'{MFMA} {v(acc[n][m],4)}, {v(fW[st][n],4)}, {v(fX[st][m],4)}, {v(acc[n][m],4)}'
                for m in range(5) for n in range(2)]
    lloop = a.newlabel('p1loop')
    stamp(a)
    a.label(lloop)
    a(f's_waitcnt lgkmcnt(0)')
    a(f's_barrier')
    stamp(a, sidx=sI, cnt=10)
    M, RD = mfmas(1), reads(0)
    for i in range(10):
        if i < 5:
            a(RD[2*i])
            if 2*i+1 < 9: a(RD[2*i+1])
        a(M[i])
        if i == 5:
            a(f's_add_u32 {s(sRd)}, {s(sRd)}, {SLOT}')
            a(f's_cmp_eq_u32 {s(sRd)}, {3*SLOT}')
            a(f's_cselect_b32 {s(sRd)}, 0, {s(sRd)}')
            a(f's_movk_i32 {s(sT)}, {SLOT//16}'); a(f's_cmovk_i32 {s(sT)}, {(-2*SLOT//16) & 0xffff}'); a(f's_mul_i32 {s(sT)}, {s(sT)}, 16')
            a(f's_add_u32 {s(sI)}, {s(sI)}, 1')
            a(f's_cmp_lt_u32 {s(sI)}, 10')
    a(f's_waitcnt lgkmcnt(0)')
    M, RD = mfmas(0), reads(1)
    upd = [vX[0], vW, vX[1]]
    for i in range(10):
        a(M[i])
        if i < 5:
            a(RD[2*i])
            if 2*i+1 < 9: a(RD[2*i+1])
        if 6 <= i < 9: a(f'v_add_u32 {v(upd[i-6])}, {s(sT)}, {v(upd[i-6])}')
    a(f's_cbranch_scc1 {lloop}')
    a(f's_waitcnt lgkmcnt(0)')
    a(f's_barrier')
    stamp(a)
    st_ = fX[0][0]; cs = fX[0][3]; pk = fW[0][0]
    M = mfmas(1)
    M = M[8:] + M[:8]
    a(f'v_mov_b32 {v(t0)}, {L_SAME}')
    for m in range(5):
        a(f'ds_read_b64 {v(st_+2*m,2)}, {v(vStat)} offset:{m*128}')
    a(f'ds_read_b32 {v(t1)}, {v(t0)}')
    for x in M: a(x)
    a(f'buffer_load_dwordx4 {v(xP,4)}, {v(vRowP)}, {s(SRD_A,4)}, {s(sRowP)} offen')
    a(f'buffer_load_dwordx2 {v(x4,2)}, {v(vRow4)}, {s(SRD_A,4)}, {s(sRow4)} offen')
    for n in range(2):
        for r in range(4):
            a(f'v_mov_b32_dpp {v(cs+4*n+r)}, {v(acc[n][4]+r)} row_newbcast:0 row_mask:0xf bank_mask:0xf')
    a(f's_waitcnt lgkmcnt(0)')
    a(f'v_readfirstlane_b32 {s(S_SAME)}, {v(t1)}')
    lsk = a.newlabel('p1sk')
    for n in range(2):
        if n == 1:
            a(f's_cmp_eq_u32 {s(S_W)}, 7')
            a(f's_cbranch_scc1 {lsk}')
        for q, m in enumerate((4, 0, 1, 2, 3)):
            A = acc[n][m]
            for r in range(4): a(f'v_mul_f32 {v(A+r)}, {v(A+r)}, {v(st_+2*m)}')
            for r in range(4): a(f'v_fma_f32 {v(A+r)}, -{v(st_+2*m+1)}, {v(cs+4*n+r)}, {v(A+r)}')
            p = pk + 2 * (q % 4)
            a(f'v_cvt_pk_bf16_f32 {v(p)}, {v(A)}, {v(A+1)}')
            a(f'v_cvt_pk_bf16_f32 {v(p+1)}, {v(A+2)}, {v(A+3)}')
            a(f'ds_write_b64 {v(vDump)}, {v(p,2)} offset:{m*16*DROW + n*32}')
    a.label(lsk)
    a(f's_waitcnt lgkmcnt(0)')
    a(f's_barrier')
    stamp(a)
    va2 = Alloc('v', wk0, wk1)
    Q = [va2(4, 4) for _ in range(2)]; Kc = [va2(4, 4) for _ in range(2)]; Kp = [va2(4, 4) for _ in range(2)]
    Vm = [va2(4, 4) for _ in range(2)]; V4 = [va2(4, 4) for _ in range(2)]
    Sc = [va2(4, 4) for _ in range(2)]; Sp = [va2(4, 4) for _ in range(2)]
    Om, O4 = va2(4, 4), va2(4, 4)
    for h in range(2):
        a(f'ds_read2_b64 {v(Q[h],4)}, {v(aC)} offset0:{5*h} offset1:{5*h+4}')
        a(f'ds_read2_b64 {v(Kc[h],4)}, {v(aC)} offset0:{20+5*h} offset1:{24+5*h}')
        a(f'ds_read2_b64 {v(Kp[h],4)}, {v(aP)} offset0:{20+5*h} offset1:{24+5*h}')
    for h in range(2):
        a(f'ds_read_b64_tr_b16 {v(Vm[h],2)}, {v(aVp)} offset:{320+40*h}')
        a(f'ds_read_b64_tr_b16 {v(Vm[h]+2,2)}, {v(aVc)} offset:{320+40*h}')
        a(f'ds_read_b64_tr_b16 {v(V4[h],2)}, {v(aVp4)} offset:{320+40*h+32}')
        a(f'ds_read_b64_tr_b16 {v(V4[h]+2,2)}, {v(aVc4)} offset:{320+40*h+32}')
    for h in range(2):
        a(f's_waitcnt lgkmcnt({8 + 3*(1-h)})')
        a(f'v_and_b32 {v(Q[h]+2)}, {v(Q[h]+2)}, {v(vG0)}')
        a(f'v_and_b32 {v(Q[h]+3)}, {v(Q[h]+3)}, {v(vG0)}')
        a(f'{MFMA} {v(Sc[h],4)}, {v(Kc[h],4)}, {v(Q[h],4)}, {v(Cc,4)}')
        a(f'{MFMA} {v(Sp[h],4)}, {v(Kp[h],4)}, {v(Q[h],4)}, {v(Cp,4)}')
    mx = [t0, t1]; tm = [t2, t3]
    for h in range(2):
        for r in range(4): a(f'v_max_f32 {v(Sc[h]+r)}, {v(Sc[h]+r)}, {v(Sp[h]+r)}')
        a(f'v_max3_f32 {v(mx[h])}, {v(Sc[h])}, {v(Sc[h]+1)}, {v(Sc[h]+2)}')
        a(f'v_max_f32 {v(mx[h])}, {v(mx[h])}, {v(Sc[h]+3)}')
    xg_reduce(a, mx, tm, 'v_max_f32')
    for h in range(2): a(f'v_mul_f32 {v(mx[h])}, {s(sCexp)}, {v(mx[h])}')
    for h in range(2):
        for r in range(4): a(f'v_fma_f32 {v(Sc[h]+r)}, {v(Sc[h]+r)}, {s(sCexp)}, -{v(mx[h])}')
        for r in range(4): a(f'v_exp_f32 {v(Sc[h]+r)}, {v(Sc[h]+r)}')
    for h in range(2):
        a(f'v_add_f32 {v(mx[h])}, {v(Sc[h])}, {v(Sc[h]+1)}')
        a(f'v_add_f32 {v(tm[h])}, {v(Sc[h]+2)}, {v(Sc[h]+3)}')
        a(f'v_add_f32 {v(mx[h])}, {v(mx[h])}, {v(tm[h])}')
    xg_reduce(a, mx, tm, 'v_add_f32')
    for h in range(2): a(f'v_rcp_f32 {v(mx[h])}, {v(mx[h])}')
    for h in range(2):
        for r in range(4): a(f'v_mul_f32 {v(Sc[h]+r)}, {v(Sc[h]+r)}, {v(mx[h])}')
        a(f'v_cvt_pk_bf16_f32 {v(Sc[h])}, {v(Sc[h])}, {v(Sc[h]+1)}')
        a(f'v_cvt_pk_bf16_f32 {v(Sc[h]+1)}, {v(Sc[h]+2)}, {v(Sc[h]+3)}')
        a(f'v_and_b32 {v(Sp[h])}, {v(Sc[h])}, {v(Mp)}')
        a(f'v_and_b32 {v(Sp[h]+1)}, {v(Sc[h]+1)}, {v(Mp+1)}')
        a(f'v_and_b32 {v(Sp[h]+2)}, {v(Sc[h])}, {v(Mc)}')
        a(f'v_and_b32 {v(Sp[h]+3)}, {v(Sc[h]+1)}, {v(Mc+1)}')
        if h == 0: a(f's_waitcnt lgkmcnt(0)')
        a(f'{MFMA} {v(Q[h],4)}, {v(Vm[h],4)}, {v(Sp[h],4)}, 0')
        a(f'{MFMA} {v(Kc[h],4)}, {v(V4[h],4)}, {v(Sp[h],4)}, 0')
    for h in range(2):
        a(f'v_cvt_pk_bf16_f32 {v(Om+2*h)}, {v(Q[h])}, {v(Q[h]+1)}')
        a(f'v_cvt_pk_bf16_f32 {v(Om+2*h+1)}, {v(Q[h]+2)}, {v(Q[h]+3)}')
        a(f'v_cvt_pk_bf16_f32 {v(O4+2*h)}, {v(Kc[h])}, {v(Kc[h]+1)}')
        a(f'v_cvt_pk_bf16_f32 {v(O4+2*h+1)}, {v(Kc[h]+2)}, {v(Kc[h]+3)}')
    dual(a, [f'buffer_store_dwordx4 {v(Om,4)}, {v(vL16)}, {s(SRD_WS,4)}, {s(sO1)} offen@',
             f's_mov_b64 exec, {s(sMask,2)}',
             f'buffer_store_dwordx4 {v(O4,4)}, {v(vL16)}, {s(SRD_WS,4)}, {s(sO2)} offen@',
             f's_mov_b64 exec, -1'])
    stamp(a)
    publish(a, t0, sF1w)
    stamp(a)
    a(f's_barrier')
    stamp(a)
    def exchange(acc, tmp, vA, base, res):
        l1, l2 = a.newlabel('xa'), a.newlabel('xb')
        a(f'v_add_u32 {v(vA)}, {s(sXw)}, {v(vL16)}')
        a(f's_cmp_eq_u32 {s(sKh)}, 1')
        a(f's_cbranch_scc1 {l1}')
        for kh in range(2):
            oth = (2, 3) if kh == 0 else (0, 1)
            own = (0, 1) if kh == 0 else (2, 3)
            for i, q in enumerate(oth + ((4,) if kh else ())):
                a(f'ds_write_b128 {v(vA)}, {v(acc[q],4)} offset:{base + i*1024}')
            a(f'v_add_u32 {v(vA)}, {s(sXr)}, {v(vL16)}')
            a(f's_waitcnt lgkmcnt(0)')
            a(f's_barrier')
            nr = 2 if kh else 3
            for i in range(nr):
                a(f'ds_read_b128 {v(res[i],4)}, {v(vA)} offset:{base + i*1024}')
            for i, q in enumerate((own + (4,))[:nr]):
                a(f's_waitcnt lgkmcnt({nr-1-i})')
                for r in range(4): a(f'v_add_f32 {v(res[i]+r)}, {v(res[i]+r)}, {v(acc[q]+r)}')
            if kh == 0:
                a(f's_branch {l2}')
                a.label(l1)
        a.label(l2)

    va = Alloc('v', wk0, wk1 + 8)
    acc = [va(4, 4) for _ in range(5)]
    fO = [va(4, 4) for _ in range(10)]
    fW = [[va(4, 4) for n in range(5)] for _ in range(2)]
    vWb, vOne = aC, aP
    vSum = Mc; vSq = vSum + 1
    a(f's_mul_i32 {s(sT)}, {s(sKh)}, 51200')
    a(f's_add_u32 {s(sT)}, {s(sT)}, {L_R1}')
    a(f'v_add_u32 {v(vWb)}, {s(sT)}, {v(vL16)}')
    def rd(k):
        for n in range(5):
            a(f'ds_read_b128 {v(fW[k%2][n],4)}, {v(vWb)} offset:{k*5120 + n*1024}')
    rd(0)
    poll(a, t0, vFo, sF1r)
    stamp(a)
    def ld(k):
        if k and k % 4 == 0: a(f's_add_u32 {s(sOsrc)}, {s(sOsrc)}, 4096')
        a(f'buffer_load_dwordx4 {v(fO[k],4)}, {v(vL16)}, {s(SRD_WS,4)}, {s(sOsrc)} offen offset:{(k%4)*1024} sc1')
    for k in range(D2): ld(k)
    a(f'v_mov_b32 {v(vOne)}, 0x3f803f80')
    a(f'v_mov_b32 {v(vSum)}, 0')
    a(f'v_mov_b32 {v(vSq)}, 0')
    for k in range(10):
        if k < 9: rd(k + 1)
        a(f's_waitcnt vmcnt({min(9-k, D2-1)}) lgkmcnt({5 if k < 9 else 0})')
        for n in range(5):
            c = '0' if k == 0 else v(acc[n], 4)
            a(f'{MFMA} {v(acc[n],4)}, {v(fW[k%2][n],4)}, {v(fO[k],4)}, {c}')
            if n == 0 and k + D2 < 10: ld(k + D2)
    stamp(a)
    res = [fW[0][0], fW[0][1], fW[0][2]]
    exchange(acc, None, t0, 0, res)
    stamp(a)
    own = [res[0] + r for r in range(8)]
    add_bf16_pairs(a, own, xP, t1)
    hP, h4 = fO[0], fO[1]
    for i in range(4):
        a(f'v_cvt_pk_bf16_f32 {v(hP+i)}, {v(own[2*i])}, {v(own[2*i+1])}')
    dual(a, [f'buffer_store_dwordx4 {v(hP,4)}, {v(vL16)}, {s(SRD_WS,4)}, {s(sHP)} offen@'])
    l4 = a.newlabel('p2t4')
    a(f's_cmp_eq_u32 {s(sKh)}, 1')
    a(f's_cbranch_scc1 {l4}')
    o4 = [res[2] + r for r in range(4)]
    add_bf16_pairs(a, o4, x4, t1)
    for i in range(2):
        a(f'v_cvt_pk_bf16_f32 {v(h4+i)}, {v(o4[2*i])}, {v(o4[2*i+1])}')
    dual(a, [f'buffer_store_dwordx2 {v(h4,2)}, {v(vH4)}, {s(SRD_WS,4)}, {s(sH4)} offen@'])
    for i in range(2):
        a(f'v_dot2_f32_bf16 {v(vSq)}, {v(h4+i)}, {v(h4+i)}, {v(vSq)}')
        a(f'v_dot2_f32_bf16 {v(vSum)}, {v(h4+i)}, {v(vOne)}, {v(vSum)}')
    a.label(l4)
    for i in range(4):
        a(f'v_dot2_f32_bf16 {v(vSq)}, {v(hP+i)}, {v(hP+i)}, {v(vSq)}')
        a(f'v_dot2_f32_bf16 {v(vSum)}, {v(hP+i)}, {v(vOne)}, {v(vSum)}')
    xg_reduce(a, [vSum, vSq], [t1, t2], 'v_add_f32')
    a(f'v_lshlrev_b32 {v(t1)}, 3, v0')
    a(f's_mov_b64 exec, 0xffff')
    dual(a, [f'buffer_store_dwordx2 {v(vSum,2)}, {v(t1)}, {s(SRD_WS,4)}, {s(sSTw)} offen@'])
    a(f's_mov_b64 exec, -1')
    stamp(a)
    publish(a, t0, sF2w)
    stamp(a)
    va = Alloc('v', 2, VLIM)
    t0, t1, vW0, vW1 = va(), va(), va(), va()
    stp = [va(2) for _ in range(4)]
    acc = [va(4, 2) for _ in range(6)]
    fH = [va(4, 2) for _ in range(20)]
    fW = [[va(4, 2) for n in range(6)] for _ in range(2)]
    hi[0] = max(hi[0], va.hi)
    cs = fH[0:6]; b1 = fH[6:12]
    a(f'v_and_b32 {v(t1)}, 15, v0')
    a(f'v_lshlrev_b32 {v(vW0)}, 2, {v(t1)}')
    a(f'v_lshrrev_b32 {v(vW1)}, 4, v0')
    a(f'v_lshlrev_b32 {v(vW1)}, 9, {v(vW1)}')
    a(f'v_lshl_add_u32 {v(t1)}, {v(t1)}, 3, {v(vW1)}')
    poll(a, t0, vW0, sF2r)
    stamp(a)
    def ld(k):
        if k and k % 4 == 0: a(f's_add_u32 {s(sHsrc)}, {s(sHsrc)}, 4096')
        a(f'buffer_load_dwordx4 {v(fH[k],4)}, {v(vL16)}, {s(SRD_WS,4)}, {s(sHsrc)} offen offset:{(k%4)*1024} sc1')
    ld(0)
    for q in range(4):
        a(f'buffer_load_dwordx2 {v(stp[q],2)}, {v(t1)}, {s(SRD_WS,4)}, {s(sSTr)} offen offset:{q*128} sc1')
    for k in range(1, D3): ld(k)
    a(f'v_add_u32 {v(vW0)}, {L_R1}, {v(vL16)}')
    a(f'v_add_u32 {v(vW1)}, {L_R1 + 61440}, {v(vL16)}')
    stamp(a)
    a(f's_barrier')
    stamp(a)
    def rd(k):
        for n in range(6):
            a(f'ds_read_b128 {v(fW[k%2][n],4)}, {v(vW0 if k < 10 else vW1)} offset:{(k%10)*6144 + n*1024}')
    fill = {k: [] for k in range(20)}
    class LA:
        def __init__(self): self.L = []
        def __call__(self, x): self.L.append(x)
    la = LA()
    vS = stp[0]
    for q in range(1, 4):
        la(f'v_add_f32 {v(vS)}, {v(vS)}, {v(stp[q])}')
        la(f'v_add_f32 {v(vS+1)}, {v(vS+1)}, {v(stp[q]+1)}')
    xg_reduce(la, [vS, vS + 1], [stp[1], stp[1] + 1], 'v_add_f32')
    la.L += ln_stats(vS, vS + 1, t0)
    la(f'v_and_b32 {v(t1)}, 0x30, v0')
    for i, x in enumerate(la.L): fill[2 + i // 5].append(x)
    for n in range(6):
        for r in range(4):
            fill[15 + (4*n + r) // 5].append(f'v_fma_f32 {v(cs[n]+r)}, -{v(vS+1)}, {v(cs[n]+r)}, {v(b1[n]+r)}')
    rd(0)
    for k in range(20):
        if k == 13: a(f's_barrier')
        if k < 19: rd(k + 1)
        ex = 0
        if k in (13, 14):
            for n in range(6):
                if k == 13: a(f'ds_read_b128 {v(cs[n],4)}, {v(t1)} offset:{L_CS + n*64}')
                else: a(f'ds_read_b128 {v(b1[n],4)}, {v(t1)} offset:{L_B1 + n*64}')
            ex = 6
        a(f's_waitcnt vmcnt({min(19-k, D3-1) + (4 if k == 0 else 0)}) lgkmcnt({6 + ex if k < 19 else 0})')
        if k == 19: a(f's_barrier')
        for n in range(6):
            c = '0' if k == 0 else v(acc[n], 4)
            a(f'{MFMA} {v(acc[n],4)}, {v(fW[k%2][n],4)}, {v(fH[k],4)}, {c}')
            if n < len(fill[k]): a(fill[k][n])
            if n == 5 and k + D3 < 20: ld(k + D3)
    stamp(a)
    for i in range(3):
        out = fH[12 + i]
        for ab in range(2):
            A_ = acc[2 * i + ab]
            for r in range(4): a(f'v_fma_f32 {v(A_+r)}, {v(A_+r)}, {v(vS)}, {v(cs[2*i+ab]+r)}')
            for r in range(4): a(f'v_max_f32 {v(A_+r)}, 0, {v(A_+r)}')
            for r in range(4): a(f'v_mul_f32 {v(A_+r)}, {v(A_+r)}, {v(A_+r)}')
            a(f'v_cvt_pk_bf16_f32 {v(out+2*ab)}, {v(A_)}, {v(A_+1)}')
            a(f'v_cvt_pk_bf16_f32 {v(out+2*ab+1)}, {v(A_+2)}, {v(A_+3)}')
        dual(a, [f'buffer_store_dwordx4 {v(out,4)}, {v(vL16)}, {s(SRD_WS,4)}, {s(sDdst)} offen offset:{i*1024}@'])
    stamp(a)
    publish(a, t0, sF3w)
    stamp(a)
    va = Alloc('v', 2, VLIM)
    t0, t1, vB0, vB1, vRowP, vRow4, vH4 = [va() for _ in range(7)]
    acc = [va(4, 2) for _ in range(5)]
    fD = [va(4, 2) for _ in range(24)]
    fW = [[va(4, 2) for n in range(5)] for _ in range(2)]
    hi[0] = max(hi[0], va.hi)
    hP, h4, bP, b4 = fD[0], fD[1], fD[2], fD[1] + 2
    a(f'v_and_b32 {v(t1)}, 7, v0')
    a(f'v_lshlrev_b32 {v(t1)}, 2, {v(t1)}')
    poll(a, t0, t1, sF3r)
    stamp(a)
    seq = []
    def ld(k):
        if k and k % 4 == 0: a(f's_add_u32 {s(sDsrc)}, {s(sDsrc)}, 4096')
        a(f'buffer_load_dwordx4 {v(fD[k],4)}, {v(vL16)}, {s(SRD_WS,4)}, {s(sDsrc)} offen offset:{(k%4)*1024} sc1')
        seq.append(k)
    def after(k): return len(seq) - 1 - seq.index(k)
    for k in range(D4): ld(k)
    a(f's_mul_i32 {s(sT)}, {s(sKh)}, 20480')
    a(f'v_add_u32 {v(vB0)}, {s(sT)}, {v(vL16)}')
    a(f'v_add_u32 {v(vB1)}, 81920, {v(vB0)}')
    tile80_vec(vRowP, vRow4, vH4, t0)
    a(f'v_lshrrev_b32 {v(t1)}, 4, v0')
    a(f'v_lshlrev_b32 {v(t0)}, 4, {v(t1)}')
    a(f'v_lshlrev_b32 {v(t1)}, 3, {v(t1)}')
    stamp(a)
    def rd(k):
        q = (k // 4) % 4
        for n in range(5):
            a(f'ds_read_b128 {v(fW[k%2][n],4)}, {v(vB1 if q >= 2 else vB0)} offset:{(q&1)*40960 + (k%4)*5120 + n*1024}')
    extra = 0
    def mm(k):
        for n in range(5):
            c = '0' if k == 0 else v(acc[n], 4)
            a(f'{MFMA} {v(acc[n],4)}, {v(fW[k%2][n],4)}, {v(fD[k],4)}, {c}')
            if n == 0 and k + D4 < 24: ld(k + D4)
    for k in range(24):
        if k % 4 == 0:
            a(f's_waitcnt lgkmcnt(0)')
            a(f's_barrier')
            if STAMPS and k in (0, 12): stamp(a)
            rd(k)
            if k > 0: mm(k - 1)
            if k == 20:
                a(f'buffer_load_dwordx4 {v(hP,4)}, {v(vL16)}, {s(SRD_WS,4)}, {s(sHP)} offen sc1')
                a(f'buffer_load_dwordx2 {v(h4,2)}, {v(vH4)}, {s(SRD_WS,4)}, {s(sH4)} offen sc1')
                a(f'buffer_load_dwordx4 {v(bP,4)}, {v(t0)}, {s(SRD_C,4)}, {s(sBeta)} offen')
                a(f'buffer_load_dwordx2 {v(b4,2)}, {v(t1)}, {s(SRD_C,4)}, {s(sB4)} offen')
                seq.extend([-1] * 4)
        if k % 4 != 3:
            rd(k + 1)
            a(f's_waitcnt vmcnt({after(k)}) lgkmcnt(5)')
            mm(k)
        else:
            a(f's_waitcnt vmcnt({after(k)})')
    a(f's_waitcnt lgkmcnt(0)')
    mm(23)
    stamp(a)
    res = [fW[0][0], fW[0][1], fW[0][2]]
    a(f's_add_u32 {s(sXw)}, {s(sXw)}, 81920')
    a(f's_add_u32 {s(sXr)}, {s(sXr)}, 81920')
    exchange(acc, None, t0, 0, res)
    stamp(a)
    a(f's_waitcnt vmcnt(0)')
    own = [res[0] + r for r in range(8)]
    add_bf16_pairs(a, own, bP, t1)
    add_bf16_pairs(a, own, hP, t1)
    for i in range(4):
        a(f'v_cvt_pk_bf16_f32 {v(fD[4]+i)}, {v(own[2*i])}, {v(own[2*i+1])}')
    a(f'buffer_store_dwordx4 {v(fD[4],4)}, {v(vRowP)}, {s(SRD_B,4)}, {s(sRowP)} offen')
    l4 = a.newlabel('p4t4')
    a(f's_cmp_eq_u32 {s(sKh)}, 1')
    a(f's_cbranch_scc1 {l4}')
    o4 = [res[2] + r for r in range(4)]
    add_bf16_pairs(a, o4, b4, t1)
    add_bf16_pairs(a, o4, h4, t1)
    for i in range(2):
        a(f'v_cvt_pk_bf16_f32 {v(fD[5]+i)}, {v(o4[2*i])}, {v(o4[2*i+1])}')
    a(f'buffer_store_dwordx2 {v(fD[5],2)}, {v(vRow4)}, {s(SRD_B,4)}, {s(sRow4)} offen')
    a.label(l4)
    stamp(a)
    stamps_flush(a)
    a('s_endpgm')
    for ls, lj, L in DEFER:
        a.label(ls)
        for x in L: a(x)
        a(f's_branch {lj}')
    return hi[0]

def build():
    K = NAME + '_kernel'
    head = '; generated by gen/gen2.py: fused persistent kernel, 8 compute + 4 loader waves per workgroup\n'
    head += f'; @launch grid=(256,1,1) block=(768,1,1) lds={LDS_SIZE}\n'
    head += '.amdgcn_target "amdgcn-amd-amdhsa--gfx950"\n.text\n'
    a = Asm()
    a(f'.globl {K}\n.p2align 8\n.type {K},@function')
    a.label(K)
    lend, lld = a.newlabel('end'), a.newlabel('loader')
    a(f's_cmp_ge_u32 s2, 256')
    a(f's_cbranch_scc1 {lend}')
    a(f's_load_dwordx16 s[16:31], s[0:1], 0')
    a(f's_load_dwordx4 s[32:35], s[0:1], 64')
    a(f's_load_dwordx2 s[36:37], s[0:1], 80')
    if STAMPS:
        a(f's_memrealtime s[96:97]')
        a(f's_memtime s[100:101]')
    a(f'v_lshrrev_b32 v1, 6, v0')
    a(f'v_and_b32 v0, 63, v0')
    a(f'v_readfirstlane_b32 {s(S_W)}, v1')
    a(f's_and_b32 {s(S_XCD)}, s2, 7')
    a(f's_lshr_b32 {s(S_R)}, s2, 3')
    a(f's_lshr_b32 {s(S_C)}, {s(S_R)}, 4')
    a(f's_lshl1_add_u32 {s(S_C)}, {s(S_XCD)}, {s(S_C)}')
    a(f's_and_b32 {s(S_J)}, {s(S_R)}, 15')
    a(f's_lshr_b32 {s(S_C64)}, {s(S_J)}, 3')
    a(f's_lshl1_add_u32 {s(S_C64)}, {s(S_C)}, {s(S_C64)}')
    a(f's_and_b32 {s(S_J8)}, {s(S_J)}, 7')
    if STAMPS:
        a(f's_waitcnt lgkmcnt(0)')
        a(f'v_writelane_b32 v{VST}, s96, 0')
        a(f'v_writelane_b32 v{VST}, s100, 1')
        St.n = 2
        stamp(a)
    a(f's_cmp_lt_u32 {s(S_W)}, 8')
    lcomp = a.newlabel('compute')
    a(f's_cbranch_scc1 {lcomp}')
    n0 = St.n
    nl = loader(a)
    print('loader stamps', St.n, file=sys.stderr)
    a.label(lend)
    a('s_endpgm')
    a.label(lcomp)
    St.n = n0
    nc = compute(a)
    print('compute stamps', St.n, 'vgprs', nl, nc, file=sys.stderr)
    print('nops inserted', a.pad(), file=sys.stderr)
    desc = f'''.section .rodata,"a"
.p2align 6
.amdhsa_kernel {K}
  .amdhsa_next_free_vgpr 168
  .amdhsa_next_free_sgpr 102
  .amdhsa_accum_offset 168
  .amdhsa_group_segment_fixed_size 0
  .amdhsa_kernarg_size 88
  .amdhsa_user_sgpr_count 2
  .amdhsa_user_sgpr_kernarg_segment_ptr 1
  .amdhsa_system_sgpr_workgroup_id_x 1
.end_amdhsa_kernel
'''
    return head + a.text() + desc

if __name__ == '__main__':
    out = sys.argv[1] if len(sys.argv) > 1 else f'cdna_kernels/{NAME}.s'
    open(out, 'w').write(build())
```

```python
import sys, os, struct, math
sys.path.insert(0, os.path.dirname(os.path.abspath(__file__)))
from asmlib import Asm, Alloc, v, s

NAME = 'sequential_preLN__sliding_local_dilated__dense_activation_squared_relu__prompt'
def env(n, d): return int(os.environ.get(n, d))
STAMPS = env('STAMPS', 0)
ROT    = env('ROT', 3)
FORCE_SLOW = env('SLOW', 0)
D2, D3, D4 = env('D2', 8), env('D3', 16), env('D4', 8)
LA     = env('LA', 5)
PRIO   = env('PRIO', 3)
PRIO2  = env('PRIO2', 3)
SPF    = env('SPF', 0)
NB8    = env('NB8', 2)
N1A, N1B = env('N1A', 5), env('N1B', 1)
NSTG   = env('NSTG', 7)
HA     = env('HA', 6)
TH, T1, TW = env('TH', 4), env('T1', 4), env('TW', 0)
RO, R1, R2 = env('RO', 1), env('R1', 1), env('R2', 1)
X3E    = env('X3E', 0)
PFH    = env('PFH', 0)
PF     = os.environ.get('PF', ',,F,,,,').split(',')

WS_OF  = 0
WS_HF  = 4 << 20
WS_DF  = 8 << 20
WS_ST  = 16 << 20
WS_WO4 = 20 << 20
WS_W24 = WS_WO4 + (256 << 10)
WS_FL  = 28 << 20
FL_HELLO, FL_WO, FL_W2 = WS_FL + 1024, WS_FL + 4096, WS_FL + 8192
FL_1, FL_2, FL_3 = WS_FL + 16384, WS_FL + 32768, WS_FL + 49152
WS_TS = 29 << 20
WS_SIZE = 32 << 20

WROW  = 1056
XIMG  = 32 * WROW
SLOT  = XIMG + 10240
BLK, BLK1 = 8 * WROW + 2048, 12288
L_DUMP = 2 * SLOT
L_WO  = [SLOT + BLK * b for b in range(4)] + [135808, 146304] + [BLK * b for b in range(4)]
L_W1  = [BLK1 * b for b in range(7)] + [115456 + BLK1 * b for b in range(3)]
L_W2  = [BLK * b for b in (9, 10, 0, 1, 2, 3, 4, 5, 6, 7, 8, 11, 12, 13, 14)]
L_W2 += L_W2[:9]
L_X2, L_X4 = 9 * BLK, 7 * BLK
L_STAGE = 156800
L_CSP = L_STAGE
L_STAT = 160896
L_TAG = L_STAT + 640
L_B2  = L_TAG + 64
L_CS  = L_TAG + 256
DROW = 488
LDS_SIZE = 163840
SPIN = 1 << 16

S_PX, S_PWQKV, S_PWO, S_PBX, S_PW1, S_PB1, S_PW2, S_PB2 = 16, 18, 20, 22, 24, 26, 28, 30
S_POUT, S_PDBG, S_PWS = 32, 34, 36
SRD_WS, SRD_A, SRD_B, SRD_C = 4, 8, 12, 48
S_W, S_XCD, S_R, S_C, S_J, S_C64, S_J8, S_TAG, S_SAME, S_CNT = 38, 39, 40, 41, 42, 43, 44, 45, 46, 47
S_FREE = 52
S_LIM = 96
VLIM = 167 if STAMPS else 168
VST = 167
MFMA = 'v_mfma_f32_16x16x32_bf16'
MFMA32 = 'v_mfma_f32_32x32x16_bf16'

class St:
    n = 0
def stamp(a, real=False, sidx=None, cnt=1):
    if not STAMPS: return
    a(f'{"s_memrealtime" if real else "s_memtime"} s[98:99]')
    a('s_waitcnt lgkmcnt(0)')
    if sidx is None:
        a(f'v_writelane_b32 v{VST}, s98, {St.n}')
    else:
        a(f's_add_u32 m0, {s(sidx)}, {St.n}')
        a(f'v_writelane_b32 v{VST}, s98, m0')
    St.n += cnt
    assert St.n <= 64
stamp_ = stamp
def stamps_flush(a):
    if not STAMPS: return
    a('s_waitcnt vmcnt(0)')
    stamp(a); stamp(a, True)
    a(f'v_writelane_b32 v{VST}, {St.n}, 63')
    a(f's_mul_i32 s3, s2, 12')
    a(f's_add_u32 s3, s3, {s(S_W)}')
    a(f's_lshl_b32 s3, s3, 8')
    a(f's_add_u32 s3, s3, {WS_TS}')
    a('s_mov_b64 exec, -1')
    a('v_lshlrev_b32 v1, 2, v0')
    a(f'buffer_store_dword v{VST}, v1, {s(SRD_WS,4)}, s3 offen')

def srd(a, dst, ptr, size):
    a(f's_mov_b32 {s(dst)}, {s(ptr)}')
    a(f's_and_b32 {s(dst+1)}, {s(ptr+1)}, 0xffff')
    a(f's_mov_b32 {s(dst+2)}, {size}')
    a(f's_mov_b32 {s(dst+3)}, 0x00020000')

def bf16r(a, x):
    a(f'v_cvt_pk_bf16_f32 {v(x)}, {v(x)}, {v(x)}')
    a(f'v_lshlrev_b32 {v(x)}, 16, {v(x)}')

def xg_reduce(a, xs, tmps, op):
    for sw in ('v_permlane32_swap_b32', 'v_permlane16_swap_b32'):
        for x, t in zip(xs, tmps): a(f'v_mov_b32 {v(t)}, {v(x)}')
        for x, t in zip(xs, tmps): a(f'{sw} {v(x)}, {v(t)}')
        for x, t in zip(xs, tmps): a(f'{op} {v(x)}, {v(x)}, {v(t)}')

def ln_stats(vsum, vsq, t0, raw=False):
    L = []
    a = L.append
    inv = 0x3ACCCCCD
    a(f'v_mul_f32 {v(vsum)}, {hex(inv)}, {v(vsum)}')
    a(f'v_mul_f32 {v(vsq)}, {hex(inv)}, {v(vsq)}')
    a(f'v_fma_f32 {v(vsq)}, -{v(vsum)}, {v(vsum)}, {v(vsq)}')
    a(f'v_max_f32 {v(vsq)}, 0, {v(vsq)}')
    bf16r(a, vsq)
    a(f'v_add_f32 {v(vsq)}, 0x3727C5AC, {v(vsq)}')
    bf16r(a, vsq)
    a(f'v_sqrt_f32 {v(vsq)}, {v(vsq)}')
    bf16r(a, vsum)
    bf16r(a, vsq)
    a(f'v_rcp_f32 {v(t0)}, {v(vsq)}')
    if raw: return L
    a(f'v_mul_f32 {v(vsq)}, {v(vsum)}, {v(t0)}')
    a(f'v_mov_b32 {v(vsum)}, {v(t0)}')
    return L

DEFER = []
def dual(a, lines, bit=0):
    if env('SD', 0) & bit:
        for x in lines: a(x.replace('@', ' sc1'))
        return
    ls, lj = a.newlabel('slow'), a.newlabel('join')
    a(f's_cmp_eq_u32 {s(S_SAME)}, 0')
    a(f's_cbranch_scc1 {ls}')
    for x in lines: a(x.replace('@', os.environ.get('SB', '').replace('_', ' ')))
    a.label(lj)
    DEFER.append((ls, lj, [x.replace('@', ' sc1') for x in lines]))

def publish(a, vT, sFlag):
    a(f'v_mov_b32 {v(vT)}, {s(S_TAG)}')
    a(f's_mov_b64 exec, 1')
    a(f's_waitcnt vmcnt(0)')
    dual(a, [f'buffer_store_dword {v(vT)}, off, {s(SRD_WS,4)}, {s(sFlag)}@'])
    a(f's_mov_b64 exec, -1')

def poll(a, vF, vOff, sOff):
    lp, ld = a.newlabel('poll'), a.newlabel('polld')
    a(f's_mov_b32 {s(S_CNT)}, {SPIN}')
    a.label(lp)
    a(f'buffer_load_dword {v(vF)}, {v(vOff)}, {s(SRD_WS,4)}, {s(sOff)} offen sc1')
    a(f's_sub_u32 {s(S_CNT)}, {s(S_CNT)}, 1')
    a(f's_cbranch_scc1 {ld}')
    a(f's_waitcnt vmcnt(0)')
    a(f'v_cmp_ne_u32 vcc, {s(S_TAG)}, {v(vF)}')
    a(f's_cmp_lg_u64 vcc, 0')
    a(f's_cbranch_scc1 {lp}')
    a.label(ld)

TABS = {
 1: [list(range(10))] * 4,
 2: [list(range(10)), [5,6,7,8,9,0,1,2,3,4]] * 2,
 3: [[0,1,4,2,3,5,8,6,7,9], [0,2,1,3,6,4,5,7,9,8], [1,0,2,5,3,4,6,9,7,8], [1,3,0,2,4,7,5,6,8,9]],
 4: [[0,1,2,3,4,5,6,7,8,9], [1,2,3,0,5,6,7,4,9,8], [2,3,0,1,6,7,4,5,8,9], [3,0,1,2,7,4,5,6,9,8]],
 5: [[0,1,2,5,3,4,6,9,7,8], [0,2,1,3,6,4,5,7,8,9], [0,3,1,2,5,7,4,6,8,9], [0,1,4,2,3,5,8,6,7,9]],
}
def ord_init(a, sOrd, sT, inv=False):
    tab = [sum((i << (4 * c)) if inv else (c << (4 * i)) for i, c in enumerate(r)) for r in TABS[ROT]]
    a(f's_add_u32 {s(sT)}, {s(S_C64)}, {s(S_J8)}')
    a(f's_and_b32 {s(sT)}, {s(sT)}, 3')
    a(f's_mov_b32 {s(sOrd)}, {hex(tab[0] & 0xffffffff)}')
    a(f's_mov_b32 {s(sOrd+1)}, {hex(tab[0] >> 32)}')
    for q in range(1, 4):
        a(f's_cmp_eq_u32 {s(sT)}, {q}')
        a(f's_cselect_b32 {s(sOrd)}, {hex(tab[q] & 0xffffffff)}, {s(sOrd)}')
        a(f's_cselect_b32 {s(sOrd+1)}, {hex(tab[q] >> 32)}, {s(sOrd+1)}')
def ord_next(sOrd, dst, sT2):
    return [f's_and_b32 {s(dst)}, {s(sOrd)}, 15',
            f's_add_u32 {s(dst)}, {s(dst)}, {s(S_XCD)}',
            f's_sub_u32 {s(sT2)}, {s(dst)}, 10',
            f's_cselect_b32 {s(dst)}, {s(dst)}, {s(sT2)}',
            f's_lshr_b64 {s(sOrd,2)}, {s(sOrd,2)}, 4']

def nonce_load(a):
    a(f's_mov_b32 {s(S_TAG)}, {WS_FL}')
    a(f's_load_dword {s(S_TAG)}, {s(S_PWS,2)}, {s(S_TAG)}')
def nonce_to_tag(a):
    a(f's_and_b32 {s(S_TAG)}, {s(S_TAG)}, 0xfffffff8')
    a(f's_add_u32 {s(S_TAG)}, {s(S_TAG)}, 8')

def tr_patterns(a, vF, vH, t):
    a(f'v_bfe_u32 {v(t)}, v0, 2, 3')
    a(f'v_mul_u32_u24 {v(vF)}, {WROW}, {v(t)}')
    a(f'v_lshrrev_b32 {v(t)}, 5, v0')
    a(f'v_lshl_add_u32 {v(vF)}, {v(t)}, 7, {v(vF)}')
    if vH is not None:
        a(f'v_lshlrev_b32 {v(vH)}, 8, {v(t)}')
        a(f'v_bfe_u32 {v(t)}, v0, 4, 1')
        a(f'v_mul_u32_u24 {v(t)}, {WROW}, {v(t)}')
        a(f'v_add_u32 {v(vH)}, {v(t)}, {v(vH)}')
        a(f'v_bfe_u32 {v(t)}, v0, 2, 2')
        a(f'v_lshl_add_u32 {v(vH)}, {v(t)}, 6, {v(vH)}')
    a(f'v_and_b32 {v(t)}, 3, v0')
    a(f'v_lshl_add_u32 {v(vF)}, {v(t)}, 3, {v(vF)}')
    if vH is not None: a(f'v_lshl_add_u32 {v(vH)}, {v(t)}, 3, {v(vH)}')

class Cnt:
    def __init__(self, cap): self.q, self.cap, self.alias = [], cap, {}
    def add(self, tag, n=1): self.q += [tag] * n
    def after(self, pred):
        if not callable(pred): pred = self.alias.get(pred, pred)
        f = pred if callable(pred) else (lambda t: t == pred)
        idx = [i for i, t in enumerate(self.q) if f(t)]
        return min(len(self.q) - 1 - idx[-1], self.cap)

def w2_off(a, k, sQ6, sA, sB, sFb):
    if R2:
        a(f's_add_u32 {s(sA)}, {s(sQ6)}, {k}')
        a(f's_sub_u32 {s(sB)}, {s(sA)}, 24')
        a(f's_cselect_b32 {s(sA)}, {s(sA)}, {s(sB)}')
        a(f's_lshl_b32 {s(sB)}, {s(sA)}, 10')
        a(f's_mul_i32 {s(sA)}, {s(sA)}, {32*1280}')
        a(f's_add_u32 {s(sB)}, {s(sB)}, {s(sFb)}')
    else:
        a(f's_mov_b32 {s(sA)}, {32*k*1280}')
        a(f's_add_u32 {s(sB)}, {s(sFb)}, {k*1024}')
def row_pat(a, P, c1, c2, c3, rs, scol, t0, t1, t2, t3, dma=True):
    a(f'v_mul_u32_u24 {v(P[0])}, {c1*rs}, {v(t1)}')
    a(f'v_mul_u32_u24 {v(P[1])}, {c2*rs}, {v(t2)}')
    a(f'v_add3_u32 {v(P[0])}, {v(P[0])}, {v(P[1])}, {v(t0)}')
    a(f'v_mul_u32_u24 {v(P[1])}, {c3*rs}, {v(t3)}')
    a(f'v_add3_u32 {v(P[0])}, {v(P[0])}, {v(P[1])}, {s(scol)}')
    if dma: a(f'v_add_u32 {v(P[1])}, {rs - WROW}, {v(P[0])}')
def row_bits(a, sL, sT, sT2, t0, t1, t2, t3):
    a(f's_lshr_b32 {s(sT)}, {s(S_J8)}, 2')
    a(f's_add_u32 {s(sT)}, {s(sT)}, {s(S_J8)}')
    a(f's_lshl_b32 {s(sT)}, {s(sT)}, 7')
    a(f'v_and_b32 {v(t0)}, 7, v0')
    a(f'v_lshlrev_b32 {v(t0)}, 4, {v(t0)}')
    a(f'v_lshrrev_b32 {v(t1)}, 5, v0')
    a(f'v_bfe_u32 {v(t2)}, v0, 4, 1')
    a(f'v_bfe_u32 {v(t3)}, v0, 3, 1')
    a(f's_mul_i32 {s(sT2)}, {s(sL)}, 2560')
    a(f's_add_u32 {s(sT2)}, {s(sT2)}, {s(sT)}')

class Base:
    def __init__(self, a, regs, cur): self.a, self.regs, self.cur = a, regs, cur
    def off(self, addr, span):
        if not (self.cur <= addr and addr + span - self.cur <= 65536):
            for r in self.regs: self.a(f'v_add_u32 {v(r)}, {hex((addr - self.cur) & 0xffffffff)}, {v(r)}')
            self.cur = addr
        return addr - self.cur

import re
def scc_cuts(L):
    rd = lambda x: re.match(r's_(cselect|cbranch_scc|addc|subb|cmov)', x)
    wr = lambda x: x.startswith('s_') and not re.match(r's_(mov|mul_i32|cselect|cmov|waitcnt|nop|getreg|setprio)', x)
    ok = [True] * (len(L) + 1)
    live = False
    for i in range(len(L) - 1, -1, -1):
        if rd(L[i]): live = True
        elif wr(L[i]): live = False
        ok[i] = not live
    return ok

def claim(a, m, q, sL, sA, sB, vD, vL16):
    off = 0
    if m == 'D':
        a(f's_lshl2_add_u32 {s(sA)}, {s(S_C)}, {s(sL)}')
        a(f's_lshl_b32 {s(sA)}, {s(sA)}, 5')
        a(f's_add_u32 {s(sA)}, {s(sA)}, {s(S_J)}')
        a(f's_mul_i32 {s(sA)}, {s(sA)}, 3072')
        a(f's_add_u32 {s(sA)}, {s(sA)}, {WS_DF + 49152 * (q // 3)}')
        off = 1024 * (q % 3); assert q < 6
    elif m == 'S':
        a(f's_lshl2_add_u32 {s(sA)}, {s(S_C64)}, {s(sL)}')
        a(f's_lshl3_add_u32 {s(sA)}, {s(sA)}, {s(S_J8)}')
        a(f's_lshl_b32 {s(sA)}, {s(sA)}, 7')
        a(f's_add_u32 {s(sA)}, {s(sA)}, {WS_ST}')
        a(f's_mov_b64 exec, 0xff'); assert q < 1
    else:
        assert q < 3
        a(f's_lshl2_add_u32 {s(sA)}, {s(S_C64)}, {s(sL)}')
        a(f's_mul_i32 {s(sA)}, {s(sA)}, 40')
        a(f's_and_b32 {s(sB)}, {s(S_J8)}, 4')
        if q < 2:
            a(f's_lshl2_add_u32 {s(sA)}, {s(S_J8)}, {s(sA)}')
            a(f's_add_u32 {s(sA)}, {s(sA)}, {s(sB)}')
            off = 1024 * q
        else:
            a(f's_lshl2_add_u32 {s(sA)}, {s(sB)}, {s(sA)}')
            a(f's_add_u32 {s(sA)}, {s(sA)}, {s(S_J8)}')
            a(f's_add_u32 {s(sA)}, {s(sA)}, 16')
            a(f's_mov_b32 exec_hi, 0')
        a(f's_lshl_b32 {s(sA)}, {s(sA)}, 9')
        if m == 'H': a(f's_add_u32 {s(sA)}, {s(sA)}, {WS_HF}')
    if env('CLD', 1): a(f'buffer_load_dwordx4 {v(vD,4)}, {v(vL16)}, {s(SRD_WS,4)}, {s(sA)} offen offset:{off} sc1')
    else: a(f'buffer_store_dwordx4 {v(vD,4)}, {v(vL16)}, {s(SRD_WS,4)}, {s(sA)} offen offset:{off} sc1')
    a('s_mov_b64 exec, -1')

SS = env('SS', 64)
def region(m, sL, sA, sB, nw):
    L = []
    a = L.append
    if m in 'oab':
        ptr, nb = {'o': (S_PWO, 640 * 1280), 'a': (S_PW1, 640 * 3072), 'b': (S_PW2, 1536 * 1280)}[m]
        P = -(-nb // (128 * 256 * nw)) * 128
        a(f's_mul_i32 {s(sA)}, s2, {nw}')
        a(f's_add_u32 {s(sA)}, {s(sA)}, {s(sL)}')
        a(f's_mul_i32 {s(sA)}, {s(sA)}, {P}')
        a(f's_min_u32 {s(sA)}, {s(sA)}, {nb - P}')
        return [(L, ptr, list(range(0, P, SS)))]
    if m == 'x':
        a(f's_lshl3_add_u32 {s(sA)}, {s(S_C64)}, {s(S_J8)}')
        a(f's_lshl3_add_u32 {s(sA)}, {s(sA)}, {s(sL)}')
        a(f's_mul_i32 {s(sA)}, {s(sA)}, 1280')
        return [(L, S_PX, list(range(0, 1280, SS)))]
    R = []
    for q, nb in {'D': ((0, 3072), (3, 3072)), 'S': ((0, 128),), 'O': ((0, 2048), (2, 512)), 'H': ((0, 2048), (2, 512))}[m]:
        L = []
        claim(L.append, m, q, sL, sA, sB, 0, 0)
        R.append(([x for x in L if 'exec' not in x and 'buffer' not in x], S_PWS, list(range(0, nb, SS))))
    return R
class Touch:
    def __init__(self, a, spec, sL, sA, sB, sJ, nw):
        self.a, self.sA, self.sJ = a, sA, sJ
        self.q = [r for m in spec for r in region(m, sL, sA, sB, nw)]
    def go(self, n):
        while n and self.q:
            L, ptr, offs = self.q[0]
            for x in L: self.a(x)
            while n and offs:
                self.a(f's_load_dword {s(self.sJ)}, {s(ptr,2)}, {s(self.sA)} offset:{offs.pop(0)}'); n -= 1
            if not offs: self.q.pop(0)

STG = list(range(env('ST0', 11), env('ST0', 11) + NSTG))
YB = [int(x) for x in os.environ.get('YB', '2,6,14,20').split(',')]
YI, _lo = [], 11
for _j in range(len(YB)):
    _hi = min(15 + (YB[_j-1] if _j else 0), 24)
    _kw = YB[_j+1] if _j + 1 < len(YB) else 23
    assert _kw < _hi
    YI.append((_lo, _hi, _kw)); _lo = _hi

def loader(a):
    stamp = stamp_
    sa = Alloc('s', S_FREE, S_LIM)
    va = Alloc('v', 1, VLIM)
    sL, sT, sT2, sI, sOffW, sOffX, sMW, sMX, sMH, sSlot, sXm = [sa() for _ in range(11)]
    sOrd = sa(2); sHm = sa(2)
    SRD_D = sa(4)
    vL16 = va()
    t0, t1, t2, t3 = va(), va(), va(), va()
    pA, pB, pC = [[va(), va()] for _ in range(3)]
    pD, pE, vWf, vWh, vB1, vCp = [va() for _ in range(6)]
    vDm = va(4, 2)
    selF, selH, accC = va(4, 2), va(4, 2), va(4, 2)
    u0 = va.n
    stg = [va(4, 2) for _ in range(30)]
    va.release(u0)
    vW = [va() for _ in range(8)]
    vX = [va() for _ in range(3)]
    vN, vF, vFo, vU, vTg = va(), va(), va(), va(), va()
    sPf = sa()
    WMASK = '0x3fffffff'
    if PRIO: a(f's_setprio {PRIO}')
    a(f's_sub_u32 {s(sL)}, {s(S_W)}, 8')
    a(f'v_lshrrev_b32 {v(t0)}, 3, v0')
    a(f'v_lshrrev_b32 {v(t1)}, 4, v0')
    a(f'v_and_b32 {v(t2)}, 7, v0')
    a(f'v_xor_b32 {v(t1)}, {v(t1)}, {v(t2)}')
    a(f's_lshr_b32 {s(sT)}, {s(sL)}, 1')
    a(f's_lshl_b32 {s(sT2)}, {s(S_C64)}, 6')
    a(f's_add_u32 {s(sT2)}, {s(sT2)}, {s(sT)}')
    a(f's_and_b32 {s(sT)}, {s(sL)}, 1')
    a(f's_lshl3_add_u32 {s(sMH)}, {s(sT)}, {s(sT2)}')
    a(f's_sub_u32 {s(sMH)}, {s(sMH)}, 16')
    a(f's_lshl_b32 {s(sT)}, {s(sT)}, 5')
    a(f's_add_u32 {s(sT2)}, {s(sT2)}, {s(sT)}')
    a(f'v_lshl_add_u32 {v(t2)}, {v(t0)}, 1, {s(sT2)}')
    a(f'v_lshl_add_u32 {v(t3)}, {v(t0)}, 1, {s(sMH)}')
    a(f'v_mul_u32_u24 {v(t2)}, 1280, {v(t2)}')
    a(f'v_max_i32 {v(t3)}, 0, {v(t3)}')
    a(f'v_lshl_add_u32 {v(vX[0])}, {v(t1)}, 4, {v(t2)}')
    a(f'v_mul_u32_u24 {v(t3)}, 1280, {v(t3)}')
    a(f'v_xor_b32 {v(vX[1])}, 64, {v(vX[0])}')
    a(f's_lshl_b32 {s(sT)}, {s(sL)}, 1')
    a(f'v_xor_b32 {v(t1)}, {s(sT)}, {v(t1)}')
    a(f'v_add_u32 {v(vX[1])}, {16*1280 - 1024}, {v(vX[1])}')
    a(f'v_lshl_add_u32 {v(vX[2])}, {v(t1)}, 4, {v(t3)}')
    a(f's_cmp_eq_u32 {s(sL)}, 0')
    a(f's_cselect_b32 {s(sXm)}, 0xffffff00, -1')
    a(f's_lshl_b32 {s(sMX)}, {s(sL)}, 11')
    a(f's_add_u32 {s(sMX)}, {s(sMX)}, {XIMG}')
    a(f's_lshl_b32 {s(sMH)}, {s(sL)}, 9')
    a(f's_add_u32 {s(sMH)}, {s(sMH)}, {XIMG + 8192}')
    ord_init(a, sOrd, sT)
    nxt = ord_next(sOrd, sOffX, sOffW) + [f's_mul_i32 {s(sOffW)}, {s(sOffX)}, {64*3840}', f's_lshl_b32 {s(sOffX)}, {s(sOffX)}, 7']
    for x in nxt: a(x)
    a(f'v_and_b32 {v(t0)}, 31, v0')
    a(f'v_lshrrev_b32 {v(t1)}, 5, v0')
    a(f'v_mul_u32_u24 {v(t2)}, 26, {v(t0)}')
    a(f'v_lshrrev_b32 {v(t2)}, 8, {v(t2)}')
    a(f'v_mul_u32_u24 {v(t2)}, 1120, {v(t2)}')
    a(f'v_lshl_add_u32 {v(t2)}, {v(t0)}, 4, {v(t2)}')
    a(f'v_mul_u32_u24 {v(t3)}, {32*3840}, {v(t1)}')
    a(f's_mul_i32 {s(sT)}, {s(S_J8)}, 160')
    a(f's_mul_i32 {s(sT2)}, {s(sL)}, {8*3840}')
    a(f's_add_u32 {s(sT)}, {s(sT)}, {s(sT2)}')
    a(f'v_add3_u32 {v(vW[0])}, {v(t2)}, {v(t3)}, {s(sT)}')
    for i in range(1, 8):
        a(f'v_add_u32 {v(vW[i])}, {i*3840 - (i&3)*WROW}, {v(vW[0])}')
    a(f's_lshr_b32 {s(sMW)}, {s(sL)}, 1')
    a(f's_lshl_b32 {s(sMW)}, {s(sMW)}, 2')
    a(f's_and_b32 {s(sT2)}, {s(sL)}, 1')
    a(f's_add_u32 {s(sMW)}, {s(sMW)}, {s(sT2)}')
    a(f's_mul_i32 {s(sMW)}, {s(sMW)}, {4*WROW}')
    a(f's_mov_b32 {s(sSlot)}, 0')
    a(f's_waitcnt lgkmcnt(0)')
    srd(a, SRD_B, S_PX, 2048 * 1280)
    srd(a, SRD_A, S_PWQKV, 640 * 3840)

    def chunk_dma():
        P = []
        P.append([f's_add_u32 m0, {s(sSlot)}, {s(sMX)}', 's_mov_b64 exec, -1',
                  f'buffer_load_dwordx4 {v(vX[0])}, {s(SRD_B,4)}, {s(sOffX)} offen lds',
                  f'buffer_load_dwordx4 {v(vX[1])}, {s(SRD_B,4)}, {s(sOffX)} offen offset:1024 lds',
                  f's_add_u32 m0, {s(sSlot)}, {s(sMH)}', f's_mov_b32 exec_lo, {s(sXm)}', 's_mov_b32 exec_hi, 0',
                  f'buffer_load_dwordx4 {v(vX[2])}, {s(SRD_B,4)}, {s(sOffX)} offen lds'])
        P.append([f's_add_u32 m0, {s(sSlot)}, {s(sMW)}', f's_mov_b32 exec_lo, {WMASK}', f's_mov_b32 exec_hi, {WMASK}'])
        for i in range(8):
            p = []
            if i == 4: p += [f's_add_u32 m0, m0, {8*WROW}', 's_nop 0']
            p.append(f'buffer_load_dwordx4 {v(vW[i])}, {s(SRD_A,4)}, {s(sOffW)} offen offset:{(i&3)*WROW} lds')
            P.append(p)
        P.append(['s_mov_b64 exec, -1'] + nxt + [f's_add_u32 {s(sSlot)}, {s(sSlot)}, {SLOT}',
                  f's_cmp_eq_u32 {s(sSlot)}, {3*SLOT}',
                  f's_cselect_b32 {s(sSlot)}, 0, {s(sSlot)}'])
        return P
    NCH = 11
    Q0, Q1, Q2 = env('Q0', 5), env('Q1', 7), env('Q2', 9)
    qn = lambda q: q + 2 if q else 0
    fillq = []
    def emit(lo, hi, per=0):
        P = chunk_dma()
        wm = P[1][1:]
        for q in range(lo, hi):
            if q == 0:
                for x in P[0]: a(x)
            else:
                if q == 1 or q == lo:
                    for x in P[1]: a(x)
                    if q > 5: a(f's_add_u32 m0, m0, {8*WROW}'); a('s_nop 0')
                for x in P[q + 1]: a(x)
            if per and fillq:
                a('s_mov_b64 exec, -1')
                n = per
                ok = scc_cuts(fillq)
                while n < len(fillq) and not ok[n]: n += 1
                for x in fillq[:n]: a(x)
                del fillq[:n]
                if 0 < q < hi - 1:
                    for x in wm: a(x)
        if hi == 9 and lo < 9:
            for x in P[-1]: a(x)
        else: a('s_mov_b64 exec, -1')
    stamp(a)
    emit(0, 9)
    stamp(a)
    nonce_load(a)
    emit(0, Q0)
    stamp(a)
    real_a, unit = a, []
    class LB_:
        def __call__(self, x): unit.append(x)
        def label(self, l): unit.append(l + ':')
        def newlabel(self, x): return real_a.newlabel(x)
    a = LB_()
    sBase, sG, sJs, sD, sFlag = [sa() for _ in range(5)]
    l_w2, l_go, l_no = a.newlabel('cw2'), a.newlabel('cgo'), a.newlabel('cno')
    srd(a, SRD_C, S_PWO, 640 * 1280)
    srd(a, SRD_D, S_PW2, 1536 * 1280)
    a(f's_cmp_ge_u32 s2, 136')
    a(f's_cbranch_scc1 {l_no}')
    a(f's_and_b32 {s(sD)}, s2, 1')
    a(f's_lshl2_add_u32 {s(sFlag)}, {s(sD)}, {s(sL)}')
    a(f's_mul_i32 {s(sD)}, {s(sD)}, 640')
    a(f'v_and_b32 {v(t0)}, 7, v0')
    a(f'v_lshlrev_b32 {v(t0)}, 4, {v(t0)}')
    a(f'v_add3_u32 {v(t0)}, {v(t0)}, {s(sD)}, 64')
    a(f'v_lshrrev_b32 {v(t1)}, 5, v0')
    a(f'v_bfe_u32 {v(t2)}, v0, 3, 2')
    a(f's_lshl_b32 {s(sT)}, {s(sL)}, 10')
    a(f's_add_u32 m0, {s(sT)}, {L_STAGE - 448}')
    a(f's_cmp_ge_u32 s2, 40')
    a(f's_cbranch_scc1 {l_w2}')
    a(f's_lshr_b32 {s(sT)}, s2, 1')
    a(f's_cmp_ge_u32 {s(sT)}, 10')
    a(f's_cselect_b32 {s(sT2)}, 10, 0')
    a(f's_cselect_b32 {s(sBase)}, 320, 0')
    a(f's_sub_u32 {s(sT2)}, {s(sT)}, {s(sT2)}')
    a(f's_mul_i32 {s(sG)}, {s(sT2)}, 40')
    a(f's_mul_i32 {s(sJs)}, {s(sT2)}, 160')
    a(f's_sub_u32 {s(sJs)}, {s(sJs)}, {8*160-16}')
    a(f's_cmp_lt_u32 {s(sT2)}, 8')
    a(f's_cselect_b32 {s(sG)}, {s(sG)}, {s(sJs)}')
    a(f's_cselect_b32 {s(sJs)}, 4, 40')
    a(f's_add_u32 {s(sBase)}, {s(sBase)}, {s(sG)}')
    a(f's_mul_i32 {s(sJs)}, {s(sJs)}, {s(sL)}')
    a(f's_add_u32 {s(sBase)}, {s(sBase)}, {s(sJs)}')
    a(f's_mul_i32 {s(sBase)}, {s(sBase)}, 1280')
    a(f'v_mad_u32_u24 {v(t1)}, {v(t1)}, 20, {v(t2)}')
    a(f'v_mul_u32_u24 {v(t1)}, 1280, {v(t1)}')
    a(f'v_add_u32 {v(t0)}, {v(t0)}, {v(t1)}')
    a(f'buffer_load_dwordx4 {v(t0)}, {s(SRD_C,4)}, {s(sBase)} offen offset:448 lds')
    a(f's_mul_i32 {s(sD)}, {s(sFlag)}, 20')
    a(f's_add_u32 {s(sD)}, {s(sD)}, {WS_WO4 >> 10}')
    a(f's_lshl_b32 {s(sFlag)}, {s(sFlag)}, 7')
    a(f's_add_u32 {s(sFlag)}, {s(sFlag)}, {FL_WO}')
    a(f's_branch {l_go}')
    a.label(l_w2)
    a(f's_sub_u32 {s(sT)}, s2, 40')
    a(f's_lshr_b32 {s(sT)}, {s(sT)}, 1')
    a(f's_and_b32 {s(sG)}, {s(sL)}, 2')
    a(f's_add_u32 {s(sG)}, {s(sG)}, {s(sL)}')
    a(f's_lshl3_add_u32 {s(sBase)}, {s(sT)}, {s(sG)}')
    a(f's_mul_i32 {s(sBase)}, {s(sBase)}, {4*1280}')
    a(f'v_lshl_add_u32 {v(t1)}, {v(t1)}, 3, {v(t2)}')
    a(f'v_mul_u32_u24 {v(t1)}, 1280, {v(t1)}')
    a(f'v_add_u32 {v(t0)}, {v(t0)}, {v(t1)}')
    a(f'buffer_load_dwordx4 {v(t0)}, {s(SRD_D,4)}, {s(sBase)} offen offset:448 lds')
    a(f's_mul_i32 {s(sD)}, {s(sFlag)}, 48')
    a(f's_add_u32 {s(sD)}, {s(sD)}, {WS_W24 >> 10}')
    a(f's_lshl_b32 {s(sFlag)}, {s(sFlag)}, 8')
    a(f's_add_u32 {s(sFlag)}, {s(sFlag)}, {FL_W2}')
    a.label(l_go)
    a(f's_lshl2_add_u32 {s(sFlag)}, {s(sT)}, {s(sFlag)}')
    a(f's_add_u32 {s(sD)}, {s(sD)}, {s(sT)}')
    a(f's_lshl_b32 {s(sD)}, {s(sD)}, 10')
    a.label(l_no)
    a = real_a
    fS = [[va(4, 4) for st in range(2)] for tl in range(2)]
    accG = [va(4, 4) for _ in range(2)]; accS = [va(4, 4) for _ in range(2)]
    vOne = va(4, 4)
    vS = [va(), va()]; vSh = [va(), va()]
    F = va(8, 4)
    sFo, sRd = sa(), sa()
    p1hi = va.n
    a(f'v_and_b32 {v(t0)}, 15, v0')
    a(f'v_lshrrev_b32 {v(t1)}, 4, v0')
    a(f'v_lshrrev_b32 {v(t2)}, 1, {v(t0)}')
    a(f'v_xor_b32 {v(t2)}, {v(t2)}, {v(t1)}')
    a(f'v_lshlrev_b32 {v(t2)}, 4, {v(t2)}')
    a(f'v_lshl_add_u32 {v(t2)}, {v(t0)}, 7, {v(t2)}')
    a(f'v_add_u32 {v(vS[0])}, {s(sMX)}, {v(t2)}')
    a(f'v_add_u32 {v(vSh[0])}, {XIMG + 8192}, {v(t2)}')
    a(f'v_xor_b32 {v(vS[1])}, 64, {v(vS[0])}')
    a(f'v_xor_b32 {v(vSh[1])}, 64, {v(vSh[0])}')
    for r in range(4): a(f'v_mov_b32 {v(vOne+r)}, 0x3f803f80')
    a(f's_mov_b32 {s(sRd)}, 0')
    def stat_reads():
        for st in range(2): a(f'ds_read_b128 {v(fS[0][st],4)}, {v(vS[st])}')
        for st in range(2): a(f'ds_read_b128 {v(fS[1][st],4)}, {v(vSh[st])}')
    def stat_mfma(first=False, last=False):
        if not last:
            a(f's_add_u32 {s(sRd)}, {s(sRd)}, {SLOT}')
            a(f's_cmp_eq_u32 {s(sRd)}, {3*SLOT}')
            a(f's_cselect_b32 {s(sRd)}, 0, {s(sRd)}')
            a(f's_movk_i32 {s(sI)}, {SLOT//16}'); a(f's_cmovk_i32 {s(sI)}, {(-2*SLOT//16) & 0xffff}'); a(f's_mul_i32 {s(sI)}, {s(sI)}, 16')
            for r in vS + vSh: a(f'v_add_u32 {v(r)}, {s(sI)}, {v(r)}')
        a(f's_waitcnt lgkmcnt(0)')
        for st in range(2):
            for tl in range(2):
                z = first and st == 0
                a(f'{MFMA} {v(accG[tl],4)}, {v(fS[tl][st],4)}, {v(fS[tl][st],4)}, {"0" if z else v(accG[tl],4)}')
                a(f'{MFMA} {v(accS[tl],4)}, {v(vOne,4)}, {v(fS[tl][st],4)}, {"0" if z else v(accS[tl],4)}')
    def put_unit():
        for x in unit:
            if x.endswith(':'): a.label(x[:-1])
            else: a(x)
    UE = env('UE', 1)
    if UE:
        lu = a.newlabel('ue')
        unit.insert(-1, f's_branch {lu}')
        put_unit()
        a(f's_waitcnt vmcnt({qn(Q0)})')
        a.label(lu)
    a(f's_waitcnt vmcnt({qn(Q0) + UE}) lgkmcnt(0)')
    stamp(a)
    a(f's_barrier')
    stat_reads()
    emit(Q0, 9)
    if not UE: put_unit()
    late = []
    real_a, a = a, late.append
    srd(a, SRD_WS, S_PWS, WS_SIZE)
    a(f'v_lshlrev_b32 {v(vL16)}, 4, v0')
    a(f'v_lshrrev_b32 {v(t0)}, 4, v0')
    a(f'v_lshlrev_b32 {v(t0)}, 10, {v(t0)}')
    a(f'v_bfe_u32 {v(t1)}, v0, 2, 2')
    a(f'v_lshl_add_u32 {v(t0)}, {v(t1)}, 7, {v(t0)}')
    a(f'v_and_b32 {v(t1)}, 3, v0')
    a(f'v_lshl_add_u32 {v(t0)}, {v(t1)}, 3, {v(t0)}')
    a(f's_lshl_b32 {s(sT)}, {s(sL)}, 5')
    a(f's_add_u32 {s(sT)}, {s(sT)}, {L_STAGE}')
    a(f'v_add_u32 {v(vU)}, {s(sT)}, {v(t0)}')
    a(f'v_mov_b32 {v(vTg)}, {L_TAG}')
    nonce_to_tag(a)
    a(f'v_mov_b32 {v(vN)}, {s(S_TAG)}')
    SRD_E = S_PX
    srd(a, SRD_E, S_PW1, 640 * 3072)
    nearly = len(late)
    a(f's_lshl_b32 {s(sFo)}, {s(S_J8)}, 8')
    a(f's_add_u32 {s(sFo)}, {s(sFo)}, {FL_W2}')
    a(f's_mov_b32 {s(sT2)}, 47')
    a(f's_lshl_b32 {s(sT)}, {s(S_J8)}, 7')
    a(f's_add_u32 {s(sT)}, {s(sT)}, {FL_WO}')
    a(f's_cmp_eq_u32 {s(sL)}, 1')
    a(f's_cselect_b32 {s(sFo)}, {s(sT)}, {s(sFo)}')
    a(f's_cselect_b32 {s(sT2)}, 19, {s(sT2)}')
    a(f's_lshl_b32 {s(sT)}, {s(S_C)}, 6')
    a(f's_add_u32 {s(sT)}, {s(sT)}, {FL_HELLO}')
    a(f's_cmp_eq_u32 {s(sL)}, 0')
    a(f's_cselect_b32 {s(sFo)}, {s(sT)}, {s(sFo)}')
    a(f's_cselect_b32 {s(sT2)}, 15, {s(sT2)}')
    a(f'v_min_u32 {v(vFo)}, {s(sT2)}, v0')
    a(f'v_lshlrev_b32 {v(vFo)}, 2, {v(vFo)}')
    sM2, sMf, sFo4, sF24, sQ2, sQ6, sR1 = sBase, sG, sJs, sa(), sa(), sa(), sa()
    row_bits(a, sL, sT, sT2, t0, t1, t2, t3)
    row_pat(a, pA, 320, 20, 8, 1280, sT2, t0, t1, t2, t3)
    row_pat(a, pC, 768, 8, 16, 1280, sT2, t0, t1, t2, t3)
    a(f's_lshr_b32 {s(sT)}, {s(sL)}, 1')
    a(f's_sub_u32 {s(sHm)}, {s(sT)}, 1')
    a(f's_not_b32 {s(sHm+1)}, {s(sHm)}')
    a(f's_mul_i32 {s(sT)}, {s(sT)}, {36*1280}')
    a(f's_add_u32 {s(sT2)}, {s(sT2)}, {s(sT)}')
    a(f's_add_u32 {s(sT2)}, {s(sT2)}, {16*1280}')
    row_pat(a, pB, 320, 20, 80, 1280, sT2, t0, t1, t2, t3)
    a(f's_mul_i32 {s(sT)}, {s(S_J)}, 192')
    a(f's_mul_i32 {s(sT2)}, {s(sL)}, {16*3072}')
    a(f's_add_u32 {s(sT)}, {s(sT)}, {s(sT2)}')
    a(f's_bitcmp1_b32 {s(S_J)}, 0')
    a(f's_cselect_b32 {s(sT2)}, 64, 0')
    a(f's_cselect_b32 {s(sM2)}, 0, 128')
    a(f's_cselect_b32 {s(sMf)}, 16, 0')
    a(f's_add_u32 {s(sT2)}, {s(sT2)}, {s(sT)}')
    a(f's_add_u32 {s(sT)}, {s(sM2)}, {s(sT)}')
    a(f'v_lshrrev_b32 {v(t1)}, 3, v0')
    a(f'v_mul_u32_u24 {v(t1)}, 3072, {v(t1)}')
    a(f'v_add3_u32 {v(pD)}, {v(t1)}, {v(t0)}, {s(sT2)}')
    a(f'v_lshrrev_b32 {v(t1)}, 2, v0')
    a(f'v_mul_u32_u24 {v(t1)}, 3072, {v(t1)}')
    a(f'v_and_b32 {v(t0)}, 0x30, {v(t0)}')
    a(f'v_add3_u32 {v(pE)}, {v(t1)}, {v(t0)}, {s(sT)}')
    a(f'v_lshlrev_b32 {v(t2)}, 6, {v(t2)}')
    a(f'v_xor_b32 {v(t2)}, {v(t2)}, {v(vL16)}')
    a(f's_lshl_b32 {s(sT)}, {s(sL)}, 11')
    a(f'v_add_u32 {v(vWf)}, {s(sT)}, {v(t2)}')
    a(f's_lshl_b32 {s(sT)}, {s(sL)}, 10')
    a(f'v_add_u32 {v(vWh)}, {s(sT)}, {v(vL16)}')
    a(f'v_add_u32 {v(t0)}, {s(sMf)}, v0')
    a(f'v_subrev_u32 {v(t1)}, 48, {v(t0)}')
    a(f'v_min_u32 {v(t0)}, {v(t0)}, {v(t1)}')
    a(f'v_lshlrev_b32 {v(vB1)}, 2, {v(t0)}')
    a(f'v_and_b32 {v(t0)}, 1, v0')
    a(f'v_lshlrev_b32 {v(t0)}, 4, {v(t0)}')
    a(f'v_lshlrev_b32 {v(t0)}, {v(t0)}, {v(vOne)}')
    a(f'v_bfe_u32 {v(t1)}, v0, 0, 1')
    a(f'v_add_u32 {v(t1)}, -1, {v(t1)}')
    a(f'v_lshlrev_b32 {v(t1)}, 16, {v(t1)}')
    a(f'v_bfi_b32 {v(t0)}, {v(t1)}, 0, {v(t0)}')
    a(f'v_bfe_u32 {v(t1)}, v0, 1, 3')
    for r in range(8):
        a(f'v_cmp_eq_u32 vcc, {r}, {v(t1)}')
        a(f'v_cndmask_b32 {v(selF + r if r < 4 else selH + r - 4)}, 0, {v(t0)}, vcc')
    a(f'v_and_b32 {v(t0)}, 15, v0')
    a(f'v_lshlrev_b32 {v(t0)}, 5, {v(t0)}')
    a(f'v_and_b32 {v(t1)}, 16, v0')
    a(f'v_and_b32 {v(t2)}, 32, v0')
    a(f'v_lshl_add_u32 {v(t1)}, {v(t2)}, 3, {v(t1)}')
    a(f's_mul_i32 {s(sT)}, {s(sL)}, 384')
    a(f's_add_u32 {s(sT)}, {s(sT)}, {L_CSP}')
    a(f'v_add3_u32 {v(vCp)}, {v(t0)}, {v(t1)}, {s(sT)}')
    a(f's_mul_i32 {s(sM2)}, {s(sL)}, {2*WROW}')
    a(f's_and_b32 {s(sT)}, {s(sL)}, 1')
    a(f's_lshl_b32 {s(sMf)}, {s(sT)}, 10')
    a(f's_lshl1_add_u32 {s(sT)}, {s(S_J8)}, {s(sT)}')
    a(f's_mul_i32 {s(sFo4)}, {s(sT)}, 10240')
    a(f's_add_u32 {s(sFo4)}, {s(sFo4)}, {WS_WO4}')
    a(f's_mul_i32 {s(sF24)}, {s(sT)}, 24576')
    a(f's_add_u32 {s(sF24)}, {s(sF24)}, {WS_W24}')
    a(f's_and_b32 {s(sT)}, {s(S_C64)}, 3')
    a(f's_lshl_b32 {s(sQ2)}, {s(sT)}, 1')
    a(f's_mul_i32 {s(sQ6)}, {s(sT)}, 6')
    a(f's_and_b32 {s(sT)}, {s(S_C)}, 1')
    a(f's_mul_i32 {s(sR1)}, {s(sT)}, {5*64*3072}')
    a = real_a
    fillq += late
    FP = env('FP', 4)
    emit(0, Q1, env('FP0', 3))
    while len(late) - len(fillq) < nearly or not scc_cuts(fillq)[0]: a(fillq.pop(0))
    stat_mfma(first=True)
    SP, SN, S0 = os.environ.get('SP', ''), env('SN', 15), env('S0', 1)
    tch = Touch(a, SP, sL, sI, sPf, S_CNT, 4)
    if SP: stamp = lambda *x, **k: None
    if S0 <= 0: tch.go(SN)
    a(f's_waitcnt vmcnt({qn(Q1)})')
    stamp(a)
    a(f's_barrier')
    stat_reads()
    for jh in range(2):
        a(f'ds_read_b64_tr_b16 {v(F+2*jh,2)}, {v(vU)} offset:{512*jh}')
    emit(Q1, 9, env('FP1', 0))
    emit(0, Q2, env('FP1', 0))
    stat_mfma()
    if S0 <= 1: tch.go(SN)
    a(f's_waitcnt vmcnt({qn(Q2)})')
    stamp(a)
    pfn = {x: 0 for x in 'oabOHDSF'}
    def touch(L):
        n = 0
        for m in L:
            if m in 'OHDSF':
                q = pfn[m]; pfn[m] += 1; n += 1
                if m == 'F':
                    a(f'v_lshrrev_b32 {v(vDm)}, 2, v0')
                    a(f'v_lshlrev_b32 {v(vDm)}, 7, {v(vDm)}')
                    a(f'v_and_or_b32 {v(vDm)}, v0, 3, {v(vDm)}')
                    a(f'v_lshlrev_b32 {v(vDm)}, 7, {v(vDm)}')
                    a(f's_lshl_b32 {s(sI)}, {s(S_C)}, 9')
                    a(f's_add_u32 {s(sI)}, {s(sI)}, {FL_1}')
                    a(f's_mov_b64 exec, 0xfff')
                    a(f'buffer_load_dword {v(vDm)}, {v(vDm)}, {s(SRD_WS,4)}, {s(sI)} offen sc1')
                    a('s_mov_b64 exec, -1')
                    continue
                claim(a, m, q, sL, sI, sPf, vDm, vL16)
                continue
            n += 1
            sr, nb = {'o': (SRD_C, 800), 'a': (SRD_E, 1920), 'b': (SRD_D, 1920)}[m]
            ln = 50 if m == 'o' else 60
            a(f's_lshl2_add_u32 {s(sI)}, s2, {s(sL)}')
            a(f's_mul_i32 {s(sI)}, {s(sI)}, {nb}')
            a(f's_mov_b32 exec_hi, {hex((1 << (ln - 32)) - 1)}')
            a(f'buffer_load_dwordx4 {v(vDm,4)}, {v(vL16)}, {s(sr,4)}, {s(sI)} offen offset:{pfn[m] * ln * 16}')
            pfn[m] += 1
            assert pfn[m] * ln * 16 <= nb
        if L: a('s_mov_b64 exec, -1')
        return n

    vm = Cnt(63)
    def thr(n):
        if n: a(f's_waitcnt vmcnt({n-1})')
    def blk(kind, k, th=0):
        if kind == 'o':
            P, sr, lb = (pA if k < 8 else pB), SRD_C, L_WO[k]
            if RO and k < 8:
                a(f's_add_u32 {s(sT)}, {s(sQ2)}, {k}')
                a(f's_and_b32 {s(sT)}, {s(sT)}, 7')
                a(f's_lshl_b32 {s(sT2)}, {s(sT)}, 10')
                a(f's_mul_i32 {s(sT)}, {s(sT)}, {40*1280}')
                a(f's_add_u32 {s(sT2)}, {s(sT2)}, {s(sFo4)}')
            else:
                a(f's_mov_b32 {s(sT)}, {(40*k if k < 8 else 160*(k-8))*1280}')
                a(f's_add_u32 {s(sT2)}, {s(sFo4)}, {k*1024}')
        else:
            P, sr, lb = pC, SRD_D, L_W2[k]
            w2_off(a, k, sQ6, sT, sT2, sF24)
        a(f's_add_u32 m0, {s(sM2)}, {lb}')
        for e in range(2):
            thr(th)
            a(f'buffer_load_dwordx4 {v(P[e])}, {s(sr,4)}, {s(sT)} offen offset:{e*WROW} lds')
        a(f's_add_u32 m0, {s(sMf)}, {lb + 8*WROW}')
        a(f's_mov_b64 exec, {s(sHm,2)}')
        if env('NOFR', 0): a(f'buffer_load_dwordx4 {v(vL16)}, {s(sr,4)}, {s(sT)} offen lds')
        else: a(f'buffer_load_dwordx4 {v(vL16)}, {s(SRD_WS,4)}, {s(sT2)} offen sc1 lds')
        a(f's_mov_b64 exec, -1')
        vm.add((kind, k), 3)
    def blk1(c, th=0):
        if R1: a(f's_add_u32 {s(sT)}, {s(sR1)}, {64*c*3072}' if c < 5 else f's_sub_u32 {s(sT)}, {64*c*3072}, {s(sR1)}')
        else: a(f's_mov_b32 {s(sT)}, {64*c*3072}')
        a(f's_add_u32 {s(sT2)}, {s(sT)}, {8*3072}')
        for e in range(3):
            thr(th)
            a(f'buffer_load_dwordx4 {v(stg[3*c+e],4)}, {v(pD if e < 2 else pE)}, {s(SRD_A,4)}, {s(sT2 if e == 1 else sT)} offen')
        vm.add(('1', c), 3)
    SH = env('SH', 5)
    for it in range(2, 8):
        a(f's_barrier')
        if it > SH: a(f's_waitcnt vmcnt(8)')
        stat_reads()
        if it == 2: emit(Q2, 9, FP)
        if it in (2, 4):
            lsk = a.newlabel('ev')
            a(f's_cmp_ge_u32 s2, 136')
            a(f's_cbranch_scc1 {lsk}')
            if it == 2: a(f'buffer_store_dwordx4 {v(F,4)}, {v(vL16)}, {s(SRD_WS,4)}, {s(sD)} offen sc1')
            else:
                a(f's_mov_b64 exec, 1')
                a(f'buffer_store_dword {v(vN)}, off, {s(SRD_WS,4)}, {s(sFlag)} sc1')
                a(f's_mov_b64 exec, -1')
            a.label(lsk)
        if it == 6:
            assert not fillq
            a(f'buffer_load_dword {v(vF)}, {v(vFo)}, {s(SRD_WS,4)}, {s(sFo)} offen sc1')
        npf = touch(PF[it - 2])
        emit(0, 9, FP)
        stamp(a)
        stat_mfma()
        if it == SH:
            assert it not in (2, 4)
            a(f's_waitcnt vmcnt({NCH + npf + (it == 6) + 8})')
            stat_reads()
            stat_mfma()
        if it == 7: break
        if S0 <= it: tch.go(SN)
        if it in (2, 4):
            lsk = a.newlabel('ew')
            a(f's_cmp_lt_u32 s2, 136')
            a(f's_cbranch_scc1 {lsk}')
            a(f's_waitcnt vmcnt({NCH + npf})')
            a.label(lsk)
        a(f's_waitcnt vmcnt({NCH + npf + (it in (2, 4, 6))})')
        stamp(a)
    vm.add('x9', 3); vm.add('c9', 8)
    stamp = stamp_
    assert not tch.q
    srd(a, SRD_A, S_PW1, 640 * 3072)
    srd(a, SRD_B, S_PB1, 1536 * 2)
    lchk, lok = a.newlabel('chk'), a.newlabel('ok')
    a(f's_mov_b32 {s(S_CNT)}, {SPIN}')
    a(f's_waitcnt vmcnt({NCH + npf})')
    a.label(lchk)
    a(f'v_and_b32 {v(t0)}, -8, {v(vF)}')
    a(f'v_cmp_ne_u32 vcc, {s(S_TAG)}, {v(t0)}')
    a(f's_cmp_eq_u64 vcc, 0')
    a(f's_cbranch_scc1 {lok}')
    a(f's_sub_u32 {s(S_CNT)}, {s(S_CNT)}, 1')
    a(f's_cbranch_scc1 {lok}')
    a(f'buffer_load_dword {v(vF)}, {v(vFo)}, {s(SRD_WS,4)}, {s(sFo)} offen sc1')
    a(f's_waitcnt vmcnt(0)')
    a(f's_branch {lchk}')
    a.label(lok)
    stamp(a)
    a(f's_barrier')
    if SH < 8: a(f's_waitcnt vmcnt(8)')
    stat_reads()
    O1 = [7, 6, 8, 9, 0, 1, 2, 3, 4, 5]
    N18 = env('N18', 0)
    assert all(stg[3*c] >= p1hi for c in O1[:N18])
    for b in range(NB8): blk('o', b)
    lns = a.newlabel('ns')
    a(f's_cmp_lg_u32 {s(sL)}, 0')
    a(f's_cbranch_scc1 {lns}')
    a(f'v_readfirstlane_b32 {s(sT)}, {v(vF)}')
    a(f'v_cmp_ne_u32 vcc, {s(sT)}, {v(vF)}')
    a(f's_cmp_eq_u64 vcc, 0')
    a(f's_cselect_b32 {s(sT)}, {0 if FORCE_SLOW else 1}, 0')
    a(f'v_mov_b32 {v(t0)}, {s(sT)}')
    a(f'ds_write_b32 {v(vTg)}, {v(t0)}')
    a.label(lns)
    if SH >= 8:
        stat_mfma()
        a(f's_waitcnt vmcnt({vm.after("x9")})')
        stat_reads()
    a(f'v_and_b32 {v(t2)}, 3, v0')
    a(f'v_and_b32 {v(t1)}, 15, v0')
    a(f'v_lshlrev_b32 {v(t1)}, 3, {v(t1)}')
    a(f'v_add_u32 {v(t3)}, {L_STAT + 512}, {v(t1)}')
    a(f's_lshl_b32 {s(sT)}, {s(sL)}, 7')
    a(f's_add_u32 {s(sT)}, {s(sT)}, {L_STAT}')
    a(f'v_add_u32 {v(t1)}, {s(sT)}, {v(t1)}')
    sC = [sa(2) for _ in range(3)]
    for q in range(3): a(f'v_cmp_eq_u32 {s(sC[q],2)}, {q+1}, {v(t2)}')
    a(f's_mul_i32 {s(sT)}, {s(sL)}, 20')
    a(f's_lshl_b64 {s(sOrd,2)}, 15, {s(sT)}')
    stat_mfma(last=True)
    ch = []
    for tl in range(2):
        G = accG[tl]; vSum = F + 2 * tl; vSq = vSum + 1
        L = [f'v_cndmask_b32 {v(vSq)}, {v(G)}, {v(G+1)}, {s(sC[0],2)}',
             f'v_cndmask_b32 {v(vSq)}, {v(vSq)}, {v(G+2)}, {s(sC[1],2)}',
             f'v_cndmask_b32 {v(vSq)}, {v(vSq)}, {v(G+3)}, {s(sC[2],2)}',
             f'v_mov_b32 {v(vSum)}, {v(accS[tl])}'] + ln_stats(vSum, vSq, F + 4 + tl)
        ch.append(L)
    for x, y in zip(*ch): a(x); a(y)
    a(f's_mov_b32 exec_lo, 0x00f0000f')
    a(f's_mov_b32 exec_hi, 0xf0000f00')
    a(f'ds_write_b64 {v(t1)}, {v(F,2)}')
    a(f's_mov_b64 exec, {s(sOrd,2)}')
    a(f'ds_write_b64 {v(t3)}, {v(F+2,2)}')
    a(f's_mov_b64 exec, -1')
    stamp(a)
    NB9 = env('NB9', 2)
    for b in range(NB8, NB8 + NB9): blk('o', b)
    for c in O1[:N18]: blk1(c)
    a(f's_waitcnt vmcnt({vm.after("c9")}) lgkmcnt(0)')
    stamp(a)
    a(f's_barrier')
    a(f's_setprio {env("PRIO3", 0)}')
    vm.add('pf', touch(PF[6]))
    for b in range(NB8 + NB9, 6): blk('o', b)
    a(f's_mul_i32 {s(sT)}, {s(S_J)}, 192')
    a(f'buffer_load_dword {v(vB1)}, {v(vB1)}, {s(SRD_B,4)}, {s(sT)} offen')
    srd(a, SRD_B, S_PB2, 640 * 2)
    a(f's_lshr_b32 {s(sT)}, {s(S_J8)}, 2')
    a(f's_add_u32 {s(sT2)}, {s(sT)}, {s(S_J8)}')
    a(f's_lshl_b32 {s(sT2)}, {s(sT2)}, 7')
    a(f's_lshl4_add_u32 {s(sT)}, {s(sT)}, {s(S_J8)}')
    a(f's_lshl_b32 {s(sT)}, {s(sT)}, 5')
    a(f's_add_u32 {s(sT)}, {s(sT)}, {512 - 128}')
    a(f'v_mov_b32 {v(t0)}, {s(sT2)}')
    a(f'v_mov_b32 {v(t1)}, {s(sT)}')
    a(f'v_cmp_gt_u32 vcc, 32, v0')
    a(f'v_cndmask_b32 {v(t0)}, {v(t1)}, {v(t0)}, vcc')
    a(f'v_lshl_add_u32 {v(t0)}, v0, 2, {v(t0)}')
    a(f's_mov_b32 m0, {L_B2}')
    a(f's_mov_b32 exec_hi, 0xff')
    a(f'buffer_load_dword {v(t0)}, {s(SRD_B,4)}, 0 offen lds')
    a(f's_mov_b64 exec, -1')
    vm.add('b', 2)
    N1C = env('N1C', 0)
    global N1A
    N1A += N18
    for c in O1[N18:N1A]: blk1(c)
    LP, LN = os.environ.get('LP', ''), [int(x) for x in os.environ.get('LN', '15,15,15,15').split(',')]
    tch = Touch(a, LP, sL, sI, sPf, S_CNT, 4)
    if LP: stamp = lambda *x, **k: None
    tch.go(LN[0])
    stamp(a)
    a(f's_barrier')
    for b in range(6, 10): blk('o', b)
    for c in O1[N1A:N1A+N1B]: blk1(c)
    tch.go(LN[1])
    a(f's_waitcnt vmcnt({vm.after(lambda t: t[0] == "o")})')
    stamp(a)
    a(f's_barrier')
    base = Base(a, [vWf, vWh], 0)
    csn = [0]
    def csum(c):
        a(f's_waitcnt vmcnt({vm.after(("1", c))})')
        for e in range(3):
            a(f'{MFMA} {v(accC,4)}, {v(selF if e < 2 else selH,4)}, {v(stg[3*c+e],4)}, {v(accC,4) if csn[0] else "0"}')
            csn[0] += 1
    def put(c):
        o = base.off(L_W1[c], BLK1)
        for e in range(3):
            a(f'ds_write_b128 {v(vWf if e < 2 else vWh)}, {v(stg[3*c+e],4)} offset:{o + (e*1024 if e < 2 else 8192)}')
    for c in O1[N1A+N1B:N1A+N1B+N1C]: blk1(c, T1)
    for c in O1[:N1A]: csum(c)
    if N1A: put(7)
    tch.go(LN[2])
    stamp(a)
    if env('BGO', 1): a(f's_barrier')
    for c in O1[N1A+N1B+N1C:]: blk1(c, T1)
    CSE = max(N1A, env('CSE', N1A + N1B + N1C))
    tch.go(LN[3])
    for c in O1[N1A:CSE]: csum(c)
    assert not tch.q
    stamp(a)
    stamp = stamp_
    a(f's_barrier')
    for i, c in enumerate(O1):
        if i >= CSE: a(f's_waitcnt vmcnt({vm.after(("1", c))})')
        if c != 7 or not N1A: put(c)
    for c in O1[CSE:]: csum(c)
    for r in range(4): a(f'v_add_f32_dpp {v(accC+r)}, {v(accC+r)}, {v(accC+r)} row_ror:8 row_mask:0xf bank_mask:0xf')
    for r in range(4): a(f'v_add_f32_dpp {v(accC+r)}, {v(accC+r)}, {v(accC+r)} row_ror:4 row_mask:0xc bank_mask:0xf')
    a(f's_mov_b32 exec_lo, 0x00ff00ff')
    a(f's_mov_b32 exec_hi, 0x000f000f')
    a(f'ds_write_b128 {v(vCp)}, {v(accC,4)}')
    a(f's_mov_b64 exec, -1')
    a(f's_waitcnt lgkmcnt(0)')
    stamp(a)
    a(f's_barrier')
    for k in (0, 1): blk('2', k, TW)
    lcs = a.newlabel('lcs')
    a(f's_cmp_lg_u32 {s(sL)}, 3')
    a(f's_cbranch_scc1 {lcs}')
    q = stg[0]
    a(f'v_lshlrev_b32 {v(t0)}, 3, v0')
    a(f'v_add_u32 {v(t0)}, {L_CSP}, {v(t0)}')
    for p in range(4): a(f'ds_read_b64 {v(q+2*p,2)}, {v(t0)} offset:{384*p}')
    a(f'v_add_u32 {v(t0)}, {L_CS}, {v(vL16)}')
    a(f's_waitcnt lgkmcnt(0)')
    a(f'v_pk_add_f32 {v(q,2)}, {v(q,2)}, {v(q+2,2)}')
    a(f'v_pk_add_f32 {v(q+4,2)}, {v(q+4,2)}, {v(q+6,2)}')
    a(f'v_pk_add_f32 {v(q,2)}, {v(q,2)}, {v(q+4,2)}')
    for lv in range(3):
        a(f'v_cvt_pk_bf16_f32 {v(q+8+lv)}, {v(q)}, {v(q+1)}')
        if lv < 2:
            a(f'v_lshlrev_b32 {v(q+2)}, 16, {v(q+8+lv)}')
            a(f'v_and_b32 {v(q+3)}, 0xffff0000, {v(q+8+lv)}')
            a(f'v_pk_add_f32 {v(q,2)}, {v(q,2)}, {v(q+2,2)} neg_lo:[0,1] neg_hi:[0,1]')
    a(f's_mov_b32 {s(sT)}, 0x05040100')
    a(f's_mov_b32 {s(sT2)}, 0x07060302')
    a(f'v_perm_b32 {v(q+4)}, {v(q+9)}, {v(q+8)}, {s(sT)}')
    a(f'v_perm_b32 {v(q+5)}, {v(vB1)}, {v(q+10)}, {s(sT)}')
    a(f'v_perm_b32 {v(q+6)}, {v(q+9)}, {v(q+8)}, {s(sT2)}')
    a(f'v_perm_b32 {v(q+7)}, {v(vB1)}, {v(q+10)}, {s(sT2)}')
    a(f's_mov_b32 exec_hi, 0xffff')
    a(f'ds_write_b128 {v(t0)}, {v(q+4,4)}')
    a(f's_mov_b64 exec, -1')
    a(f's_waitcnt lgkmcnt(0)')
    a.label(lcs)
    stamp(a)
    a(f's_barrier')
    for k in range(2, 6): blk('2', k, TW)
    stamp(a)
    a(f's_barrier')
    for k in range(6, 11): blk('2', k, TW)
    def w2wait(kmax):
        a(f's_waitcnt vmcnt({vm.after(lambda t: t[0] == "2" and t[1] <= kmax)})')
    w2wait(YB[0])
    stamp(a)
    a(f's_barrier')
    for lo, hi_, kw in YI:
        for k in range(lo, hi_):
            if k not in STG: blk('2', k, TW)
        w2wait(kw)
        stamp(a)
        a(f's_barrier')
    F4 = stg[0]
    lend = a.newlabel('lend')
    a(f's_or_b32 {s(sT)}, s2, {s(sL)}')
    a(f's_cmp_lg_u32 {s(sT)}, 0')
    a(f's_cbranch_scc1 {lend}')
    lp, ld = a.newlabel('bp'), a.newlabel('bd')
    a(f's_mov_b32 {s(S_CNT)}, {SPIN}')
    a(f's_mov_b32 {s(sT)}, {FL_HELLO}')
    a.label(lp)
    a(f'buffer_load_dwordx4 {v(F4,4)}, {v(vL16)}, {s(SRD_WS,4)}, {s(sT)} offen sc1')
    a(f's_sub_u32 {s(S_CNT)}, {s(S_CNT)}, 1')
    a(f's_cbranch_scc1 {ld}')
    a(f's_waitcnt vmcnt(0)')
    for r in range(4): a(f'v_xor_b32 {v(F4+r)}, {s(S_TAG)}, {v(F4+r)}')
    a(f'v_or3_b32 {v(F4)}, {v(F4)}, {v(F4+1)}, {v(F4+2)}')
    a(f'v_or_b32 {v(F4)}, {v(F4)}, {v(F4+3)}')
    a(f'v_cmp_lt_u32 vcc, 7, {v(F4)}')
    a(f's_cmp_lg_u64 vcc, 0')
    a(f's_cbranch_scc1 {lp}')
    a.label(ld)
    a(f'v_mov_b32 {v(t0)}, {s(S_TAG)}')
    a(f's_mov_b32 {s(sT)}, {WS_FL}')
    a(f's_mov_b64 exec, 1')
    a(f'buffer_store_dword {v(t0)}, off, {s(SRD_WS,4)}, {s(sT)} sc1')
    a.label(lend)
    stamps_flush(a)
    a('s_endpgm')
    return va.hi

def spoll(a, sOff, n, vF, vOff):
    if not env('SPOLL', 0):
        poll(a, vF, vOff, sOff); return
    ls, lp, ld = a.newlabel('pslow'), a.newlabel('sp'), a.newlabel('spd')
    a(f's_mov_b32 {s(S_CNT)}, {SPIN}')
    a(f's_cmp_eq_u32 {s(S_SAME)}, 0')
    a(f's_cbranch_scc1 {ls}')
    a.label(lp)
    a(f's_load_dwordx{n} {s(16,n)}, {s(S_PWS,2)}, {s(sOff)} glc')
    a(f's_sub_u32 {s(S_CNT)}, {s(S_CNT)}, 1')
    a(f's_cbranch_scc1 {ld}')
    a(f's_waitcnt lgkmcnt(0)')
    for i in range(n // 2):
        a(f's_cmp_eq_u64 {s(16+2*i,2)}, {s(S_TAG2,2)}')
        a(f's_cbranch_scc0 {lp}')
    a.label(ld)
    lq = a.newlabel('pq')
    DEFER.append((ls, ld, [f'{lq}:', f'buffer_load_dword {v(vF)}, {v(vOff)}, {s(SRD_WS,4)}, {s(sOff)} offen sc1',
                           f's_sub_u32 {s(S_CNT)}, {s(S_CNT)}, 1', f's_cbranch_scc1 {ld}', 's_waitcnt vmcnt(0)',
                           f'v_cmp_ne_u32 vcc, {s(S_TAG)}, {v(vF)}', 's_cmp_lg_u64 vcc, 0', f's_cbranch_scc1 {lq}']))
S_TAG2 = 34

def helper(a):
    stamp = stamp_ if 't' not in os.environ.get('HS', '') else (lambda *x, **k: None)
    sa = Alloc('s', S_FREE, S_LIM)
    va = Alloc('v', 2, VLIM)
    vL16 = 1
    sL, sT, sT2, sF24, sQ6 = [sa() for _ in range(5)]
    t0, t1, t2, t3, vFs, vWf, vWr = [va() for _ in range(7)]
    pC = [va(), va()]
    R = {k: (va(4, 2), va(4, 2), va(2)) for k in STG}
    a(f's_sub_u32 {s(sL)}, {s(S_W)}, 4')
    if env('PRIOH', 0): a(f's_setprio {env("PRIOH", 0)}')
    srd(a, SRD_A, S_PW2, 1536 * 1280)
    row_bits(a, sL, sT, sT2, t0, t1, t2, t3)
    row_pat(a, pC, 768, 8, 16, 1280, sT2, t0, t1, t2, t3, dma=False)
    a(f's_and_b32 {s(sT)}, {s(sL)}, 1')
    a(f's_lshl1_add_u32 {s(sF24)}, {s(S_J8)}, {s(sT)}')
    a(f's_mul_i32 {s(sF24)}, {s(sF24)}, 24576')
    a(f's_lshr_b32 {s(sT2)}, {s(sL)}, 1')
    a(f's_lshl_b32 {s(sT2)}, {s(sT2)}, 9')
    a(f's_add_u32 {s(sF24)}, {s(sF24)}, {WS_W24}')
    a(f'v_lshl_add_u32 {v(vFs)}, v0, 3, {s(sT2)}')
    a(f's_lshl_b32 {s(sT)}, {s(sT)}, 10')
    a(f'v_add_u32 {v(vWr)}, {s(sT)}, {v(vFs)}')
    a(f's_mul_i32 {s(sT)}, {s(sL)}, {2*WROW}')
    a(f'v_add_u32 {v(vWf)}, {s(sT)}, {v(vL16)}')
    a(f's_and_b32 {s(sQ6)}, {s(S_C64)}, 3')
    a(f's_mul_i32 {s(sQ6)}, {s(sQ6)}, 6')
    def get(k):
        w2_off(a, k, sQ6, sT, sT2, sF24)
        for e in range(2):
            if TH: a(f's_waitcnt vmcnt({TH-1})')
            a(f'buffer_load_dwordx4 {v(R[k][e],4)}, {v(pC[0])}, {s(SRD_A,4)}, {s(sT)} offen offset:{e*1280}')
        if env('NOFR', 0): a(f'buffer_load_dwordx2 {v(R[k][2],2)}, {v(vFs)}, {s(SRD_A,4)}, {s(sT)} offen')
        else: a(f'buffer_load_dwordx2 {v(R[k][2],2)}, {v(vFs)}, {s(SRD_WS,4)}, {s(sT2)} offen sc1')
    base = Base(a, [vWf, vWr], 0)
    def put(k):
        o = base.off(L_W2[k], BLK)
        for e in range(2): a(f'ds_write_b128 {v(vWf)}, {v(R[k][e],4)} offset:{o + e*WROW}')
        a(f'ds_write_b64 {v(vWr)}, {v(R[k][2],2)} offset:{o + 8*WROW}')
    HS = os.environ.get('HS', ',gg,,gg,ggg').split(',')
    todo, nd = list(STG), [sum(x.count('D') for x in PF)]
    tch = Touch(a, os.environ.get('HP_', 'D'), sL, sT, sT2, S_CNT, 4)
    def seq(L):
        for m in L:
            if m == 'g': get(todo.pop(0))
            elif m == 't': tch.go(env('HN', 15))
            else:
                if TH: a(f's_waitcnt vmcnt({TH-1})')
                claim(a, 'D', nd[0], sL, sT, sT2, R[STG[-1]][0], vL16); nd[0] += 1
    seq(HS[0])
    stamp(a)
    if env('BGO', 1): a(f's_barrier')
    seq(HS[1])
    stamp(a)
    a(f's_barrier')
    seq(HS[2])
    stamp(a)
    a(f's_barrier')
    seq(HS[3])
    stamp(a)
    a(f's_barrier')
    seq(HS[4] if len(HS) > 4 else '')
    assert not todo and (not tch.q or 't' not in ''.join(HS))
    if 'D' in ''.join(HS): a(f's_waitcnt vmcnt(0)')
    a(f's_barrier')
    a(f's_barrier')
    a(f's_waitcnt vmcnt(0)')
    for lo, hi_, kw in YI:
        for k in range(lo, hi_):
            if k in STG: put(k)
        a(f's_waitcnt lgkmcnt(0)')
        stamp(a)
        a(f's_barrier')
    stamps_flush(a)
    a('s_endpgm')
    return va.hi

def compute(a):
    sa = Alloc('s', S_FREE, S_LIM)
    vL16 = 1
    sT, sT2, sTau, sKh, sTile, sKf = [sa() for _ in range(6)]
    sO1, sO2, sF1w, sF1r, sIP, sI4 = [sa() for _ in range(6)]
    sMask = sa(2); sCexp = sa(2)
    sOb = [sa() for _ in range(5)]
    sRowP, sRow4, sHP, sH4, sSTw, sF2w = [sa() for _ in range(6)]
    sF2r, sSTr, sHsrc, sD01, sD2, sF3w, sF3r, sDsrc, sR1 = [sa() for _ in range(9)]
    sC = [sa(2) for _ in range(3)]
    sDb = [sO1, sO2, sF1w, sF1r, sIP, sI4, sMask, sMask + 1]
    sBeta, sB4 = sRowP, sRow4
    hi = [0]
    va = Alloc('v', 2, VLIM)
    keep = va(12, 2)
    t0, t1, t2, t3 = va(), va(), va(), va()
    vL16s, vH4, vTr, vFr, vPo, vXa = [va() for _ in range(6)]
    vB = [va(), va()]
    p0 = va.n
    wk0 = va.n
    acc = [[va(4, 2) for m in range(5)] for n in range(2)]
    fX = [[va(4, 2) for m in range(5)] for st in range(2)]
    fW = [[va(4, 2) for n in range(2)] for st in range(2)]
    wk1 = va.n
    Cc, Cp = va(4, 2), va(4, 2)
    Mc, Mp = va(2), va(2)
    vX = [va(), va()]
    vW, vG0, vDump, vStat, vN, vXC = [va() for _ in range(6)]
    aC, aP, aVc, aVp, aVc4, aVp4 = [va() for _ in range(6)]
    hi[0] = va.hi
    a(f'v_and_b32 {v(t0)}, 15, v0')
    a(f'v_lshrrev_b32 {v(t1)}, 4, v0')
    a(f'v_lshrrev_b32 {v(t2)}, 1, {v(t0)}')
    a(f'v_xor_b32 {v(t3)}, {v(t2)}, {v(t1)}')
    a(f'v_lshlrev_b32 {v(t3)}, 4, {v(t3)}')
    a(f'v_lshl_add_u32 {v(t3)}, {v(t0)}, 7, {v(t3)}')
    a(f'v_add_u32 {v(vX[0])}, {XIMG}, {v(t3)}')
    a(f'v_xor_b32 {v(vX[1])}, 64, {v(vX[0])}')
    a(f'v_lshrrev_b32 {v(t3)}, 5, v0')
    a(f'v_xor_b32 {v(t2)}, {v(t2)}, {v(t3)}')
    a(f'v_lshlrev_b32 {v(t2)}, 4, {v(t2)}')
    a(f'v_lshl_add_u32 {v(t2)}, {v(t0)}, 7, {v(t2)}')
    a(f'v_and_b32 {v(vXC)}, 1, {v(t1)}')
    a(f'v_lshl_add_u32 {v(t2)}, {v(vXC)}, 3, {v(t2)}')
    a(f's_and_b32 {s(sTau)}, {s(S_W)}, 3')
    a(f's_lshl_b32 {s(sT)}, {s(sTau)}, 11')
    a(f'v_add_u32 {v(vXC)}, {s(sT)}, {v(t2)}')
    a(f'v_lshlrev_b32 {v(t2)}, 4, {v(t3)}')
    a(f'v_bfe_u32 {v(t3)}, v0, 2, 3')
    a(f'v_add_u32 {v(t2)}, {v(t2)}, {v(t3)}')
    a(f'v_mul_u32_u24 {v(t2)}, {WROW}, {v(t2)}')
    a(f'v_and_b32 {v(t3)}, 3, v0')
    a(f'v_lshl_add_u32 {v(t2)}, {v(t3)}, 3, {v(t2)}')
    a(f's_lshl_b32 {s(sT)}, {s(S_W)}, 6')
    a(f'v_add_u32 {v(vW)}, {s(sT)}, {v(t2)}')
    a(f's_lshr_b32 {s(sB4)}, {s(S_J8)}, 2')
    a(f's_add_u32 {s(sBeta)}, {s(sB4)}, {s(S_J8)}')
    a(f's_mul_i32 {s(sB4)}, {s(sB4)}, 5')
    a(f's_add_u32 {s(sB4)}, {s(sB4)}, 4')
    ord_init(a, sMask, sT, inv=True)
    for src, dst in ((sBeta, sIP), (sB4, sI4)):
        a(f's_sub_u32 {s(sT)}, {s(src)}, {s(S_XCD)}')
        a(f's_cselect_b32 {s(sT2)}, 10, 0')
        a(f's_add_u32 {s(sT)}, {s(sT)}, {s(sT2)}')
        a(f's_lshl_b32 {s(sT)}, {s(sT)}, 2')
        a(f's_lshr_b64 {s(sCexp,2)}, {s(sMask,2)}, {s(sT)}')
        a(f's_and_b32 {s(dst)}, {s(sCexp)}, 15')
    a(f's_and_b32 {s(sKf)}, {s(S_J8)}, 3')
    a(f's_lshl_b32 {s(sKf)}, {s(sKf)}, 5')
    ln0, ln1 = a.newlabel('n0'), a.newlabel('n1')
    a(f's_cmp_lg_u32 {s(S_W)}, 1')
    a(f's_cbranch_scc1 {ln1}')
    a(f'v_mov_b32 {v(vN)}, 0x3f803f80')
    a(f'v_and_b32 {v(t2)}, 31, v0')
    a(f'v_lshlrev_b32 {v(t2)}, 2, {v(t2)}')
    a(f'v_add_u32 {v(t3)}, {SLOT}, {v(t2)}')
    a(f'ds_write_b32 {v(t2)}, {v(vN)} offset:{XIMG + 64*128}')
    a(f'ds_write_b32 {v(t3)}, {v(vN)} offset:{XIMG + 64*128}')
    a(f'v_add_u32 {v(t3)}, {2*SLOT}, {v(t2)}')
    a(f'ds_write_b32 {v(t3)}, {v(vN)} offset:{XIMG + 64*128}')
    a.label(ln1)
    a(f's_waitcnt lgkmcnt(0)')
    nonce_load(a)
    Touch(a, os.environ.get('CS', ''), S_W, sT, sT2, S_CNT, 8).go(99)
    srd(a, SRD_WS, S_PWS, WS_SIZE)
    late = []
    real_a, a = a, late.append
    a(f'v_lshlrev_b32 {v(vL16)}, 4, v0')
    srd(a, SRD_B, S_POUT, 2048 * 1280)
    a(f'v_lshlrev_b32 {v(vStat)}, 3, {v(t0)}')
    a(f'v_add_u32 {v(vStat)}, {L_STAT}, {v(vStat)}')
    a(f'v_mul_u32_u24 {v(t2)}, {DROW}, {v(t0)}')
    a(f'v_lshl_add_u32 {v(t2)}, {v(t1)}, 3, {v(t2)}')
    a(f's_lshl_b32 {s(sT)}, {s(S_W)}, 6')
    a(f's_add_u32 {s(sT)}, {s(sT)}, {L_DUMP}')
    a(f'v_add_u32 {v(vDump)}, {s(sT)}, {v(t2)}')
    sCur, sPrev = sO1, sO2
    a(f's_lshr_b32 {s(sKh)}, {s(S_W)}, 2')
    a(f's_lshl_b32 {s(sCur)}, {s(sTau)}, 4')
    a(f's_sub_u32 {s(sPrev)}, {s(sCur)}, 16')
    a(f's_lshl_b32 {s(sT)}, {s(sTau)}, 2')
    a(f's_add_u32 {s(sT)}, {s(sT)}, 56')
    a(f's_bitcmp1_b32 {s(sTau)}, 0')
    a(f's_cselect_b32 {s(sPrev)}, {s(sPrev)}, {s(sT)}')
    a(f's_mul_i32 {s(sT)}, {s(sKh)}, 80')
    a(f's_add_u32 {s(sT)}, {s(sT)}, {L_DUMP}')
    a(f's_mul_i32 {s(sCur)}, {s(sCur)}, {DROW}')
    a(f's_mul_i32 {s(sPrev)}, {s(sPrev)}, {DROW}')
    a(f's_add_u32 {s(sCur)}, {s(sCur)}, {s(sT)}')
    a(f's_add_u32 {s(sPrev)}, {s(sPrev)}, {s(sT)}')
    a(f'v_add_u32 {v(aC)}, {s(sCur)}, {v(t2)}')
    a(f'v_add_u32 {v(aP)}, {s(sPrev)}, {v(t2)}')
    a(f'v_lshrrev_b32 {v(t2)}, 2, v0')
    a(f'v_mul_u32_u24 {v(t2)}, {DROW}, {v(t2)}')
    a(f'v_add_u32 {v(aVc4)}, {s(sCur)}, {v(t2)}')
    a(f'v_add_u32 {v(aVp4)}, {s(sPrev)}, {v(t2)}')
    a(f'v_and_b32 {v(t2)}, 3, v0')
    a(f'v_lshl_add_u32 {v(aVc)}, {v(t2)}, 3, {v(aVc4)}')
    a(f'v_lshl_add_u32 {v(aVp)}, {v(t2)}, 3, {v(aVp4)}')
    for q in range(3): a(f'v_cmp_eq_u32 {s(sC[q],2)}, {q+1}, {v(t2)}')
    a(f'v_bfe_u32 {v(t2)}, v0, 4, 1')
    a(f'v_lshrrev_b32 {v(t3)}, 5, v0')
    a(f'v_and_b32 {v(vL16s)}, 0xf0, {v(vL16)}')
    a(f'v_lshl_add_u32 {v(vH4)}, {v(t3)}, 8, {v(vL16s)}')
    a(f'v_lshl_add_u32 {v(vH4)}, {v(t2)}, 3, {v(vH4)}')
    a(f'v_lshl_add_u32 {v(t3)}, {v(t2)}, 1, {v(t3)}')
    a(f'v_lshl_add_u32 {v(vL16s)}, {v(t3)}, 8, {v(vL16s)}')
    tr_patterns(a, vTr, None, t2)
    a(f's_and_b32 {s(sT2)}, {s(S_W)}, 1')
    a(f's_lshl_b32 {s(sT)}, {s(sT2)}, 9')
    a(f's_add_u32 {s(sT)}, {s(sT)}, {L_WO[0]}')
    a(f'v_add_u32 {v(vTr)}, {s(sT)}, {v(vTr)}')
    a(f's_lshl_b32 {s(sT)}, {s(sT2)}, 10')
    a(f's_add_u32 {s(sT)}, {s(sT)}, {L_WO[0]}')
    a(f'v_add_u32 {v(vFr)}, {s(sT)}, {v(vL16)}')
    a(f's_mul_i32 {s(sT)}, {s(sT2)}, 20480')
    a(f'v_add_u32 {v(vB[0])}, {s(sT)}, {v(vL16)}')
    a(f's_sub_u32 {s(sT)}, 20480, {s(sT)}')
    a(f'v_add_u32 {v(vB[1])}, {s(sT)}, {v(vL16)}')
    a(f's_mul_i32 {s(sT)}, {s(sTau)}, 5120')
    a(f's_add_u32 {s(sT)}, {s(sT)}, {L_X2}')
    a(f'v_add_u32 {v(vXa)}, {s(sT)}, {v(vL16)}')
    a(f'v_lshlrev_b32 {v(vPo)}, 2, {v(t0)}')
    a(f'v_mov_b32 {v(keep+10)}, 0')
    a(f'v_mov_b32 {v(keep+11)}, 0')
    a(f's_and_b32 {s(sT)}, {s(sTau)}, 1')
    a(f's_or_b32 {s(sT)}, {s(sT)}, {s(S_C64)}')
    a(f's_cmp_eq_u32 {s(sT)}, 0')
    a(f's_cselect_b32 {s(sT)}, 100, 9')
    a(f'v_lshlrev_b32 {v(t1)}, 2, {v(t1)}')
    a(f'v_sub_u32 {v(t1)}, {v(t1)}, {v(t0)}')
    a(f'v_mov_b32 {v(t3)}, 0xf149f2ca')
    for r in range(4):
        a(f'v_add_u32 {v(t2)}, {r+7}, {v(t1)}')
        a(f'v_cmp_ge_u32 vcc, 7, {v(t2)}')
        a(f'v_cndmask_b32 {v(Cc+r)}, {v(t3)}, 0, vcc')
        a(f'v_add_u32 {v(t2)}, {r}, {v(t1)}')
        a(f'v_cmp_le_i32 vcc, {s(sT)}, {v(t2)}')
        a(f'v_cndmask_b32 {v(Cp+r)}, {v(t3)}, 0, vcc')
        a(f'v_cmp_ge_i32 vcc, 0, {v(t2)}')
        half = '0xffff' if r % 2 == 0 else '0xffff0000'
        a(f'v_mov_b32 {v(vG0)}, {half}')
        if r % 2 == 0:
            a(f'v_cndmask_b32 {v(Mc+r//2)}, 0, {v(vG0)}, vcc')
        else:
            a(f'v_cndmask_b32 {v(vG0)}, 0, {v(vG0)}, vcc')
            a(f'v_or_b32 {v(Mc+r//2)}, {v(Mc+r//2)}, {v(vG0)}')
    a(f'v_not_b32 {v(Mp)}, {v(Mc)}')
    a(f'v_not_b32 {v(Mp+1)}, {v(Mc+1)}')
    a(f'v_cmp_gt_u32 vcc, 16, v0')
    a(f'v_cndmask_b32 {v(vG0)}, 0, -1, vcc')
    cexp = struct.unpack('<I', struct.pack('<f', 20 ** -0.5 * math.log2(math.e)))[0]
    a(f's_mov_b32 {s(sCexp)}, {hex(cexp)}')
    a(f's_mov_b32 {s(sCexp+1)}, {hex(cexp)}')
    a(f's_lshl2_add_u32 {s(sTile)}, {s(S_C64)}, {s(sTau)}')
    a(f's_mul_i32 {s(sH4)}, {s(sTile)}, 20480')
    a(f's_lshl1_add_u32 {s(sT2)}, {s(S_J8)}, {s(sKh)}')
    a(f's_lshr_b32 {s(sT)}, {s(sT2)}, 3')
    a(f's_lshl1_add_u32 {s(sO1)}, {s(sT)}, {s(sT2)}')
    a(f's_lshl_b32 {s(sO1)}, {s(sO1)}, 10')
    a(f's_add_u32 {s(sO1)}, {s(sO1)}, {s(sH4)}')
    a(f's_lshl3_add_u32 {s(sF1w)}, {s(sT)}, {s(sT2)}')
    a(f's_mul_i32 {s(sO2)}, {s(sT)}, 10')
    a(f's_bfe_u32 {s(sT)}, {s(sT2)}, 0x10002')
    a(f's_add_u32 {s(sO2)}, {s(sO2)}, {s(sT)}')
    a(f's_add_u32 {s(sO2)}, {s(sO2)}, 8')
    a(f's_lshl_b32 {s(sO2)}, {s(sO2)}, 10')
    a(f's_add_u32 {s(sO2)}, {s(sO2)}, {s(sH4)}')
    a(f's_and_b32 {s(sT)}, {s(sT2)}, 3')
    a(f's_lshl_b32 {s(sT)}, {s(sT)}, 4')
    a(f's_mov_b64 {s(sMask,2)}, 0xffff')
    a(f's_lshl_b64 {s(sMask,2)}, {s(sMask,2)}, {s(sT)}')
    a(f's_and_b32 {s(sT2)}, {s(sTile)}, 1')
    a(f's_lshr_b32 {s(sT)}, {s(sTile)}, 1')
    a(f's_mul_i32 {s(sOb[4])}, {s(sT)}, 40960')
    a(f's_mul_i32 {s(sDsrc)}, {s(sT)}, 98304')
    a(f's_lshl_b32 {s(sT)}, {s(sT)}, 7')
    a(f's_lshl3_add_u32 {s(sF1w)}, {s(sT2)}, {s(sF1w)}')
    a(f's_lshl2_add_u32 {s(sF1w)}, {s(sF1w)}, {s(sT)}')
    a(f's_add_u32 {s(sF1w)}, {s(sF1w)}, {FL_1}')
    a(f's_lshl3_add_u32 {s(sF2w)}, {s(sT2)}, {s(S_J8)}')
    a(f's_lshl2_add_u32 {s(sF2w)}, {s(sF2w)}, {s(sT)}')
    a(f's_add_u32 {s(sF2w)}, {s(sF2w)}, {FL_2}')
    a(f's_lshl_b32 {s(sF3r)}, {s(sT2)}, 5')
    a(f's_lshl1_add_u32 {s(sF1r)}, {s(sF3r)}, {s(sT)}')
    a(f's_add_u32 {s(sF1r)}, {s(sF1r)}, {FL_1}')
    a(f's_add_u32 {s(sF3r)}, {s(sF3r)}, {s(sT)}')
    a(f's_add_u32 {s(sF3r)}, {s(sF3r)}, {FL_3}')
    a(f's_mul_i32 {s(sT)}, {s(sT2)}, 10240')
    a(f's_add_u32 {s(sOb[4])}, {s(sOb[4])}, {s(sT)}')
    a(f's_mul_i32 {s(sT)}, {s(sT2)}, 24576')
    a(f's_add_u32 {s(sDsrc)}, {s(sDsrc)}, {s(sT)}')
    a(f's_add_u32 {s(sDsrc)}, {s(sDsrc)}, {WS_DF}')
    for i in range(4):
        if RO:
            a(f's_add_u32 {s(sT)}, {s(S_C64)}, {i}')
            a(f's_and_b32 {s(sT)}, {s(sT)}, 3')
            a(f's_lshl_b32 {s(sT)}, {s(sT)}, 11')
            a(f's_add_u32 {s(sOb[i])}, {s(sOb[4])}, {s(sT)}')
        else: a(f's_add_u32 {s(sOb[i])}, {s(sOb[4])}, {2048*i}')
    a(f's_add_u32 {s(sOb[4])}, {s(sOb[4])}, 8192')
    a(f's_lshl3_add_u32 {s(sSTw)}, {s(sTile)}, {s(S_J8)}')
    a(f's_lshl_b32 {s(sSTw)}, {s(sSTw)}, 7')
    a(f's_add_u32 {s(sSTw)}, {s(sSTw)}, {WS_ST}')
    a(f's_add_u32 {s(sH4)}, {s(sH4)}, {WS_HF}')
    a(f's_lshl_b32 {s(sT)}, {s(sBeta)}, 11')
    a(f's_add_u32 {s(sHP)}, {s(sH4)}, {s(sT)}')
    a(f's_lshl_b32 {s(sB4)}, {s(sB4)}, 7')
    a(f's_add_u32 {s(sB4)}, {s(sB4)}, {s(sKf)}')
    a(f's_lshl4_add_u32 {s(sH4)}, {s(sB4)}, {s(sH4)}')
    a(f's_lshl_b32 {s(sBeta)}, {s(sBeta)}, 7')
    a(f's_lshl_b32 {s(sT2)}, {s(sT2)}, 5')
    a(f's_lshr_b32 {s(sT)}, {s(sTau)}, 1')
    a(f's_add_u32 {s(sT2)}, {s(sT2)}, {s(sT)}')
    a(f's_lshl_b32 {s(sT)}, {s(S_C64)}, 6')
    a(f's_add_u32 {s(sT2)}, {s(sT2)}, {s(sT)}')
    a(f's_mul_i32 {s(sT2)}, {s(sT2)}, 1280')
    a(f's_add_u32 {s(sRowP)}, {s(sBeta)}, {s(sT2)}')
    a(f's_add_u32 {s(sRow4)}, {s(sB4)}, {s(sT2)}')
    a(f's_lshl2_add_u32 {s(sT2)}, {s(S_C)}, {s(sTau)}')
    a(f's_lshl_b32 {s(sF2r)}, {s(sT2)}, 7')
    a(f's_lshl2_add_u32 {s(sF3w)}, {s(S_J)}, {s(sF2r)}')
    a(f's_add_u32 {s(sF3w)}, {s(sF3w)}, {FL_3}')
    a(f's_add_u32 {s(sF2r)}, {s(sF2r)}, {FL_2}')
    a(f's_lshl_b32 {s(sSTr)}, {s(sT2)}, 11')
    a(f's_add_u32 {s(sSTr)}, {s(sSTr)}, {WS_ST}')
    a(f's_mul_i32 {s(sHsrc)}, {s(sT2)}, 40960')
    a(f's_add_u32 {s(sHsrc)}, {s(sHsrc)}, {WS_HF}')
    a(f's_mul_i32 {s(sD2)}, {s(sT2)}, 98304')
    a(f's_mul_i32 {s(sT)}, {s(S_J)}, 3072')
    a(f's_add_u32 {s(sD2)}, {s(sD2)}, {s(sT)}')
    a(f's_add_u32 {s(sD2)}, {s(sD2)}, {WS_DF}')
    a(f's_bitcmp1_b32 {s(S_J)}, 0')
    a(f's_cselect_b32 {s(sT)}, 1024, 0')
    a(f's_cselect_b32 {s(sT2)}, 0, 2048')
    a(f's_add_u32 {s(sD01)}, {s(sD2)}, {s(sT)}')
    a(f's_add_u32 {s(sD2)}, {s(sD2)}, {s(sT2)}')
    if R1:
        a(f's_and_b32 {s(sT)}, {s(S_C)}, 1')
        a(f's_mul_i32 {s(sR1)}, {s(sT)}, 10240')
        a(f's_add_u32 {s(sHsrc)}, {s(sHsrc)}, {s(sR1)}')
        a(f's_lshl_b32 {s(sR1)}, {s(sR1)}, 1')
        a(f's_sub_u32 {s(sR1)}, 2048, {s(sR1)}')
    a = real_a
    ok = scc_cuts(late)
    NP = env('NP', 8)
    cuts = [0]
    for i in range(1, NP):
        c = len(late) * i // NP
        while not ok[c]: c += 1
        cuts.append(c)
    cuts.append(len(late))
    def hello():
        lh = a.newlabel('hello')
        nonce_to_tag(a)
        a(f's_mov_b32 {s(S_TAG2)}, {s(S_TAG)}')
        a(f's_mov_b32 {s(S_TAG2+1)}, {s(S_TAG)}')
        a(f's_cmp_lg_u32 {s(S_W)}, 0')
        a(f's_cbranch_scc1 {lh}')
        a(f's_getreg_b32 {s(S_CNT)}, hwreg(HW_REG_XCC_ID, 0, 3)')
        a(f's_or_b32 {s(S_CNT)}, {s(S_CNT)}, {s(S_TAG)}')
        a(f'v_mov_b32 {v(vG0)}, {s(S_CNT)}')
        a(f's_lshl4_add_u32 {s(S_CNT)}, {s(S_C)}, {s(S_J)}')
        a(f's_lshl_b32 {s(S_CNT)}, {s(S_CNT)}, 2')
        a(f's_add_u32 {s(S_CNT)}, {s(S_CNT)}, {FL_HELLO}')
        a(f's_mov_b64 exec, 1')
        a(f'buffer_store_dword {v(vG0)}, off, {s(SRD_WS,4)}, {s(S_CNT)} sc1')
        a(f's_mov_b64 exec, -1')
        a.label(lh)
    def reads(st):
        L = []
        for n in range(2):
            for jh in range(2):
                L.append(f'ds_read_b64_tr_b16 {v(fW[st][n]+2*jh,2)}, {v(vW)} offset:{st*512 + jh*8*WROW + n*32}')
        for m in range(5):
            L.append(f'ds_read_b128 {v(fX[st][m],4)}, {v(vX[st])} offset:{m*2048}')
        return L
    def mfmas(st, z=False):
        return [f'{MFMA} {v(acc[n][m],4)}, {v(fW[st][n],4)}, {v(fX[st][m],4)}, {"0" if z else v(acc[n][m],4)}'
                for m in range(5) for n in range(2)]
    def capture(it):
        base = (it % 3) * SLOT + XIMG
        for sI_, ns in ((sIP, 4), (sI4, 1)):
            lo, lb = a.newlabel('cap'), a.newlabel('capb')
            a(f's_cmp_eq_u32 {s(sI_)}, {it}')
            a(f's_cbranch_scc1 {lo}')
            a.label(lb)
            if ns == 4:
                L = [f'v_add_u32 {v(keep)}, {base}, {v(vXC)}'] + [f'v_xor_b32 {v(keep+2*n)}, {32*n}, {v(keep)}' for n in (1, 2, 3)]
                L += [f'ds_read_b64 {v(keep+2*n,2)}, {v(keep+2*n)}' for n in range(4)]
            else:
                L = [f'v_add_u32 {v(keep+8)}, {base}, {v(vXC)}', f'v_xor_b32 {v(keep+8)}, {s(sKf)}, {v(keep+8)}',
                     f'ds_read_b64 {v(keep+8,2)}, {v(keep+8)}']
            DEFER.append((lo, lb, L))
    st_ = fX[0][0]; cs = fX[0][3]; pk = fW[0][0]
    stamp(a)
    for it in range(10):
        a(f's_waitcnt lgkmcnt(0)')
        a(f's_barrier')
        stamp(a)
        M, RD = mfmas(1), reads(0)
        for i in range(10):
            if i < 5:
                for x in RD[2*i:2*i+2]: a(x)
            if it: a(M[i])
        capture(it)
        a(f's_waitcnt lgkmcnt(0)')
        M, RD = mfmas(0, it == 0), reads(1)
        for i in range(10):
            a(M[i])
            if i < 5:
                for x in RD[2*i:2*i+2]: a(x)
        if it < 9:
            d = hex(SLOT if it % 3 < 2 else (-2 * SLOT) & 0xffffffff)
            for r in (vX[0], vW, vX[1]): a(f'v_add_u32 {v(r)}, {d}, {v(r)}')
        if it == 0: hello()
        elif it <= NP:
            for x in late[cuts[it-1]:cuts[it]]: a(x)
    M = mfmas(1)
    M = M[8:] + M[:8]
    a(f'v_mov_b32 {v(t0)}, {L_TAG}')
    for m in (4, 0, 1, 2, 3):
        a(f'ds_read_b64 {v(st_+2*m,2)}, {v(vStat)} offset:{m*128}')
    a(f'ds_read_b32 {v(t3)}, {v(t0)}')
    a(f's_waitcnt lgkmcnt(6)')
    def norm(n, m, q):
        A = acc[n][m]
        L = []
        for h in range(2): L.append(f'v_pk_mul_f32 {v(A+2*h,2)}, {v(A+2*h,2)}, {v(st_+2*m,2)} op_sel_hi:[1,0]')
        for h in range(2): L.append(f'v_pk_fma_f32 {v(A+2*h,2)}, {v(st_+2*m,2)}, {v(cs+4*n+2*h,2)}, {v(A+2*h,2)} op_sel:[1,0,0] op_sel_hi:[1,1,1] neg_lo:[1,0,0] neg_hi:[1,0,0]')
        p = pk + 2 * (q % 4)
        L.append(f'v_cvt_pk_bf16_f32 {v(p)}, {v(A)}, {v(A+1)}')
        L.append(f'v_cvt_pk_bf16_f32 {v(p+1)}, {v(A+2)}, {v(A+3)}')
        L.append(f'ds_write_b64 {v(vDump)}, {v(p,2)} offset:{m*16*DROW + n*32}')
        return L
    dpp = [f'v_mov_b32_dpp {v(cs+4*n+r)}, {v(acc[n][4]+r)} row_newbcast:0 row_mask:0xf bank_mask:0xf' for n in range(2) for r in range(4)]
    for i, x in enumerate(M):
        a(x)
        if i >= 6: a(dpp[2*(i-6)]); a(dpp[2*(i-6)+1])
    a(f's_waitcnt lgkmcnt(0)')
    a(f'v_readfirstlane_b32 {s(S_SAME)}, {v(t3)}')
    lsk = a.newlabel('p1sk')
    for n in range(2):
        if env('XST', 0): stamp(a)
        if n == 1:
            a(f's_cmp_eq_u32 {s(S_W)}, 7')
            a(f's_cbranch_scc1 {lsk}')
        for q, m in enumerate((4, 0, 1, 2, 3)):
            for x in norm(n, m, q): a(x)
    a.label(lsk)
    if env('XST', 0): stamp(a)
    a(f's_waitcnt lgkmcnt(0)')
    a(f's_barrier')
    stamp(a)
    va2 = Alloc('v', wk0, wk1)
    Q = [va2(4, 2) for _ in range(2)]; Kc = [va2(4, 2) for _ in range(2)]; Kp = [va2(4, 2) for _ in range(2)]
    Vm = [va2(4, 2) for _ in range(2)]; V4 = [va2(4, 2) for _ in range(2)]
    Sc = [va2(4, 2) for _ in range(2)]; Sp = [va2(4, 2) for _ in range(2)]
    Om, O4 = va2(4, 2), va2(4, 2)
    for h in range(2):
        a(f'ds_read2_b64 {v(Q[h],4)}, {v(aC)} offset0:{5*h} offset1:{5*h+4}')
        a(f'ds_read2_b64 {v(Kc[h],4)}, {v(aC)} offset0:{20+5*h} offset1:{24+5*h}')
        a(f'ds_read2_b64 {v(Kp[h],4)}, {v(aP)} offset0:{20+5*h} offset1:{24+5*h}')
    for h in range(2):
        a(f'ds_read_b64_tr_b16 {v(Vm[h],2)}, {v(aVp)} offset:{320+40*h}')
        a(f'ds_read_b64_tr_b16 {v(Vm[h]+2,2)}, {v(aVc)} offset:{320+40*h}')
        a(f'ds_read_b64_tr_b16 {v(V4[h],2)}, {v(aVp4)} offset:{320+40*h+32}')
        a(f'ds_read_b64_tr_b16 {v(V4[h]+2,2)}, {v(aVc4)} offset:{320+40*h+32}')
    for h in range(2):
        a(f's_waitcnt lgkmcnt({8 + 3*(1-h)})')
        a(f'v_and_b32 {v(Q[h]+2)}, {v(Q[h]+2)}, {v(vG0)}')
        a(f'v_and_b32 {v(Q[h]+3)}, {v(Q[h]+3)}, {v(vG0)}')
        a(f'{MFMA} {v(Sc[h],4)}, {v(Kc[h],4)}, {v(Q[h],4)}, {v(Cc,4)}')
        a(f'{MFMA} {v(Sp[h],4)}, {v(Kp[h],4)}, {v(Q[h],4)}, {v(Cp,4)}')
    mx = [t0, t1]; tm = [t2, t3]
    for h in range(2):
        for r in range(4): a(f'v_max_f32 {v(Sc[h]+r)}, {v(Sc[h]+r)}, {v(Sp[h]+r)}')
        a(f'v_max3_f32 {v(mx[h])}, {v(Sc[h])}, {v(Sc[h]+1)}, {v(Sc[h]+2)}')
        a(f'v_max_f32 {v(mx[h])}, {v(mx[h])}, {v(Sc[h]+3)}')
    xg_reduce(a, mx, tm, 'v_max_f32')
    a(f'v_pk_mul_f32 {v(t0,2)}, {v(t0,2)}, {s(sCexp,2)}')
    for h in range(2):
        for p in range(2):
            a(f'v_pk_fma_f32 {v(Sc[h]+2*p,2)}, {v(Sc[h]+2*p,2)}, {s(sCexp,2)}, {v(t0,2)} op_sel:[0,0,{h}] op_sel_hi:[1,1,{h}] neg_lo:[0,0,1] neg_hi:[0,0,1]')
    for h in range(2):
        for r in range(4): a(f'v_exp_f32 {v(Sc[h]+r)}, {v(Sc[h]+r)}')
    for h in range(2): a(f'v_pk_add_f32 {v(Sp[h],2)}, {v(Sc[h],2)}, {v(Sc[h]+2,2)}')
    for h in range(2): a(f'v_add_f32 {v(mx[h])}, {v(Sp[h])}, {v(Sp[h]+1)}')
    xg_reduce(a, mx, tm, 'v_add_f32')
    for h in range(2): a(f'v_rcp_f32 {v(mx[h])}, {v(mx[h])}')
    for h in range(2):
        for p in range(2):
            a(f'v_pk_mul_f32 {v(Sc[h]+2*p,2)}, {v(Sc[h]+2*p,2)}, {v(t0,2)} op_sel:[0,{h}] op_sel_hi:[1,{h}]')
        a(f'v_cvt_pk_bf16_f32 {v(Sc[h])}, {v(Sc[h])}, {v(Sc[h]+1)}')
        a(f'v_cvt_pk_bf16_f32 {v(Sc[h]+1)}, {v(Sc[h]+2)}, {v(Sc[h]+3)}')
        a(f'v_and_b32 {v(Sp[h])}, {v(Sc[h])}, {v(Mp)}')
        a(f'v_and_b32 {v(Sp[h]+1)}, {v(Sc[h]+1)}, {v(Mp+1)}')
        a(f'v_and_b32 {v(Sp[h]+2)}, {v(Sc[h])}, {v(Mc)}')
        a(f'v_and_b32 {v(Sp[h]+3)}, {v(Sc[h]+1)}, {v(Mc+1)}')
        if h == 0: a(f's_waitcnt lgkmcnt(0)')
        a(f'{MFMA} {v(Q[h],4)}, {v(Vm[h],4)}, {v(Sp[h],4)}, 0')
        a(f'{MFMA} {v(Kc[h],4)}, {v(V4[h],4)}, {v(Sp[h],4)}, 0')
    for h in range(2):
        a(f'v_cvt_pk_bf16_f32 {v(Om+2*h)}, {v(Q[h])}, {v(Q[h]+1)}')
        a(f'v_cvt_pk_bf16_f32 {v(Om+2*h+1)}, {v(Q[h]+2)}, {v(Q[h]+3)}')
        a(f'v_cvt_pk_bf16_f32 {v(O4+2*h)}, {v(Kc[h])}, {v(Kc[h]+1)}')
        a(f'v_cvt_pk_bf16_f32 {v(O4+2*h+1)}, {v(Kc[h]+2)}, {v(Kc[h]+3)}')
    dual(a, [f'buffer_store_dwordx4 {v(Om,4)}, {v(vL16)}, {s(SRD_WS,4)}, {s(sO1)} offen@',
             f's_mov_b64 exec, {s(sMask,2)}',
             f'buffer_store_dwordx4 {v(O4,4)}, {v(vL16)}, {s(SRD_WS,4)}, {s(sO2)} offen@',
             f's_mov_b64 exec, -1'], 1)
    stamp(a)
    if env('BATT', 0): a(f's_barrier')
    publish(a, t0, sF1w)
    if not env('BATT', 0): a(f's_barrier')
    stamp(a)
    lhelp = a.newlabel('helper')
    a(f's_cmp_ge_u32 {s(S_W)}, 4')
    a(f's_cbranch_scc1 {lhelp}')
    nh = St.n
    if PRIO2: a(f's_setprio {PRIO2}')
    class G5:
        def __init__(g, K, LB, D, sB, per, base):
            va = Alloc('v', p0, VLIM)
            g.K, g.LB, g.D, g.sB, g.per, g.base = K, LB, D, sB, per, base
            g.acc = [[va(4, 2) for n in range(5)] for t in range(2)]
            g.ring = [va(4, 2) for _ in range(LA + 1)]
            g.fB = [[va(4, 2) for t in range(2)] for _ in range(D)]
            hi[0] = max(hi[0], va.hi)
            g.lg, g.vm = Cnt(15), Cnt(63)
        def rd(g, i, part):
            k, n = divmod(i, 5)
            if k >= g.K: return
            o = g.base.off(g.LB[k], BLK)
            R = g.ring[i % (LA + 1)]
            if n < 4: a(f'ds_read_b64_tr_b16 {v(R+2*part,2)}, {v(vTr)} offset:{o + part*256 + n*32}')
            elif part == 0: a(f'ds_read_b128 {v(R,4)}, {v(vFr)} offset:{o + 8*WROW}')
            else: return
            g.lg.add(i)
        def ld(g, k, t):
            if k >= g.K: return
            a(f'buffer_load_dwordx4 {v(g.fB[k % g.D][t],4)}, {v(vB[t])}, {s(SRD_WS,4)}, {s(g.sB[k // g.per])} offen offset:{(k % g.per)*1024} sc1')
            g.vm.add((k, t))
        def run(g, top):
            for k in range(g.K):
                top(k)
                for n in range(5):
                    i = 5 * k + n
                    for p, t in enumerate((0, 1) if k < g.K - 1 else (1, 0)):
                        w = []
                        if n == 0 and (p == 0 or k == 0): w.append(f'vmcnt({g.vm.after((k, t if k == 0 else 1))})')
                        if p == 0: w.append(f'lgkmcnt({g.lg.after(i)})')
                        if w: a('s_waitcnt ' + ' '.join(w))
                        C = '0' if k == 0 and t == 1 else v(g.acc[t][n], 4)
                        a(f'{MFMA} {v(g.acc[t][n],4)}, {v(g.ring[i % (LA+1)],4)}, {v(g.fB[k % g.D][t],4)}, {C}')
                        g.rd(i + LA, p)
                        if n == 4: g.ld(k + g.D, t)
        def exchange(g, out):
            for n in range(5): a(f'ds_write_b128 {v(vXa)}, {v(g.acc[1][n],4)} offset:{n*1024}')
            a(f's_bitcmp1_b32 {s(S_W)}, 0')
            a(f's_movk_i32 {s(sT)}, 5120')
            a(f's_cmovk_i32 {s(sT)}, {(-5120) & 0xffff}')
            a(f'v_add_u32 {v(t0)}, {s(sT)}, {v(vXa)}')
            a(f's_waitcnt lgkmcnt(0)')
            a(f's_barrier')
            stamp(a)
            for n in range(5): a(f'ds_read_b128 {v(g.acc[1][n],4)}, {v(t0)} offset:{n*1024}')
            for n in range(5):
                a(f's_waitcnt lgkmcnt({4-n})')
                A = g.acc[0][n]
                for h in range(2): a(f'v_pk_add_f32 {v(A+2*h,2)}, {v(A+2*h,2)}, {v(g.acc[1][n]+2*h,2)}')
                for h in range(2): a(f'v_cvt_pk_bf16_f32 {v(keep+2*n+h)}, {v(A+2*h)}, {v(A+2*h+1)}')
                if n in (1, 3):
                    for h in range(2): a(f'v_permlane16_swap_b32 {v(keep+2*n-2+h)}, {v(keep+2*n+h)}')
                if n != 0 and n != 2: out(n >> 1)
    def unpack(dst, src):
        a(f'v_lshlrev_b32 {v(dst)}, 16, {v(src)}')
        a(f'v_and_b32 {v(dst+1)}, 0xffff0000, {v(src)}')
    g = G5(10, L_WO, D2, sOb, 2, Base(a, [vTr, vFr], L_WO[0]))
    for i in range(LA): g.rd(i, 0); g.rd(i, 1)
    for i in range(10): unpack(g.acc[0][0] + 2 * i, keep + i)
    spoll(a, sF1r, 16, t0, vPo)
    stamp(a)
    for k in range(D2): g.ld(k, 0); g.ld(k, 1)
    KG = env('KG', 0)
    stamp(a)
    g.run(lambda k: a('s_barrier') if k == KG and env('BGO', 1) else None)
    stamp(a)
    G_, S_, vOne = g.ring[0], g.ring[1], g.fB[0][0]
    for r in range(4): a(f'v_mov_b32 {v(vOne+r)}, 0x3f803f80')
    def out(i):
        if i < 2: dual(a, [f'buffer_store_dwordx4 {v(keep+4*i,4)}, {v(vL16s)}, {s(SRD_WS,4)}, {s(sHP)} offen offset:{1024*i}@'], 2)
        else: dual(a, [f'buffer_store_dwordx2 {v(keep+8,2)}, {v(vH4)}, {s(SRD_WS,4)}, {s(sH4)} offen@'], 2)
        a(f'{MFMA} {v(G_,4)}, {v(keep+4*i,4)}, {v(keep+4*i,4)}, {v(G_,4) if i else "0"}')
        a(f'{MFMA} {v(S_,4)}, {v(vOne,4)}, {v(keep+4*i,4)}, {v(S_,4) if i else "0"}')
    g.exchange(out)
    a(f'v_lshlrev_b32 {v(t1)}, 1, {v(vPo)}')
    a(f's_mov_b32 exec_lo, 0x00f0000f')
    a(f's_mov_b32 exec_hi, 0xf0000f00')
    a(f'v_cndmask_b32 {v(G_)}, {v(G_)}, {v(G_+1)}, {s(sC[0],2)}')
    a(f'v_cndmask_b32 {v(G_)}, {v(G_)}, {v(G_+2)}, {s(sC[1],2)}')
    a(f'v_cndmask_b32 {v(S_+1)}, {v(G_)}, {v(G_+3)}, {s(sC[2],2)}')
    dual(a, [f'buffer_store_dwordx2 {v(S_,2)}, {v(t1)}, {s(SRD_WS,4)}, {s(sSTw)} offen@'], 2)
    a(f's_mov_b64 exec, -1')
    stamp(a)
    base2 = g.base
    va = Alloc('v', p0, VLIM)
    acc = [va(16, 2) for _ in range(3)]
    ring = [va(4, 2) for _ in range(LA + 1)]
    fH = [va(4, 2) for _ in range(D3)]
    vA = [va(), va(), va()]
    vHs = va()
    hi[0] = max(hi[0], va.hi)
    stp = [acc[2] + 8 + 2 * q for q in range(4)] if False else [fH[D3-2], fH[D3-2] + 2, fH[D3-1], fH[D3-1] + 2]
    vS = t2; vRs = t1
    a(f'v_bfe_u32 {v(t0)}, v0, 2, 2')
    a(f'v_lshrrev_b32 {v(t2)}, 5, v0')
    a(f'v_lshl_add_u32 {v(t0)}, {v(t2)}, 3, {v(t0)}')
    a(f'v_bfe_u32 {v(t3)}, v0, 4, 1')
    a(f'v_and_b32 {v(vHs)}, 3, v0')
    a(f'v_lshlrev_b32 {v(vHs)}, 3, {v(vHs)}')
    a(f'v_lshl_add_u32 {v(vHs)}, {v(t3)}, 5, {v(vHs)}')
    a(f'v_lshl_add_u32 {v(vA[2])}, {v(t0)}, 6, {v(vHs)}')
    a(f'v_lshl_add_u32 {v(vA[1])}, {v(t0)}, 7, {v(vHs)}')
    a(f'v_bfe_u32 {v(t0)}, v0, 3, 1')
    a(f'v_lshl_add_u32 {v(vA[0])}, {v(t0)}, 6, {v(vA[1])}')
    a(f'v_xor_b32 {v(vA[1])}, 64, {v(vA[0])}')
    a(f'v_lshl_add_u32 {v(t1)}, {v(t2)}, 9, {v(t1)}')
    a(f'v_lshl_add_u32 {v(t1)}, {v(t3)}, 10, {v(t1)}')
    a(f'v_mul_u32_u24 {v(t3)}, 20480, {v(t3)}')
    a(f'v_lshl_add_u32 {v(t3)}, {v(t2)}, 8, {v(t3)}')
    a(f'v_lshl_add_u32 {v(vHs)}, {v(vPo)}, 2, {v(t3)}')
    publish(a, t0, sF2w)
    stamp(a)
    lg, vmc, base = Cnt(15), Cnt(63), Base(a, vA, 0)
    spoll(a, sF2r, 16, t0, vPo)
    stamp(a)
    def ld(k):
        if k >= 40: return
        if k and k % 4 == 0: a(f's_add_u32 {s(sHsrc)}, {s(sHsrc)}, {s(sR1) if R1 and k == 20 else 2048}')
        a(f'buffer_load_dwordx4 {v(fH[k % D3],4)}, {v(vHs)}, {s(SRD_WS,4)}, {s(sHsrc)} offen offset:{(k%4)*512} sc1')
        vmc.add(k)
    for k in range(4): ld(k)
    for q in range(4):
        a(f'buffer_load_dwordx2 {v(stp[q],2)}, {v(t1)}, {s(SRD_WS,4)}, {s(sSTr)} offen offset:{q*128} sc1')
        vmc.add('st')
    for k in range(4, D3 - 2): ld(k)
    a(f's_barrier')
    stamp(a)
    def rd3(i):
        k, n = divmod(i, 3)
        R = ring[i % (LA + 1)]
        if k == 40:
            a(f'ds_read_b64 {v(R,2)}, {v(t0)} offset:{n*256}')
            lg.add(i)
        if k >= 40: return
        o = base.off(L_W1[k >> 2], BLK1)
        for jh in range(2):
            r = 16 * (k & 3) + 4 * jh
            a(f'ds_read_b64_tr_b16 {v(R+2*jh,2)}, {v(vA[n])} offset:{o + (r*128 if n < 2 else 8192 + r*64)}')
        lg.add(i, 2)
    for i in range(LA): rd3(i)
    class LA_:
        def __init__(self): self.L = []
        def __call__(self, x): self.L.append(x)
    la = LA_()
    for h in range(2):
        la(f'v_add_f32 {v(vS+h)}, {v(stp[0]+h)}, {v(stp[1]+h)}')
        la(f'v_add_f32 {v(t0+h)}, {v(stp[2]+h)}, {v(stp[3]+h)}')
    nfirst = len(la.L)
    for h in range(2): la(f'v_add_f32 {v(vS+h)}, {v(vS+h)}, {v(t0+h)}')
    for h in range(2): la(f'v_mov_b32 {v(t0+h)}, {v(vS+h)}')
    for h in range(2): la(f'v_permlane32_swap_b32 {v(vS+h)}, {v(t0+h)}')
    for h in range(2): la(f'v_add_f32 {v(vS+h)}, {v(vS+h)}, {v(t0+h)}')
    la.L += ln_stats(vS, vS + 1, vRs, raw=True)
    la(f'v_cvt_pk_bf16_f32 {v(vS+1)}, -{v(vS)}, {v(vS+1)}')
    la(f'v_cvt_pk_bf16_f32 {v(vS)}, -{v(vS)}, -{v(vS)}')
    la(f'v_cmp_gt_u32 vcc, 32, v0')
    la(f'v_cndmask_b32 {v(vS)}, 0, {v(vS)}, vcc')
    la(f'v_cndmask_b32 {v(vS+1)}, 0, {v(vS+1)}, vcc')
    la(f'v_and_b32 {v(t0)}, 31, v0')
    la(f'v_lshlrev_b32 {v(t0)}, 3, {v(t0)}')
    la(f'v_add_u32 {v(t0)}, {L_CS}, {v(t0)}')
    fill = {}
    for i, x in enumerate(la.L): fill.setdefault(13 + (0 if i < nfirst else i), []).append(x)
    Bx = fH[40 % D3]
    fill.setdefault(112, []).extend([f'v_mov_b32 {v(Bx)}, {v(vS)}', f'v_mov_b32 {v(Bx+1)}, {v(vS+1)}'])
    fill.setdefault(113, []).extend([f'v_mov_b32 {v(Bx+2)}, 0', f'v_mov_b32 {v(Bx+3)}, 0'])
    fill.setdefault(114, []).extend([f'v_bfe_u32 {v(t3)}, v0, 4, 1', f'v_mul_u32_u24 {v(t3)}, {49152 - 20480}, {v(t3)}'])
    fill.setdefault(115, []).extend([f'v_add_u32 {v(vHs)}, {v(t3)}, {v(vHs)}'])
    assert 3 * (40 - D3) < 112
    for k in range(41):
        if k in (16, 28):
            a(f's_barrier')
            if env('XST', 0): stamp(a)
        for n in range(3):
            i = 3 * k + n
            w = f'lgkmcnt({lg.after(i)})'
            if n == 0 and k < 40: w = f'vmcnt({vmc.after(k)}) ' + w
            a(f's_waitcnt {w}')
            a(f'{MFMA32} {v(acc[n],16)}, {v(ring[i % (LA+1)],4)}, {v(fH[k % D3],4)}, {"0" if k == 0 else v(acc[n],16)}')
            rd3(i + LA)
            for x in fill.get(i, []): a(x)
            if i == 13: ld(D3 - 2); ld(D3 - 1); ld(D3); ld(D3 + 1); ld(D3 + 2); ld(D3 + 3)
            if n == 2 and k >= 4: ld(k + D3)
    stamp(a)
    if X3E: a(f's_barrier')
    for n in range(3):
        for c in range(2):
            A_ = acc[n] + 8 * c
            o_ = ring[(2 * n + c) % (LA + 1)]
            for r in range(8): a(f'v_max_f32 {v(A_+r)}, 0, {v(A_+r)}')
            for h in range(4): a(f'v_pk_mul_f32 {v(A_+2*h,2)}, {v(A_+2*h,2)}, {v(t0,2)} op_sel:[0,1] op_sel_hi:[1,1]')
            for h in range(4): a(f'v_pk_mul_f32 {v(A_+2*h,2)}, {v(A_+2*h,2)}, {v(A_+2*h,2)}')
            for h in range(4): a(f'v_cvt_pk_bf16_f32 {v(o_+h)}, {v(A_+2*h)}, {v(A_+2*h+1)}')
            dual(a, [f'buffer_store_dwordx4 {v(o_,4)}, {v(vHs)}, {s(SRD_WS,4)}, {s(sD01 if n < 2 else sD2)} offen offset:{(n&1)*1024 + c*512}@'], 4)
    stamp(a)
    if not X3E: a(f's_barrier')
    g = G5(24, L_W2, D4, sDb, 3, base2)
    b2 = g.fB[D4-1][0] - 4
    a(f'v_lshrrev_b32 {v(t1)}, 4, v0')
    a(f'v_lshlrev_b32 {v(t1)}, 3, {v(t1)}')
    a(f'v_add_u32 {v(t2)}, {L_B2}, {v(t1)}')
    for n in range(5): a(f'ds_read_b64 {v(b2+2*n,2)}, {v(t2)} offset:{32*n}')
    for i in range(8):
        if R2:
            a(f's_lshl1_add_u32 {s(sT)}, {s(S_C64)}, {i}')
            a(f's_and_b32 {s(sT)}, {s(sT)}, 7')
            a(f's_mul_i32 {s(sT)}, {s(sT)}, 3072')
            a(f's_add_u32 {s(sDb[i])}, {s(sDsrc)}, {s(sT)}')
        else: a(f's_add_u32 {s(sDb[i])}, {s(sDsrc)}, {3072*i}')
    for p in range(2):
        for h in range(2): a(f'v_permlane16_swap_b32 {v(keep+4*p+h)}, {v(keep+4*p+2+h)}')
    publish(a, t0, sF3w)
    stamp(a)
    for i in range(LA): g.rd(i, 0); g.rd(i, 1)
    a(f's_and_b32 {s(sT2)}, {s(S_W)}, 1')
    a(f's_mul_i32 {s(sT)}, {s(sT2)}, 49152')
    a(f'v_add_u32 {v(vB[0])}, {s(sT)}, {v(vL16)}')
    a(f's_sub_u32 {s(sT)}, 49152, {s(sT)}')
    a(f'v_add_u32 {v(vB[1])}, {s(sT)}, {v(vL16)}')
    a(f'v_and_b32 {v(t3)}, 28, {v(vPo)}')
    a(f's_waitcnt lgkmcnt({len(g.lg.q)})')
    for i in range(10):
        unpack(g.acc[0][0] + 2 * i, keep + i)
        unpack(g.acc[1][0] + 2 * i, b2 + i)
    for i in range(10):
        A = g.acc[0][0] + 2 * i
        a(f'v_pk_add_f32 {v(A,2)}, {v(A,2)}, {v(g.acc[1][0] + 2*i,2)}')
    spoll(a, sF3r, 8, t0, t3)
    stamp(a)
    for k in range(D4): g.ld(k, 0); g.ld(k, 1)
    a(f'v_mul_u32_u24 {v(t2)}, 640, {v(vPo)}')
    a(f'v_add_u32 {v(vH4)}, {v(t2)}, {v(t1)}')
    a(f'v_lshrrev_b32 {v(vL16s)}, 8, {v(vL16s)}')
    a(f'v_lshl_add_u32 {v(vL16s)}, {v(vL16s)}, 4, {v(t2)}')
    a(f'v_add_u32 {v(vXa)}, {hex((L_X4 - L_X2) & 0xffffffff)}, {v(vXa)}')
    stamp(a)
    def top(k):
        if k in YB:
            a(f's_barrier')
            if env('XST', 0): stamp(a)
    g.run(top)
    stamp(a)
    def out(i):
        if i < 2: a(f'buffer_store_dwordx4 {v(keep+4*i,4)}, {v(vL16s)}, {s(SRD_B,4)}, {s(sRowP)} offen offset:{64*i}')
        else: a(f'buffer_store_dwordx2 {v(keep+8,2)}, {v(vH4)}, {s(SRD_B,4)}, {s(sRow4)} offen')
    g.exchange(out)
    stamp(a)
    stamps_flush(a)
    a('s_endpgm')
    nf = St.n
    a.label(lhelp)
    St.n = nh
    hi[0] = max(hi[0], helper(a))
    St.n = nf
    for ls, lj, L in DEFER:
        a.label(ls)
        for x in L: a(x)
        a(f's_branch {lj}')
    return hi[0]

def build():
    K = NAME + '_kernel'
    head = '; generated by gen/gen5.py: fused persistent kernel, 8 compute + 4 loader waves per workgroup\n'
    head += f'; @launch grid=(256,1,1) block=(768,1,1) lds={LDS_SIZE}\n'
    head += '.amdgcn_target "amdgcn-amd-amdhsa--gfx950"\n.text\n'
    a = Asm()
    a(f'.globl {K}\n.p2align 8\n.type {K},@function')
    a.label(K)
    lend, lld = a.newlabel('end'), a.newlabel('loader')
    a(f's_cmp_ge_u32 s2, 256')
    a(f's_cbranch_scc1 {lend}')
    a(f's_load_dwordx16 s[16:31], s[0:1], 0')
    a(f's_load_dwordx4 s[32:35], s[0:1], 64')
    a(f's_load_dwordx2 s[36:37], s[0:1], 80')
    if STAMPS:
        a(f's_memrealtime s[96:97]')
        a(f's_memtime s[100:101]')
    a(f'v_lshrrev_b32 v1, 6, v0')
    a(f'v_and_b32 v0, 63, v0')
    a(f'v_readfirstlane_b32 {s(S_W)}, v1')
    a(f's_and_b32 {s(S_XCD)}, s2, 7')
    a(f's_lshr_b32 {s(S_R)}, s2, 3')
    a(f's_lshr_b32 {s(S_C)}, {s(S_R)}, 4')
    a(f's_lshl1_add_u32 {s(S_C)}, {s(S_XCD)}, {s(S_C)}')
    a(f's_and_b32 {s(S_J)}, {s(S_R)}, 15')
    a(f's_lshr_b32 {s(S_C64)}, {s(S_J)}, 3')
    a(f's_lshl1_add_u32 {s(S_C64)}, {s(S_C)}, {s(S_C64)}')
    a(f's_and_b32 {s(S_J8)}, {s(S_J)}, 7')
    if STAMPS:
        a(f's_waitcnt lgkmcnt(0)')
        a(f'v_writelane_b32 v{VST}, s96, 0')
        a(f'v_writelane_b32 v{VST}, s100, 1')
        St.n = 2
        stamp(a)
    a(f's_cmp_lt_u32 {s(S_W)}, 8')
    lcomp = a.newlabel('compute')
    a(f's_cbranch_scc1 {lcomp}')
    n0 = St.n
    nl = loader(a)
    print('loader stamps', St.n, file=sys.stderr)
    a.label(lend)
    a('s_endpgm')
    a.label(lcomp)
    St.n = n0
    nc = compute(a)
    print('compute stamps', St.n, 'vgprs', nl, nc, file=sys.stderr)
    print('nops inserted', a.pad(), file=sys.stderr)
    desc = f'''.section .rodata,"a"
.p2align 6
.amdhsa_kernel {K}
  .amdhsa_next_free_vgpr 168
  .amdhsa_next_free_sgpr 102
  .amdhsa_accum_offset 168
  .amdhsa_group_segment_fixed_size 0
  .amdhsa_kernarg_size 88
  .amdhsa_user_sgpr_count 2
  .amdhsa_user_sgpr_kernarg_segment_ptr 1
  .amdhsa_system_sgpr_workgroup_id_x 1
.end_amdhsa_kernel
'''
    return head + a.text() + desc

if __name__ == '__main__':
    out = sys.argv[1] if len(sys.argv) > 1 else f'cdna_kernels/{NAME}.s'
    open(out, 'w').write(build())
```

```python
import sys, os, struct, math
sys.path.insert(0, os.path.dirname(os.path.abspath(__file__)))
from asmlib import Asm, Alloc, v, s

NAME = 'sequential_preLN__sliding_local_dilated__dense_activation_squared_relu__prompt'
def env(n, d): return int(os.environ.get(n, d))
STAMPS = env('STAMPS', 0)
ROT    = env('ROT', 3)
FORCE_SLOW = env('SLOW', 0)
D2, D3, D4 = env('D2', 8), env('D3', 16), env('D4', 8)
LA     = env('LA', 5)
PRIO   = env('PRIO', 3)
PRIO2  = env('PRIO2', 3)
SPF    = env('SPF', 0)
NB8    = env('NB8', 0)
N1A, N1B = env('N1A', 4), env('N1B', 1)
NSTG   = env('NSTG', 7)
HA     = env('HA', 6)
TH, T1, TW = env('TH', 4), env('T1', 4), env('TW', 0)
RO, R1, R2 = env('RO', 1), env('R1', 1), env('R2', 1)
X3E    = env('X3E', 0)
PFH    = env('PFH', 0)
PF     = os.environ.get('PF', ',,,,,,').split(',')

WS_OF  = 0
WS_HF  = 4 << 20
WS_DF  = 8 << 20
WS_ST  = 16 << 20
WS_WO4 = 20 << 20
WS_W24 = WS_WO4 + (256 << 10)
WS_FL  = 28 << 20
FL_HELLO, FL_WO, FL_W2 = WS_FL + 1024, WS_FL + 4096, WS_FL + 8192
FL_1, FL_2, FL_3 = WS_FL + 16384, WS_FL + 32768, WS_FL + 49152
WS_TS = 29 << 20
WS_SIZE = 32 << 20

WROW  = 1056
XIMG  = 32 * WROW
SLOT  = XIMG + 10240
BLK, BLK1 = 8 * WROW + 2048, 12288
L_DUMP = 2 * SLOT
L_WO  = [SLOT + BLK * b for b in range(4)] + [135808, 146304] + [BLK * b for b in range(4)]
L_W1  = [BLK1 * b for b in range(7)] + [115456 + BLK1 * b for b in range(3)]
L_W2  = [BLK * b for b in (9, 10, 0, 1, 2, 3, 4, 5, 6, 7, 8, 11, 12, 13, 14)]
L_W2 += L_W2[:9]
L_X2, L_X4 = 9 * BLK, 7 * BLK
L_STAGE = 156800
L_CSP = L_STAGE
L_STAT = 160896
L_TAG = L_STAT + 640
L_B2  = L_TAG + 64
L_CS  = L_TAG + 256
DROW = 488
LDS_SIZE = 163840
SPIN = 1 << 16

S_PX, S_PWQKV, S_PWO, S_PBX, S_PW1, S_PB1, S_PW2, S_PB2 = 16, 18, 20, 22, 24, 26, 28, 30
S_POUT, S_PDBG, S_PWS = 32, 34, 36
SRD_WS, SRD_A, SRD_B, SRD_C = 4, 8, 12, 48
S_W, S_XCD, S_R, S_C, S_J, S_C64, S_J8, S_TAG, S_SAME, S_CNT = 38, 39, 40, 41, 42, 43, 44, 45, 46, 47
S_FREE = 52
S_LIM = 96
VLIM = 167 if STAMPS else 168
VST = 167
MFMA = 'v_mfma_f32_16x16x32_bf16'
MFMA32 = 'v_mfma_f32_32x32x16_bf16'

class St:
    n = 0
def stamp(a, real=False, sidx=None, cnt=1):
    if not STAMPS: return
    a(f'{"s_memrealtime" if real else "s_memtime"} s[98:99]')
    a('s_waitcnt lgkmcnt(0)')
    if sidx is None:
        a(f'v_writelane_b32 v{VST}, s98, {St.n}')
    else:
        a(f's_add_u32 m0, {s(sidx)}, {St.n}')
        a(f'v_writelane_b32 v{VST}, s98, m0')
    St.n += cnt
    assert St.n <= 64
stamp_ = stamp
def stamps_flush(a):
    if not STAMPS: return
    a('s_waitcnt vmcnt(0)')
    stamp(a); stamp(a, True)
    a(f'v_writelane_b32 v{VST}, {St.n}, 63')
    a(f's_mul_i32 s3, s2, 12')
    a(f's_add_u32 s3, s3, {s(S_W)}')
    a(f's_lshl_b32 s3, s3, 8')
    a(f's_add_u32 s3, s3, {WS_TS}')
    a('s_mov_b64 exec, -1')
    a('v_lshlrev_b32 v1, 2, v0')
    a(f'buffer_store_dword v{VST}, v1, {s(SRD_WS,4)}, s3 offen')

def srd(a, dst, ptr, size):
    a(f's_mov_b32 {s(dst)}, {s(ptr)}')
    a(f's_and_b32 {s(dst+1)}, {s(ptr+1)}, 0xffff')
    a(f's_mov_b32 {s(dst+2)}, {size}')
    a(f's_mov_b32 {s(dst+3)}, 0x00020000')

def bf16r(a, x):
    a(f'v_cvt_pk_bf16_f32 {v(x)}, {v(x)}, {v(x)}')
    a(f'v_lshlrev_b32 {v(x)}, 16, {v(x)}')

def xg_reduce(a, xs, tmps, op):
    for sw in ('v_permlane32_swap_b32', 'v_permlane16_swap_b32'):
        for x, t in zip(xs, tmps): a(f'v_mov_b32 {v(t)}, {v(x)}')
        for x, t in zip(xs, tmps): a(f'{sw} {v(x)}, {v(t)}')
        for x, t in zip(xs, tmps): a(f'{op} {v(x)}, {v(x)}, {v(t)}')

def ln_stats(vsum, vsq, t0, raw=False):
    L = []
    a = L.append
    inv = 0x3ACCCCCD
    a(f'v_mul_f32 {v(vsum)}, {hex(inv)}, {v(vsum)}')
    a(f'v_mul_f32 {v(vsq)}, {hex(inv)}, {v(vsq)}')
    a(f'v_fma_f32 {v(vsq)}, -{v(vsum)}, {v(vsum)}, {v(vsq)}')
    a(f'v_max_f32 {v(vsq)}, 0, {v(vsq)}')
    bf16r(a, vsq)
    a(f'v_add_f32 {v(vsq)}, 0x3727C5AC, {v(vsq)}')
    bf16r(a, vsq)
    a(f'v_sqrt_f32 {v(vsq)}, {v(vsq)}')
    bf16r(a, vsum)
    bf16r(a, vsq)
    a(f'v_rcp_f32 {v(t0)}, {v(vsq)}')
    if raw: return L
    a(f'v_mul_f32 {v(vsq)}, {v(vsum)}, {v(t0)}')
    a(f'v_mov_b32 {v(vsum)}, {v(t0)}')
    return L

DEFER = []
def dual(a, lines, bit=0):
    if env('SD', 7) & bit:
        for x in lines: a(x.replace('@', ' sc1'))
        return
    ls, lj = a.newlabel('slow'), a.newlabel('join')
    a(f's_cmp_eq_u32 {s(S_SAME)}, 0')
    a(f's_cbranch_scc1 {ls}')
    for x in lines: a(x.replace('@', os.environ.get('SB', '').replace('_', ' ')))
    a.label(lj)
    DEFER.append((ls, lj, [x.replace('@', ' sc1') for x in lines]))

def publish(a, vT, sFlag):
    a(f'v_mov_b32 {v(vT)}, {s(S_TAG)}')
    a(f's_mov_b64 exec, 1')
    a(f's_waitcnt vmcnt(0)')
    dual(a, [f'buffer_store_dword {v(vT)}, off, {s(SRD_WS,4)}, {s(sFlag)}@'])
    a(f's_mov_b64 exec, -1')

def poll0(a, vF, vOff, sOff):
    if env('PP', 1): a(f'buffer_load_dword {v(vF)}, {v(vOff)}, {s(SRD_WS,4)}, {s(sOff)} offen sc1')
def poll(a, vF, vOff, sOff, vG=None):
    lp, ld = a.newlabel('poll'), a.newlabel('polld')
    if vG is not None and env('PP', 1):
        ldf = lambda r: a(f'buffer_load_dword {v(r)}, {v(vOff)}, {s(SRD_WS,4)}, {s(sOff)} offen sc1')
        a(f's_mov_b32 {s(S_CNT)}, {SPIN}')
        a.label(lp)
        for x, y in ((vG, vF), (vF, vG)):
            ldf(x)
            a(f's_waitcnt vmcnt(1)')
            a(f'v_cmp_ne_u32 vcc, {s(S_TAG)}, {v(y)}')
            a(f's_cmp_eq_u64 vcc, 0')
            a(f's_cbranch_scc1 {ld}')
        a(f's_sub_u32 {s(S_CNT)}, {s(S_CNT)}, 1')
        a(f's_cbranch_scc0 {lp}')
        a.label(ld)
        return
    a(f's_mov_b32 {s(S_CNT)}, {SPIN}')
    a.label(lp)
    a(f'buffer_load_dword {v(vF)}, {v(vOff)}, {s(SRD_WS,4)}, {s(sOff)} offen sc1')
    a(f's_sub_u32 {s(S_CNT)}, {s(S_CNT)}, 1')
    a(f's_cbranch_scc1 {ld}')
    a(f's_waitcnt vmcnt(0)')
    a(f'v_cmp_ne_u32 vcc, {s(S_TAG)}, {v(vF)}')
    a(f's_cmp_lg_u64 vcc, 0')
    a(f's_cbranch_scc1 {lp}')
    a.label(ld)

TABS = {
 1: [list(range(10))] * 4,
 2: [list(range(10)), [5,6,7,8,9,0,1,2,3,4]] * 2,
 3: [[0,1,4,2,3,5,8,6,7,9], [0,2,1,3,6,4,5,7,9,8], [1,0,2,5,3,4,6,9,7,8], [1,3,0,2,4,7,5,6,8,9]],
 4: [[0,1,2,3,4,5,6,7,8,9], [1,2,3,0,5,6,7,4,9,8], [2,3,0,1,6,7,4,5,8,9], [3,0,1,2,7,4,5,6,9,8]],
 5: [[0,1,2,5,3,4,6,9,7,8], [0,2,1,3,6,4,5,7,8,9], [0,3,1,2,5,7,4,6,8,9], [0,1,4,2,3,5,8,6,7,9]],
}
def ord_init(a, sOrd, sT, inv=False):
    tab = [sum((i << (4 * c)) if inv else (c << (4 * i)) for i, c in enumerate(r)) for r in TABS[ROT]]
    a(f's_add_u32 {s(sT)}, {s(S_C64)}, {s(S_J8)}')
    a(f's_and_b32 {s(sT)}, {s(sT)}, 3')
    a(f's_mov_b32 {s(sOrd)}, {hex(tab[0] & 0xffffffff)}')
    a(f's_mov_b32 {s(sOrd+1)}, {hex(tab[0] >> 32)}')
    for q in range(1, 4):
        a(f's_cmp_eq_u32 {s(sT)}, {q}')
        a(f's_cselect_b32 {s(sOrd)}, {hex(tab[q] & 0xffffffff)}, {s(sOrd)}')
        a(f's_cselect_b32 {s(sOrd+1)}, {hex(tab[q] >> 32)}, {s(sOrd+1)}')
def ord_next(sOrd, dst, sT2):
    return [f's_and_b32 {s(dst)}, {s(sOrd)}, 15',
            f's_add_u32 {s(dst)}, {s(dst)}, {s(S_XCD)}',
            f's_sub_u32 {s(sT2)}, {s(dst)}, 10',
            f's_cselect_b32 {s(dst)}, {s(dst)}, {s(sT2)}',
            f's_lshr_b64 {s(sOrd,2)}, {s(sOrd,2)}, 4']

def nonce_load(a):
    a(f's_mov_b32 {s(S_TAG)}, {WS_FL}')
    a(f's_load_dword {s(S_TAG)}, {s(S_PWS,2)}, {s(S_TAG)}')
def nonce_to_tag(a):
    a(f's_and_b32 {s(S_TAG)}, {s(S_TAG)}, 0xfffffff8')
    a(f's_add_u32 {s(S_TAG)}, {s(S_TAG)}, 8')

def tr_patterns(a, vF, vH, t):
    a(f'v_bfe_u32 {v(t)}, v0, 2, 3')
    a(f'v_mul_u32_u24 {v(vF)}, {WROW}, {v(t)}')
    a(f'v_lshrrev_b32 {v(t)}, 5, v0')
    a(f'v_lshl_add_u32 {v(vF)}, {v(t)}, 7, {v(vF)}')
    if vH is not None:
        a(f'v_lshlrev_b32 {v(vH)}, 8, {v(t)}')
        a(f'v_bfe_u32 {v(t)}, v0, 4, 1')
        a(f'v_mul_u32_u24 {v(t)}, {WROW}, {v(t)}')
        a(f'v_add_u32 {v(vH)}, {v(t)}, {v(vH)}')
        a(f'v_bfe_u32 {v(t)}, v0, 2, 2')
        a(f'v_lshl_add_u32 {v(vH)}, {v(t)}, 6, {v(vH)}')
    a(f'v_and_b32 {v(t)}, 3, v0')
    a(f'v_lshl_add_u32 {v(vF)}, {v(t)}, 3, {v(vF)}')
    if vH is not None: a(f'v_lshl_add_u32 {v(vH)}, {v(t)}, 3, {v(vH)}')

class Cnt:
    def __init__(self, cap): self.q, self.cap, self.alias = [], cap, {}
    def add(self, tag, n=1): self.q += [tag] * n
    def after(self, pred):
        if not callable(pred): pred = self.alias.get(pred, pred)
        f = pred if callable(pred) else (lambda t: t == pred)
        idx = [i for i, t in enumerate(self.q) if f(t)]
        return min(len(self.q) - 1 - idx[-1], self.cap)

def w2_off(a, k, sQ6, sA, sB, sFb):
    if R2:
        a(f's_add_u32 {s(sA)}, {s(sQ6)}, {k}')
        a(f's_sub_u32 {s(sB)}, {s(sA)}, 24')
        a(f's_cselect_b32 {s(sA)}, {s(sA)}, {s(sB)}')
        a(f's_lshl_b32 {s(sB)}, {s(sA)}, 10')
        a(f's_mul_i32 {s(sA)}, {s(sA)}, {32*1280}')
        a(f's_add_u32 {s(sB)}, {s(sB)}, {s(sFb)}')
    else:
        a(f's_mov_b32 {s(sA)}, {32*k*1280}')
        a(f's_add_u32 {s(sB)}, {s(sFb)}, {k*1024}')
def row_pat(a, P, c1, c2, c3, rs, scol, t0, t1, t2, t3, dma=True):
    a(f'v_mul_u32_u24 {v(P[0])}, {c1*rs}, {v(t1)}')
    a(f'v_mul_u32_u24 {v(P[1])}, {c2*rs}, {v(t2)}')
    a(f'v_add3_u32 {v(P[0])}, {v(P[0])}, {v(P[1])}, {v(t0)}')
    a(f'v_mul_u32_u24 {v(P[1])}, {c3*rs}, {v(t3)}')
    a(f'v_add3_u32 {v(P[0])}, {v(P[0])}, {v(P[1])}, {s(scol)}')
    if dma: a(f'v_add_u32 {v(P[1])}, {rs - WROW}, {v(P[0])}')
def row_bits(a, sL, sT, sT2, t0, t1, t2, t3):
    a(f's_lshr_b32 {s(sT)}, {s(S_J8)}, 2')
    a(f's_add_u32 {s(sT)}, {s(sT)}, {s(S_J8)}')
    a(f's_lshl_b32 {s(sT)}, {s(sT)}, 7')
    a(f'v_and_b32 {v(t0)}, 7, v0')
    a(f'v_lshlrev_b32 {v(t0)}, 4, {v(t0)}')
    a(f'v_lshrrev_b32 {v(t1)}, 5, v0')
    a(f'v_bfe_u32 {v(t2)}, v0, 4, 1')
    a(f'v_bfe_u32 {v(t3)}, v0, 3, 1')
    a(f's_mul_i32 {s(sT2)}, {s(sL)}, 2560')
    a(f's_add_u32 {s(sT2)}, {s(sT2)}, {s(sT)}')

class Base:
    def __init__(self, a, regs, cur): self.a, self.regs, self.cur = a, regs, cur
    def off(self, addr, span):
        if not (self.cur <= addr and addr + span - self.cur <= 65536):
            for r in self.regs: self.a(f'v_add_u32 {v(r)}, {hex((addr - self.cur) & 0xffffffff)}, {v(r)}')
            self.cur = addr
        return addr - self.cur

import re
def scc_cuts(L):
    rd = lambda x: re.match(r's_(cselect|cbranch_scc|addc|subb|cmov)', x)
    wr = lambda x: x.startswith('s_') and not re.match(r's_(mov|mul_i32|cselect|cmov|waitcnt|nop|getreg|setprio)', x)
    ok = [True] * (len(L) + 1)
    live = False
    for i in range(len(L) - 1, -1, -1):
        if rd(L[i]): live = True
        elif wr(L[i]): live = False
        ok[i] = not live
    return ok

def claim(a, m, q, sL, sA, sB, vD, vL16):
    off = 0
    if m == 'D':
        a(f's_lshl2_add_u32 {s(sA)}, {s(S_C)}, {s(sL)}')
        a(f's_lshl_b32 {s(sA)}, {s(sA)}, 5')
        a(f's_add_u32 {s(sA)}, {s(sA)}, {s(S_J)}')
        a(f's_mul_i32 {s(sA)}, {s(sA)}, 3072')
        a(f's_add_u32 {s(sA)}, {s(sA)}, {WS_DF + 49152 * (q // 3)}')
        off = 1024 * (q % 3); assert q < 6
    elif m == 'S':
        a(f's_lshl2_add_u32 {s(sA)}, {s(S_C64)}, {s(sL)}')
        a(f's_lshl3_add_u32 {s(sA)}, {s(sA)}, {s(S_J8)}')
        a(f's_lshl_b32 {s(sA)}, {s(sA)}, 7')
        a(f's_add_u32 {s(sA)}, {s(sA)}, {WS_ST}')
        a(f's_mov_b64 exec, 0xff'); assert q < 1
    else:
        assert q < 3
        a(f's_lshl2_add_u32 {s(sA)}, {s(S_C64)}, {s(sL)}')
        a(f's_mul_i32 {s(sA)}, {s(sA)}, 40')
        a(f's_and_b32 {s(sB)}, {s(S_J8)}, 4')
        if q < 2:
            a(f's_lshl2_add_u32 {s(sA)}, {s(S_J8)}, {s(sA)}')
            a(f's_add_u32 {s(sA)}, {s(sA)}, {s(sB)}')
            off = 1024 * q
        else:
            a(f's_lshl2_add_u32 {s(sA)}, {s(sB)}, {s(sA)}')
            a(f's_add_u32 {s(sA)}, {s(sA)}, {s(S_J8)}')
            a(f's_add_u32 {s(sA)}, {s(sA)}, 16')
            a(f's_mov_b32 exec_hi, 0')
        a(f's_lshl_b32 {s(sA)}, {s(sA)}, 9')
        if m == 'H': a(f's_add_u32 {s(sA)}, {s(sA)}, {WS_HF}')
    if env('CLD', 1): a(f'buffer_load_dwordx4 {v(vD,4)}, {v(vL16)}, {s(SRD_WS,4)}, {s(sA)} offen offset:{off} sc1')
    else: a(f'buffer_store_dwordx4 {v(vD,4)}, {v(vL16)}, {s(SRD_WS,4)}, {s(sA)} offen offset:{off} sc1')
    a('s_mov_b64 exec, -1')

SS = env('SS', 64)
def region(m, sL, sA, sB, nw):
    L = []
    a = L.append
    if m in 'oab':
        ptr, nb = {'o': (S_PWO, 640 * 1280), 'a': (S_PW1, 640 * 3072), 'b': (S_PW2, 1536 * 1280)}[m]
        P = -(-nb // (128 * 256 * nw)) * 128
        a(f's_mul_i32 {s(sA)}, s2, {nw}')
        a(f's_add_u32 {s(sA)}, {s(sA)}, {s(sL)}')
        a(f's_mul_i32 {s(sA)}, {s(sA)}, {P}')
        a(f's_min_u32 {s(sA)}, {s(sA)}, {nb - P}')
        return [(L, ptr, list(range(0, P, SS)))]
    if m == 'U':
        a(f's_mul_i32 {s(sA)}, {s(S_C64)}, {64*1280}')
        return [(L, S_POUT, [0])]
    if m == 'T':
        return [(r[0], r[1], [0]) for x in 'OHDS' for r in region(x, sL, sA, sB, nw)[:1]]
    if m == 'x':
        a(f's_lshl3_add_u32 {s(sA)}, {s(S_C64)}, {s(S_J8)}')
        a(f's_lshl3_add_u32 {s(sA)}, {s(sA)}, {s(sL)}')
        a(f's_mul_i32 {s(sA)}, {s(sA)}, 1280')
        return [(L, S_PX, list(range(0, 1280, SS)))]
    R = []
    for q, nb in {'D': ((0, 3072), (3, 3072)), 'S': ((0, 128),), 'O': ((0, 2048), (2, 512)), 'H': ((0, 2048), (2, 512))}[m]:
        L = []
        claim(L.append, m, q, sL, sA, sB, 0, 0)
        R.append(([x for x in L if 'exec' not in x and 'buffer' not in x], S_PWS, list(range(0, nb, SS))))
    return R
class Touch:
    def __init__(self, a, spec, sL, sA, sB, sJ, nw):
        self.a, self.sA, self.sJ = a, sA, sJ
        self.q = [r for m in spec for r in region(m, sL, sA, sB, nw)]
    def go(self, n):
        while n and self.q:
            L, ptr, offs = self.q[0]
            for x in L: self.a(x)
            while n and offs:
                self.a(f's_load_dword {s(self.sJ)}, {s(ptr,2)}, {s(self.sA)} offset:{offs.pop(0)}'); n -= 1
            if not offs: self.q.pop(0)

STG = list(range(env('ST0', 11), env('ST0', 11) + NSTG))
YB = [int(x) for x in os.environ.get('YB', '2,6,14,20').split(',')]
YI, _lo = [], 11
for _j in range(len(YB)):
    _hi = min(15 + (YB[_j-1] if _j else 0), 24)
    _kw = YB[_j+1] if _j + 1 < len(YB) else 23
    assert _kw < _hi
    YI.append((_lo, _hi, _kw)); _lo = _hi

def loader(a):
    stamp = stamp_
    sa = Alloc('s', S_FREE, S_LIM)
    va = Alloc('v', 1, VLIM)
    sL, sT, sT2, sI, sOffW, sOffX, sMW, sMX, sMH, sSlot, sXm = [sa() for _ in range(11)]
    sOrd = sa(2); sHm = sa(2)
    SRD_D = sa(4)
    vL16 = va()
    t0, t1, t2, t3 = va(), va(), va(), va()
    pA, pB, pC = [[va(), va()] for _ in range(3)]
    pD, pE, vWf, vWh, vB1, vCp = [va() for _ in range(6)]
    vDm = va(4, 2)
    selF, selH, accC = va(4, 2), va(4, 2), va(4, 2)
    u0 = va.n
    stg = [va(4, 2) for _ in range(30)]
    va.release(u0)
    vW = [va() for _ in range(8)]
    vX = [va() for _ in range(3)]
    vN, vF, vFo, vU, vTg = va(), va(), va(), va(), va()
    sPf = sa()
    WMASK = '0x3fffffff'
    if PRIO: a(f's_setprio {PRIO}')
    a(f's_sub_u32 {s(sL)}, {s(S_W)}, 8')
    a(f'v_lshrrev_b32 {v(t0)}, 3, v0')
    a(f'v_lshrrev_b32 {v(t1)}, 4, v0')
    a(f'v_and_b32 {v(t2)}, 7, v0')
    a(f'v_xor_b32 {v(t1)}, {v(t1)}, {v(t2)}')
    a(f's_lshr_b32 {s(sT)}, {s(sL)}, 1')
    a(f's_lshl_b32 {s(sT2)}, {s(S_C64)}, 6')
    a(f's_add_u32 {s(sT2)}, {s(sT2)}, {s(sT)}')
    a(f's_and_b32 {s(sT)}, {s(sL)}, 1')
    a(f's_lshl3_add_u32 {s(sMH)}, {s(sT)}, {s(sT2)}')
    a(f's_sub_u32 {s(sMH)}, {s(sMH)}, 16')
    a(f's_lshl_b32 {s(sT)}, {s(sT)}, 5')
    a(f's_add_u32 {s(sT2)}, {s(sT2)}, {s(sT)}')
    a(f'v_lshl_add_u32 {v(t2)}, {v(t0)}, 1, {s(sT2)}')
    a(f'v_lshl_add_u32 {v(t3)}, {v(t0)}, 1, {s(sMH)}')
    a(f'v_mul_u32_u24 {v(t2)}, 1280, {v(t2)}')
    a(f'v_max_i32 {v(t3)}, 0, {v(t3)}')
    a(f'v_lshl_add_u32 {v(vX[0])}, {v(t1)}, 4, {v(t2)}')
    a(f'v_mul_u32_u24 {v(t3)}, 1280, {v(t3)}')
    a(f'v_xor_b32 {v(vX[1])}, 64, {v(vX[0])}')
    a(f's_lshl_b32 {s(sT)}, {s(sL)}, 1')
    a(f'v_xor_b32 {v(t1)}, {s(sT)}, {v(t1)}')
    a(f'v_add_u32 {v(vX[1])}, {16*1280 - 1024}, {v(vX[1])}')
    a(f'v_lshl_add_u32 {v(vX[2])}, {v(t1)}, 4, {v(t3)}')
    a(f's_cmp_eq_u32 {s(sL)}, 0')
    a(f's_cselect_b32 {s(sXm)}, 0xffffff00, -1')
    a(f's_lshl_b32 {s(sMX)}, {s(sL)}, 11')
    a(f's_add_u32 {s(sMX)}, {s(sMX)}, {XIMG}')
    a(f's_lshl_b32 {s(sMH)}, {s(sL)}, 9')
    a(f's_add_u32 {s(sMH)}, {s(sMH)}, {XIMG + 8192}')
    ord_init(a, sOrd, sT)
    nxt = ord_next(sOrd, sOffX, sOffW) + [f's_mul_i32 {s(sOffW)}, {s(sOffX)}, {64*3840}', f's_lshl_b32 {s(sOffX)}, {s(sOffX)}, 7']
    for x in nxt: a(x)
    a(f'v_and_b32 {v(t0)}, 31, v0')
    a(f'v_lshrrev_b32 {v(t1)}, 5, v0')
    a(f'v_mul_u32_u24 {v(t2)}, 26, {v(t0)}')
    a(f'v_lshrrev_b32 {v(t2)}, 8, {v(t2)}')
    a(f'v_mul_u32_u24 {v(t2)}, 1120, {v(t2)}')
    a(f'v_lshl_add_u32 {v(t2)}, {v(t0)}, 4, {v(t2)}')
    a(f'v_mul_u32_u24 {v(t3)}, {32*3840}, {v(t1)}')
    a(f's_mul_i32 {s(sT)}, {s(S_J8)}, 160')
    a(f's_mul_i32 {s(sT2)}, {s(sL)}, {8*3840}')
    a(f's_add_u32 {s(sT)}, {s(sT)}, {s(sT2)}')
    a(f'v_add3_u32 {v(vW[0])}, {v(t2)}, {v(t3)}, {s(sT)}')
    for i in range(1, 8):
        a(f'v_add_u32 {v(vW[i])}, {i*3840 - (i&3)*WROW}, {v(vW[0])}')
    a(f's_lshr_b32 {s(sMW)}, {s(sL)}, 1')
    a(f's_lshl_b32 {s(sMW)}, {s(sMW)}, 2')
    a(f's_and_b32 {s(sT2)}, {s(sL)}, 1')
    a(f's_add_u32 {s(sMW)}, {s(sMW)}, {s(sT2)}')
    a(f's_mul_i32 {s(sMW)}, {s(sMW)}, {4*WROW}')
    a(f's_mov_b32 {s(sSlot)}, 0')
    a(f's_waitcnt lgkmcnt(0)')
    srd(a, SRD_B, S_PX, 2048 * 1280)
    srd(a, SRD_A, S_PWQKV, 640 * 3840)

    def chunk_dma():
        P = []
        P.append([f's_add_u32 m0, {s(sSlot)}, {s(sMX)}', 's_mov_b64 exec, -1',
                  f'buffer_load_dwordx4 {v(vX[0])}, {s(SRD_B,4)}, {s(sOffX)} offen lds',
                  f'buffer_load_dwordx4 {v(vX[1])}, {s(SRD_B,4)}, {s(sOffX)} offen offset:1024 lds',
                  f's_add_u32 m0, {s(sSlot)}, {s(sMH)}', f's_mov_b32 exec_lo, {s(sXm)}', 's_mov_b32 exec_hi, 0',
                  f'buffer_load_dwordx4 {v(vX[2])}, {s(SRD_B,4)}, {s(sOffX)} offen lds'])
        P.append([f's_add_u32 m0, {s(sSlot)}, {s(sMW)}', f's_mov_b32 exec_lo, {WMASK}', f's_mov_b32 exec_hi, {WMASK}'])
        for i in range(8):
            p = []
            if i == 4: p += [f's_add_u32 m0, m0, {8*WROW}', 's_nop 0']
            p.append(f'buffer_load_dwordx4 {v(vW[i])}, {s(SRD_A,4)}, {s(sOffW)} offen offset:{(i&3)*WROW} lds')
            P.append(p)
        P.append(['s_mov_b64 exec, -1'] + nxt + [f's_add_u32 {s(sSlot)}, {s(sSlot)}, {SLOT}',
                  f's_cmp_eq_u32 {s(sSlot)}, {3*SLOT}',
                  f's_cselect_b32 {s(sSlot)}, 0, {s(sSlot)}'])
        return P
    NCH = 11
    Q0, Q1, Q2 = env('Q0', 5), env('Q1', 7), env('Q2', 9)
    qn = lambda q: q + 2 if q else 0
    fillq = []
    def emit(lo, hi, per=0):
        P = chunk_dma()
        wm = P[1][1:]
        for q in range(lo, hi):
            if q == 0:
                for x in P[0]: a(x)
            else:
                if q == 1 or q == lo:
                    for x in P[1]: a(x)
                    if q > 5: a(f's_add_u32 m0, m0, {8*WROW}'); a('s_nop 0')
                for x in P[q + 1]: a(x)
            if per and fillq:
                a('s_mov_b64 exec, -1')
                n = per
                ok = scc_cuts(fillq)
                while n < len(fillq) and not ok[n]: n += 1
                for x in fillq[:n]: a(x)
                del fillq[:n]
                if 0 < q < hi - 1:
                    for x in wm: a(x)
        if hi == 9 and lo < 9:
            for x in P[-1]: a(x)
        else: a('s_mov_b64 exec, -1')
    stamp(a)
    emit(0, 9)
    stamp(a)
    nonce_load(a)
    emit(0, Q0)
    stamp(a)
    real_a, unit = a, []
    class LB_:
        def __call__(self, x): unit.append(x)
        def label(self, l): unit.append(l + ':')
        def newlabel(self, x): return real_a.newlabel(x)
    a = LB_()
    sBase, sG, sJs, sD, sFlag = [sa() for _ in range(5)]
    l_w2, l_go, l_no = a.newlabel('cw2'), a.newlabel('cgo'), a.newlabel('cno')
    srd(a, SRD_C, S_PWO, 640 * 1280)
    srd(a, SRD_D, S_PW2, 1536 * 1280)
    a(f's_cmp_ge_u32 s2, 136')
    a(f's_cbranch_scc1 {l_no}')
    a(f's_and_b32 {s(sD)}, s2, 1')
    a(f's_lshl2_add_u32 {s(sFlag)}, {s(sD)}, {s(sL)}')
    a(f's_mul_i32 {s(sD)}, {s(sD)}, 640')
    a(f'v_and_b32 {v(t0)}, 7, v0')
    a(f'v_lshlrev_b32 {v(t0)}, 4, {v(t0)}')
    a(f'v_add3_u32 {v(t0)}, {v(t0)}, {s(sD)}, 64')
    a(f'v_lshrrev_b32 {v(t1)}, 5, v0')
    a(f'v_bfe_u32 {v(t2)}, v0, 3, 2')
    a(f's_lshl_b32 {s(sT)}, {s(sL)}, 10')
    a(f's_add_u32 m0, {s(sT)}, {L_STAGE - 448}')
    a(f's_cmp_ge_u32 s2, 40')
    a(f's_cbranch_scc1 {l_w2}')
    a(f's_lshr_b32 {s(sT)}, s2, 1')
    a(f's_cmp_ge_u32 {s(sT)}, 10')
    a(f's_cselect_b32 {s(sT2)}, 10, 0')
    a(f's_cselect_b32 {s(sBase)}, 320, 0')
    a(f's_sub_u32 {s(sT2)}, {s(sT)}, {s(sT2)}')
    a(f's_mul_i32 {s(sG)}, {s(sT2)}, 40')
    a(f's_mul_i32 {s(sJs)}, {s(sT2)}, 160')
    a(f's_sub_u32 {s(sJs)}, {s(sJs)}, {8*160-16}')
    a(f's_cmp_lt_u32 {s(sT2)}, 8')
    a(f's_cselect_b32 {s(sG)}, {s(sG)}, {s(sJs)}')
    a(f's_cselect_b32 {s(sJs)}, 4, 40')
    a(f's_add_u32 {s(sBase)}, {s(sBase)}, {s(sG)}')
    a(f's_mul_i32 {s(sJs)}, {s(sJs)}, {s(sL)}')
    a(f's_add_u32 {s(sBase)}, {s(sBase)}, {s(sJs)}')
    a(f's_mul_i32 {s(sBase)}, {s(sBase)}, 1280')
    a(f'v_mad_u32_u24 {v(t1)}, {v(t1)}, 20, {v(t2)}')
    a(f'v_mul_u32_u24 {v(t1)}, 1280, {v(t1)}')
    a(f'v_add_u32 {v(t0)}, {v(t0)}, {v(t1)}')
    a(f'buffer_load_dwordx4 {v(t0)}, {s(SRD_C,4)}, {s(sBase)} offen offset:448 lds')
    a(f's_mul_i32 {s(sD)}, {s(sFlag)}, 20')
    a(f's_add_u32 {s(sD)}, {s(sD)}, {WS_WO4 >> 10}')
    a(f's_lshl_b32 {s(sFlag)}, {s(sFlag)}, 7')
    a(f's_add_u32 {s(sFlag)}, {s(sFlag)}, {FL_WO}')
    a(f's_branch {l_go}')
    a.label(l_w2)
    a(f's_sub_u32 {s(sT)}, s2, 40')
    a(f's_lshr_b32 {s(sT)}, {s(sT)}, 1')
    a(f's_and_b32 {s(sG)}, {s(sL)}, 2')
    a(f's_add_u32 {s(sG)}, {s(sG)}, {s(sL)}')
    a(f's_lshl3_add_u32 {s(sBase)}, {s(sT)}, {s(sG)}')
    a(f's_mul_i32 {s(sBase)}, {s(sBase)}, {4*1280}')
    a(f'v_lshl_add_u32 {v(t1)}, {v(t1)}, 3, {v(t2)}')
    a(f'v_mul_u32_u24 {v(t1)}, 1280, {v(t1)}')
    a(f'v_add_u32 {v(t0)}, {v(t0)}, {v(t1)}')
    a(f'buffer_load_dwordx4 {v(t0)}, {s(SRD_D,4)}, {s(sBase)} offen offset:448 lds')
    a(f's_mul_i32 {s(sD)}, {s(sFlag)}, 48')
    a(f's_add_u32 {s(sD)}, {s(sD)}, {WS_W24 >> 10}')
    a(f's_lshl_b32 {s(sFlag)}, {s(sFlag)}, 8')
    a(f's_add_u32 {s(sFlag)}, {s(sFlag)}, {FL_W2}')
    a.label(l_go)
    a(f's_lshl2_add_u32 {s(sFlag)}, {s(sT)}, {s(sFlag)}')
    a(f's_add_u32 {s(sD)}, {s(sD)}, {s(sT)}')
    a(f's_lshl_b32 {s(sD)}, {s(sD)}, 10')
    a.label(l_no)
    a = real_a
    fS = [[va(4, 4) for st in range(2)] for tl in range(2)]
    accG = [va(4, 4) for _ in range(2)]; accS = [va(4, 4) for _ in range(2)]
    vOne = va(4, 4)
    vS = [va(), va()]; vSh = [va(), va()]
    F = va(8, 4)
    sFo, sRd = sa(), sa()
    p1hi = va.n
    a(f'v_and_b32 {v(t0)}, 15, v0')
    a(f'v_lshrrev_b32 {v(t1)}, 4, v0')
    a(f'v_lshrrev_b32 {v(t2)}, 1, {v(t0)}')
    a(f'v_xor_b32 {v(t2)}, {v(t2)}, {v(t1)}')
    a(f'v_lshlrev_b32 {v(t2)}, 4, {v(t2)}')
    a(f'v_lshl_add_u32 {v(t2)}, {v(t0)}, 7, {v(t2)}')
    a(f'v_add_u32 {v(vS[0])}, {s(sMX)}, {v(t2)}')
    a(f'v_add_u32 {v(vSh[0])}, {XIMG + 8192}, {v(t2)}')
    a(f'v_xor_b32 {v(vS[1])}, 64, {v(vS[0])}')
    a(f'v_xor_b32 {v(vSh[1])}, 64, {v(vSh[0])}')
    for r in range(4): a(f'v_mov_b32 {v(vOne+r)}, 0x3f803f80')
    a(f's_mov_b32 {s(sRd)}, 0')
    def stat_reads():
        for st in range(2): a(f'ds_read_b128 {v(fS[0][st],4)}, {v(vS[st])}')
        for st in range(2): a(f'ds_read_b128 {v(fS[1][st],4)}, {v(vSh[st])}')
    def stat_mfma(first=False, last=False):
        if not last:
            a(f's_add_u32 {s(sRd)}, {s(sRd)}, {SLOT}')
            a(f's_cmp_eq_u32 {s(sRd)}, {3*SLOT}')
            a(f's_cselect_b32 {s(sRd)}, 0, {s(sRd)}')
            a(f's_movk_i32 {s(sI)}, {SLOT//16}'); a(f's_cmovk_i32 {s(sI)}, {(-2*SLOT//16) & 0xffff}'); a(f's_mul_i32 {s(sI)}, {s(sI)}, 16')
            for r in vS + vSh: a(f'v_add_u32 {v(r)}, {s(sI)}, {v(r)}')
        a(f's_waitcnt lgkmcnt(0)')
        for st in range(2):
            for tl in range(2):
                z = first and st == 0
                a(f'{MFMA} {v(accG[tl],4)}, {v(fS[tl][st],4)}, {v(fS[tl][st],4)}, {"0" if z else v(accG[tl],4)}')
                a(f'{MFMA} {v(accS[tl],4)}, {v(vOne,4)}, {v(fS[tl][st],4)}, {"0" if z else v(accS[tl],4)}')
    def put_unit():
        for x in unit:
            if x.endswith(':'): a.label(x[:-1])
            else: a(x)
    UE = env('UE', 1)
    if UE:
        lu = a.newlabel('ue')
        unit.insert(-1, f's_branch {lu}')
        put_unit()
        a(f's_waitcnt vmcnt({qn(Q0)})')
        a.label(lu)
    a(f's_waitcnt vmcnt({qn(Q0) + UE}) lgkmcnt(0)')
    stamp(a)
    a(f's_barrier')
    stat_reads()
    emit(Q0, 9)
    if not UE: put_unit()
    late = []
    real_a, a = a, late.append
    srd(a, SRD_WS, S_PWS, WS_SIZE)
    a(f'v_lshlrev_b32 {v(vL16)}, 4, v0')
    a(f'v_lshrrev_b32 {v(t0)}, 4, v0')
    a(f'v_lshlrev_b32 {v(t0)}, 10, {v(t0)}')
    a(f'v_bfe_u32 {v(t1)}, v0, 2, 2')
    a(f'v_lshl_add_u32 {v(t0)}, {v(t1)}, 7, {v(t0)}')
    a(f'v_and_b32 {v(t1)}, 3, v0')
    a(f'v_lshl_add_u32 {v(t0)}, {v(t1)}, 3, {v(t0)}')
    a(f's_lshl_b32 {s(sT)}, {s(sL)}, 5')
    a(f's_add_u32 {s(sT)}, {s(sT)}, {L_STAGE}')
    a(f'v_add_u32 {v(vU)}, {s(sT)}, {v(t0)}')
    a(f'v_mov_b32 {v(vTg)}, {L_TAG}')
    nonce_to_tag(a)
    a(f'v_mov_b32 {v(vN)}, {s(S_TAG)}')
    SRD_E = S_PX
    srd(a, SRD_E, S_PW1, 640 * 3072)
    nearly = len(late)
    a(f's_lshl_b32 {s(sFo)}, {s(S_J8)}, 8')
    a(f's_add_u32 {s(sFo)}, {s(sFo)}, {FL_W2}')
    a(f's_mov_b32 {s(sT2)}, 47')
    a(f's_lshl_b32 {s(sT)}, {s(S_J8)}, 7')
    a(f's_add_u32 {s(sT)}, {s(sT)}, {FL_WO}')
    a(f's_cmp_eq_u32 {s(sL)}, 1')
    a(f's_cselect_b32 {s(sFo)}, {s(sT)}, {s(sFo)}')
    a(f's_cselect_b32 {s(sT2)}, 19, {s(sT2)}')
    a(f's_lshl_b32 {s(sT)}, {s(S_C)}, 6')
    a(f's_add_u32 {s(sT)}, {s(sT)}, {FL_HELLO}')
    a(f's_cmp_eq_u32 {s(sL)}, 0')
    a(f's_cselect_b32 {s(sFo)}, {s(sT)}, {s(sFo)}')
    a(f's_cselect_b32 {s(sT2)}, 15, {s(sT2)}')
    a(f'v_min_u32 {v(vFo)}, {s(sT2)}, v0')
    a(f'v_lshlrev_b32 {v(vFo)}, 2, {v(vFo)}')
    sM2, sMf, sFo4, sF24, sQ2, sQ6, sR1 = sBase, sG, sJs, sa(), sa(), sa(), sa()
    row_bits(a, sL, sT, sT2, t0, t1, t2, t3)
    row_pat(a, pA, 320, 20, 8, 1280, sT2, t0, t1, t2, t3)
    row_pat(a, pC, 768, 8, 16, 1280, sT2, t0, t1, t2, t3)
    a(f's_lshr_b32 {s(sT)}, {s(sL)}, 1')
    a(f's_sub_u32 {s(sHm)}, {s(sT)}, 1')
    a(f's_not_b32 {s(sHm+1)}, {s(sHm)}')
    a(f's_mul_i32 {s(sT)}, {s(sT)}, {36*1280}')
    a(f's_add_u32 {s(sT2)}, {s(sT2)}, {s(sT)}')
    a(f's_add_u32 {s(sT2)}, {s(sT2)}, {16*1280}')
    row_pat(a, pB, 320, 20, 80, 1280, sT2, t0, t1, t2, t3)
    a(f's_mul_i32 {s(sT)}, {s(S_J)}, 192')
    a(f's_mul_i32 {s(sT2)}, {s(sL)}, {16*3072}')
    a(f's_add_u32 {s(sT)}, {s(sT)}, {s(sT2)}')
    a(f's_bitcmp1_b32 {s(S_J)}, 0')
    a(f's_cselect_b32 {s(sT2)}, 64, 0')
    a(f's_cselect_b32 {s(sM2)}, 0, 128')
    a(f's_cselect_b32 {s(sMf)}, 16, 0')
    a(f's_add_u32 {s(sT2)}, {s(sT2)}, {s(sT)}')
    a(f's_add_u32 {s(sT)}, {s(sM2)}, {s(sT)}')
    a(f'v_lshrrev_b32 {v(t1)}, 3, v0')
    a(f'v_mul_u32_u24 {v(t1)}, 3072, {v(t1)}')
    a(f'v_add3_u32 {v(pD)}, {v(t1)}, {v(t0)}, {s(sT2)}')
    a(f'v_lshrrev_b32 {v(t1)}, 2, v0')
    a(f'v_mul_u32_u24 {v(t1)}, 3072, {v(t1)}')
    a(f'v_and_b32 {v(t0)}, 0x30, {v(t0)}')
    a(f'v_add3_u32 {v(pE)}, {v(t1)}, {v(t0)}, {s(sT)}')
    a(f'v_lshlrev_b32 {v(t2)}, 6, {v(t2)}')
    a(f'v_xor_b32 {v(t2)}, {v(t2)}, {v(vL16)}')
    a(f's_lshl_b32 {s(sT)}, {s(sL)}, 11')
    a(f'v_add_u32 {v(vWf)}, {s(sT)}, {v(t2)}')
    a(f's_lshl_b32 {s(sT)}, {s(sL)}, 10')
    a(f'v_add_u32 {v(vWh)}, {s(sT)}, {v(vL16)}')
    a(f'v_add_u32 {v(t0)}, {s(sMf)}, v0')
    a(f'v_subrev_u32 {v(t1)}, 48, {v(t0)}')
    a(f'v_min_u32 {v(t0)}, {v(t0)}, {v(t1)}')
    a(f'v_lshlrev_b32 {v(vB1)}, 2, {v(t0)}')
    a(f'v_and_b32 {v(t0)}, 1, v0')
    a(f'v_lshlrev_b32 {v(t0)}, 4, {v(t0)}')
    a(f'v_lshlrev_b32 {v(t0)}, {v(t0)}, {v(vOne)}')
    a(f'v_bfe_u32 {v(t1)}, v0, 0, 1')
    a(f'v_add_u32 {v(t1)}, -1, {v(t1)}')
    a(f'v_lshlrev_b32 {v(t1)}, 16, {v(t1)}')
    a(f'v_bfi_b32 {v(t0)}, {v(t1)}, 0, {v(t0)}')
    a(f'v_bfe_u32 {v(t1)}, v0, 1, 3')
    for r in range(8):
        a(f'v_cmp_eq_u32 vcc, {r}, {v(t1)}')
        a(f'v_cndmask_b32 {v(selF + r if r < 4 else selH + r - 4)}, 0, {v(t0)}, vcc')
    a(f'v_and_b32 {v(t0)}, 15, v0')
    a(f'v_lshlrev_b32 {v(t0)}, 5, {v(t0)}')
    a(f'v_and_b32 {v(t1)}, 16, v0')
    a(f'v_and_b32 {v(t2)}, 32, v0')
    a(f'v_lshl_add_u32 {v(t1)}, {v(t2)}, 3, {v(t1)}')
    a(f's_mul_i32 {s(sT)}, {s(sL)}, 384')
    a(f's_add_u32 {s(sT)}, {s(sT)}, {L_CSP}')
    a(f'v_add3_u32 {v(vCp)}, {v(t0)}, {v(t1)}, {s(sT)}')
    a(f's_mul_i32 {s(sM2)}, {s(sL)}, {2*WROW}')
    a(f's_and_b32 {s(sT)}, {s(sL)}, 1')
    a(f's_lshl_b32 {s(sMf)}, {s(sT)}, 10')
    a(f's_lshl1_add_u32 {s(sT)}, {s(S_J8)}, {s(sT)}')
    a(f's_mul_i32 {s(sFo4)}, {s(sT)}, 10240')
    a(f's_add_u32 {s(sFo4)}, {s(sFo4)}, {WS_WO4}')
    a(f's_mul_i32 {s(sF24)}, {s(sT)}, 24576')
    a(f's_add_u32 {s(sF24)}, {s(sF24)}, {WS_W24}')
    a(f's_and_b32 {s(sT)}, {s(S_C64)}, 3')
    a(f's_lshl_b32 {s(sQ2)}, {s(sT)}, 1')
    a(f's_mul_i32 {s(sQ6)}, {s(sT)}, 6')
    a(f's_and_b32 {s(sT)}, {s(S_C)}, 1')
    a(f's_mul_i32 {s(sR1)}, {s(sT)}, {5*64*3072}')
    a = real_a
    fillq += late
    FP = env('FP', 7)
    emit(0, Q1, env('FP0', 3))
    while len(late) - len(fillq) < nearly or not scc_cuts(fillq)[0]: a(fillq.pop(0))
    stat_mfma(first=True)
    SP, SN, S0 = os.environ.get('SP', 'oa'), env('SN', 7), env('S0', 0)
    tch = Touch(a, SP, sL, sI, sPf, S_CNT, 4)
    if SP: stamp = lambda *x, **k: None
    if S0 <= 0: tch.go(SN)
    a(f's_waitcnt vmcnt({qn(Q1)})')
    stamp(a)
    a(f's_barrier')
    stat_reads()
    for jh in range(2):
        a(f'ds_read_b64_tr_b16 {v(F+2*jh,2)}, {v(vU)} offset:{512*jh}')
    emit(Q1, 9, env('FP1', 0))
    emit(0, Q2, env('FP1', 0))
    stat_mfma()
    if S0 <= 1: tch.go(SN)
    a(f's_waitcnt vmcnt({qn(Q2)})')
    stamp(a)
    pfn = {x: 0 for x in 'oabOHDSFwu'}
    O1 = [7, 6, 8, 9, 0, 1, 2, 3, 4, 5]
    def touch(L):
        n = 0
        for m in L:
            if m in 'wu':
                assert not fillq
                q = pfn[m]; pfn[m] += 1
                if m == 'w':
                    assert stg[3*O1[q]] >= p1hi
                    blk1(O1[q]); n += 3
                else: blk('o', 4 + q, main=True); n += 2
                continue
            if m in 'OHDSF':
                q = pfn[m]; pfn[m] += 1; n += 1
                if m == 'F':
                    a(f'v_lshrrev_b32 {v(vDm)}, 2, v0')
                    a(f'v_lshlrev_b32 {v(vDm)}, 7, {v(vDm)}')
                    a(f'v_and_or_b32 {v(vDm)}, v0, 3, {v(vDm)}')
                    a(f'v_lshlrev_b32 {v(vDm)}, 7, {v(vDm)}')
                    a(f's_lshl_b32 {s(sI)}, {s(S_C)}, 9')
                    a(f's_add_u32 {s(sI)}, {s(sI)}, {FL_1}')
                    a(f's_mov_b64 exec, 0xfff')
                    a(f'buffer_load_dword {v(vDm)}, {v(vDm)}, {s(SRD_WS,4)}, {s(sI)} offen sc1')
                    a('s_mov_b64 exec, -1')
                    continue
                claim(a, m, q, sL, sI, sPf, vDm, vL16)
                continue
            n += 1
            sr, nb = {'o': (SRD_C, 800), 'a': (SRD_E, 1920), 'b': (SRD_D, 1920)}[m]
            ln = 50 if m == 'o' else 60
            a(f's_lshl2_add_u32 {s(sI)}, s2, {s(sL)}')
            a(f's_mul_i32 {s(sI)}, {s(sI)}, {nb}')
            a(f's_mov_b32 exec_hi, {hex((1 << (ln - 32)) - 1)}')
            a(f'buffer_load_dwordx4 {v(vDm,4)}, {v(vL16)}, {s(sr,4)}, {s(sI)} offen offset:{pfn[m] * ln * 16}')
            pfn[m] += 1
            assert pfn[m] * ln * 16 <= nb
        if L: a('s_mov_b64 exec, -1')
        return n

    vm = Cnt(63)
    def thr(n):
        if n: a(f's_waitcnt vmcnt({n-1})')
    early = []
    def blk(kind, k, th=0, main=False):
        if kind == 'o':
            P, sr, lb = (pA if k < 8 else pB), SRD_C, L_WO[k]
            if RO and k < 8:
                a(f's_add_u32 {s(sT)}, {s(sQ2)}, {k}')
                a(f's_and_b32 {s(sT)}, {s(sT)}, 7')
                a(f's_lshl_b32 {s(sT2)}, {s(sT)}, 10')
                a(f's_mul_i32 {s(sT)}, {s(sT)}, {40*1280}')
                a(f's_add_u32 {s(sT2)}, {s(sT2)}, {s(sFo4)}')
            else:
                a(f's_mov_b32 {s(sT)}, {(40*k if k < 8 else 160*(k-8))*1280}')
                a(f's_add_u32 {s(sT2)}, {s(sFo4)}, {k*1024}')
        else:
            P, sr, lb = pC, SRD_D, L_W2[k]
            w2_off(a, k, sQ6, sT, sT2, sF24)
        if (kind, k) not in early:
            a(f's_add_u32 m0, {s(sM2)}, {lb}')
            for e in range(2):
                thr(th)
                a(f'buffer_load_dwordx4 {v(P[e])}, {s(sr,4)}, {s(sT)} offen offset:{e*WROW} lds')
            vm.add((kind, k), 2)
        if main:
            early.append((kind, k)); return
        a(f's_add_u32 m0, {s(sMf)}, {lb + 8*WROW}')
        a(f's_mov_b64 exec, {s(sHm,2)}')
        if env('NOFR', 0): a(f'buffer_load_dwordx4 {v(vL16)}, {s(sr,4)}, {s(sT)} offen lds')
        else: a(f'buffer_load_dwordx4 {v(vL16)}, {s(SRD_WS,4)}, {s(sT2)} offen sc1 lds')
        a(f's_mov_b64 exec, -1')
        vm.add((kind, k), 1)
    def blk1(c, th=0):
        if R1: a(f's_add_u32 {s(sT)}, {s(sR1)}, {64*c*3072}' if c < 5 else f's_sub_u32 {s(sT)}, {64*c*3072}, {s(sR1)}')
        else: a(f's_mov_b32 {s(sT)}, {64*c*3072}')
        a(f's_add_u32 {s(sT2)}, {s(sT)}, {8*3072}')
        for e in range(3):
            thr(th)
            a(f'buffer_load_dwordx4 {v(stg[3*c+e],4)}, {v(pD if e < 2 else pE)}, {s(SRD_E,4)}, {s(sT2 if e == 1 else sT)} offen')
        vm.add(('1', c), 3)
    SH = env('SH', 5)
    for it in range(2, 8):
        a(f's_barrier')
        if it > SH: a(f's_waitcnt vmcnt(8)')
        stat_reads()
        if it == 2: emit(Q2, 9, FP)
        if it in (2, 4):
            lsk = a.newlabel('ev')
            a(f's_cmp_ge_u32 s2, 136')
            a(f's_cbranch_scc1 {lsk}')
            if it == 2: a(f'buffer_store_dwordx4 {v(F,4)}, {v(vL16)}, {s(SRD_WS,4)}, {s(sD)} offen sc1')
            else:
                a(f's_mov_b64 exec, 1')
                a(f'buffer_store_dword {v(vN)}, off, {s(SRD_WS,4)}, {s(sFlag)} sc1')
                a(f's_mov_b64 exec, -1')
            a.label(lsk)
        if it == 6:
            assert not fillq
            a(f'buffer_load_dword {v(vF)}, {v(vFo)}, {s(SRD_WS,4)}, {s(sFo)} offen sc1')
        npf = touch(PF[it - 2])
        emit(0, 9, FP)
        if it < 7: vm.add('c', NCH)
        stamp(a)
        stat_mfma()
        if it == SH:
            assert it not in (2, 4)
            a(f's_waitcnt vmcnt({NCH + npf + (it == 6) + 8})')
            stat_reads()
            stat_mfma()
        if it == 7: break
        if S0 <= it: tch.go(SN)
        if it in (2, 4):
            lsk = a.newlabel('ew')
            a(f's_cmp_lt_u32 s2, 136')
            a(f's_cbranch_scc1 {lsk}')
            a(f's_waitcnt vmcnt({NCH + npf})')
            a.label(lsk)
        a(f's_waitcnt vmcnt({NCH + npf + (it in (2, 4, 6))})')
        stamp(a)
    vm.add('x9', 3); vm.add('c9', 8)
    stamp = stamp_
    assert not tch.q
    srd(a, SRD_B, S_PB1, 1536 * 2)
    lchk, lok = a.newlabel('chk'), a.newlabel('ok')
    a(f's_mov_b32 {s(S_CNT)}, {SPIN}')
    a(f's_waitcnt vmcnt({NCH + npf})')
    a.label(lchk)
    a(f'v_and_b32 {v(t0)}, -8, {v(vF)}')
    a(f'v_cmp_ne_u32 vcc, {s(S_TAG)}, {v(t0)}')
    a(f's_cmp_eq_u64 vcc, 0')
    a(f's_cbranch_scc1 {lok}')
    a(f's_sub_u32 {s(S_CNT)}, {s(S_CNT)}, 1')
    a(f's_cbranch_scc1 {lok}')
    a(f'buffer_load_dword {v(vF)}, {v(vFo)}, {s(SRD_WS,4)}, {s(sFo)} offen sc1')
    a(f's_waitcnt vmcnt(0)')
    a(f's_branch {lchk}')
    a.label(lok)
    stamp(a)
    a(f's_barrier')
    if SH < 8: a(f's_waitcnt vmcnt(8)')
    stat_reads()
    N17 = pfn['w']
    N18 = N17 + env('N18', 0)
    assert all(stg[3*c] >= p1hi for c in O1[:N18])
    for b in range(NB8): blk('o', b)
    lns = a.newlabel('ns')
    a(f's_cmp_lg_u32 {s(sL)}, 0')
    a(f's_cbranch_scc1 {lns}')
    a(f'v_readfirstlane_b32 {s(sT)}, {v(vF)}')
    a(f'v_cmp_ne_u32 vcc, {s(sT)}, {v(vF)}')
    a(f's_cmp_eq_u64 vcc, 0')
    a(f's_cselect_b32 {s(sT)}, {0 if FORCE_SLOW else 1}, 0')
    a(f'v_mov_b32 {v(t0)}, {s(sT)}')
    a(f'ds_write_b32 {v(vTg)}, {v(t0)}')
    a.label(lns)
    if SH >= 8:
        stat_mfma()
        a(f's_waitcnt vmcnt({vm.after("x9")})')
        stat_reads()
    a(f'v_and_b32 {v(t2)}, 3, v0')
    a(f'v_and_b32 {v(t1)}, 15, v0')
    a(f'v_lshlrev_b32 {v(t1)}, 3, {v(t1)}')
    a(f'v_add_u32 {v(t3)}, {L_STAT + 512}, {v(t1)}')
    a(f's_lshl_b32 {s(sT)}, {s(sL)}, 7')
    a(f's_add_u32 {s(sT)}, {s(sT)}, {L_STAT}')
    a(f'v_add_u32 {v(t1)}, {s(sT)}, {v(t1)}')
    sC = [sa(2) for _ in range(3)]
    for q in range(3): a(f'v_cmp_eq_u32 {s(sC[q],2)}, {q+1}, {v(t2)}')
    a(f's_mul_i32 {s(sT)}, {s(sL)}, 20')
    a(f's_lshl_b64 {s(sOrd,2)}, 15, {s(sT)}')
    stat_mfma(last=True)
    ch = []
    for tl in range(2):
        G = accG[tl]; vSum = F + 2 * tl; vSq = vSum + 1
        L = [f'v_cndmask_b32 {v(vSq)}, {v(G)}, {v(G+1)}, {s(sC[0],2)}',
             f'v_cndmask_b32 {v(vSq)}, {v(vSq)}, {v(G+2)}, {s(sC[1],2)}',
             f'v_cndmask_b32 {v(vSq)}, {v(vSq)}, {v(G+3)}, {s(sC[2],2)}',
             f'v_mov_b32 {v(vSum)}, {v(accS[tl])}'] + ln_stats(vSum, vSq, F + 4 + tl)
        ch.append(L)
    for x, y in zip(*ch): a(x); a(y)
    a(f's_mov_b32 exec_lo, 0x00f0000f')
    a(f's_mov_b32 exec_hi, 0xf0000f00')
    a(f'ds_write_b64 {v(t1)}, {v(F,2)}')
    a(f's_mov_b64 exec, {s(sOrd,2)}')
    a(f'ds_write_b64 {v(t3)}, {v(F+2,2)}')
    a(f's_mov_b64 exec, -1')
    stamp(a)
    NB9 = env('NB9', 3)
    for b in range(NB8, NB8 + NB9): blk('o', b)
    for c in O1[N17:N18]: blk1(c)
    a(f's_waitcnt vmcnt({vm.after("c9")}) lgkmcnt(0)')
    stamp(a)
    a(f's_barrier')
    a(f's_setprio {env("PRIO3", 0)}')
    vm.add('pf', touch(PF[6]))
    for b in range(NB8 + NB9, 6): blk('o', b)
    a(f's_mul_i32 {s(sT)}, {s(S_J)}, 192')
    a(f'buffer_load_dword {v(vB1)}, {v(vB1)}, {s(SRD_B,4)}, {s(sT)} offen')
    srd(a, SRD_B, S_PB2, 640 * 2)
    a(f's_lshr_b32 {s(sT)}, {s(S_J8)}, 2')
    a(f's_add_u32 {s(sT2)}, {s(sT)}, {s(S_J8)}')
    a(f's_lshl_b32 {s(sT2)}, {s(sT2)}, 7')
    a(f's_lshl4_add_u32 {s(sT)}, {s(sT)}, {s(S_J8)}')
    a(f's_lshl_b32 {s(sT)}, {s(sT)}, 5')
    a(f's_add_u32 {s(sT)}, {s(sT)}, {512 - 128}')
    a(f'v_mov_b32 {v(t0)}, {s(sT2)}')
    a(f'v_mov_b32 {v(t1)}, {s(sT)}')
    a(f'v_cmp_gt_u32 vcc, 32, v0')
    a(f'v_cndmask_b32 {v(t0)}, {v(t1)}, {v(t0)}, vcc')
    a(f'v_lshl_add_u32 {v(t0)}, v0, 2, {v(t0)}')
    a(f's_mov_b32 m0, {L_B2}')
    a(f's_mov_b32 exec_hi, 0xff')
    a(f'buffer_load_dword {v(t0)}, {s(SRD_B,4)}, 0 offen lds')
    a(f's_mov_b64 exec, -1')
    vm.add('b', 2)
    N1C = env('N1C', 0)
    global N1A
    N1A += N18
    for c in O1[N18:N1A]: blk1(c)
    LP, LN = os.environ.get('LP', 'b'), [int(x) for x in os.environ.get('LN', '15,15,15,15').split(',')]
    tch = Touch(a, LP, sL, sI, sPf, S_CNT, 4)
    if LP: stamp = lambda *x, **k: None
    tch.go(LN[0])
    stamp(a)
    a(f's_barrier')
    for b in range(6, 10): blk('o', b)
    for c in O1[N1A:N1A+N1B]: blk1(c)
    tch.go(LN[1])
    a(f's_waitcnt vmcnt({vm.after(lambda t: t[0] == "o")})')
    stamp(a)
    a(f's_barrier')
    base = Base(a, [vWf, vWh], 0)
    csn = [0]
    def csum(c):
        a(f's_waitcnt vmcnt({vm.after(("1", c))})')
        for e in range(3):
            a(f'{MFMA} {v(accC,4)}, {v(selF if e < 2 else selH,4)}, {v(stg[3*c+e],4)}, {v(accC,4) if csn[0] else "0"}')
            csn[0] += 1
    def put(c):
        o = base.off(L_W1[c], BLK1)
        for e in range(3):
            a(f'ds_write_b128 {v(vWf if e < 2 else vWh)}, {v(stg[3*c+e],4)} offset:{o + (e*1024 if e < 2 else 8192)}')
    for c in O1[N1A+N1B:N1A+N1B+N1C]: blk1(c, T1)
    for c in O1[:N1A]: csum(c)
    if N1A: put(7)
    tch.go(LN[2])
    stamp(a)
    if env('BGO', 1): a(f's_barrier')
    for c in O1[N1A+N1B+N1C:]: blk1(c, T1)
    CSE = max(N1A, env('CSE', N1A + N1B + N1C))
    tch.go(LN[3])
    for c in O1[N1A:CSE]: csum(c)
    assert not tch.q
    stamp(a)
    stamp = stamp_
    a(f's_barrier')
    for i, c in enumerate(O1):
        if i >= CSE: a(f's_waitcnt vmcnt({vm.after(("1", c))})')
        if c != 7 or not N1A: put(c)
    for c in O1[CSE:]: csum(c)
    for r in range(4): a(f'v_add_f32_dpp {v(accC+r)}, {v(accC+r)}, {v(accC+r)} row_ror:8 row_mask:0xf bank_mask:0xf')
    for r in range(4): a(f'v_add_f32_dpp {v(accC+r)}, {v(accC+r)}, {v(accC+r)} row_ror:4 row_mask:0xc bank_mask:0xf')
    a(f's_mov_b32 exec_lo, 0x00ff00ff')
    a(f's_mov_b32 exec_hi, 0x000f000f')
    a(f'ds_write_b128 {v(vCp)}, {v(accC,4)}')
    a(f's_mov_b64 exec, -1')
    a(f's_waitcnt lgkmcnt(0)')
    stamp(a)
    a(f's_barrier')
    for k in (0, 1): blk('2', k, TW)
    lcs = a.newlabel('lcs')
    a(f's_cmp_lg_u32 {s(sL)}, 3')
    a(f's_cbranch_scc1 {lcs}')
    q = stg[0]
    a(f'v_lshlrev_b32 {v(t0)}, 3, v0')
    a(f'v_add_u32 {v(t0)}, {L_CSP}, {v(t0)}')
    for p in range(4): a(f'ds_read_b64 {v(q+2*p,2)}, {v(t0)} offset:{384*p}')
    a(f'v_add_u32 {v(t0)}, {L_CS}, {v(vL16)}')
    a(f's_waitcnt lgkmcnt(0)')
    a(f'v_pk_add_f32 {v(q,2)}, {v(q,2)}, {v(q+2,2)}')
    a(f'v_pk_add_f32 {v(q+4,2)}, {v(q+4,2)}, {v(q+6,2)}')
    a(f'v_pk_add_f32 {v(q,2)}, {v(q,2)}, {v(q+4,2)}')
    for lv in range(3):
        a(f'v_cvt_pk_bf16_f32 {v(q+8+lv)}, {v(q)}, {v(q+1)}')
        if lv < 2:
            a(f'v_lshlrev_b32 {v(q+2)}, 16, {v(q+8+lv)}')
            a(f'v_and_b32 {v(q+3)}, 0xffff0000, {v(q+8+lv)}')
            a(f'v_pk_add_f32 {v(q,2)}, {v(q,2)}, {v(q+2,2)} neg_lo:[0,1] neg_hi:[0,1]')
    a(f's_mov_b32 {s(sT)}, 0x05040100')
    a(f's_mov_b32 {s(sT2)}, 0x07060302')
    a(f'v_perm_b32 {v(q+4)}, {v(q+9)}, {v(q+8)}, {s(sT)}')
    a(f'v_perm_b32 {v(q+5)}, {v(vB1)}, {v(q+10)}, {s(sT)}')
    a(f'v_perm_b32 {v(q+6)}, {v(q+9)}, {v(q+8)}, {s(sT2)}')
    a(f'v_perm_b32 {v(q+7)}, {v(vB1)}, {v(q+10)}, {s(sT2)}')
    a(f's_mov_b32 exec_hi, 0xffff')
    a(f'ds_write_b128 {v(t0)}, {v(q+4,4)}')
    a(f's_mov_b64 exec, -1')
    a(f's_waitcnt lgkmcnt(0)')
    a.label(lcs)
    stamp(a)
    a(f's_barrier')
    for k in range(2, 6): blk('2', k, TW)
    stamp(a)
    a(f's_barrier')
    for k in range(6, 11): blk('2', k, TW)
    def w2wait(kmax):
        a(f's_waitcnt vmcnt({vm.after(lambda t: t[0] == "2" and t[1] <= kmax)})')
    w2wait(YB[0])
    stamp(a)
    a(f's_barrier')
    a(f's_setprio {env("PRIO4", 0)}')
    for lo, hi_, kw in YI:
        for k in range(lo, hi_):
            if k not in STG: blk('2', k, TW)
        w2wait(kw)
        stamp(a)
        a(f's_barrier')
    F4 = stg[0]
    lend = a.newlabel('lend')
    a(f's_or_b32 {s(sT)}, s2, {s(sL)}')
    a(f's_cmp_lg_u32 {s(sT)}, 0')
    a(f's_cbranch_scc1 {lend}')
    lp, ld = a.newlabel('bp'), a.newlabel('bd')
    a(f's_mov_b32 {s(S_CNT)}, {SPIN}')
    a(f's_mov_b32 {s(sT)}, {FL_HELLO}')
    a.label(lp)
    a(f'buffer_load_dwordx4 {v(F4,4)}, {v(vL16)}, {s(SRD_WS,4)}, {s(sT)} offen sc1')
    a(f's_sub_u32 {s(S_CNT)}, {s(S_CNT)}, 1')
    a(f's_cbranch_scc1 {ld}')
    a(f's_waitcnt vmcnt(0)')
    for r in range(4): a(f'v_xor_b32 {v(F4+r)}, {s(S_TAG)}, {v(F4+r)}')
    a(f'v_or3_b32 {v(F4)}, {v(F4)}, {v(F4+1)}, {v(F4+2)}')
    a(f'v_or_b32 {v(F4)}, {v(F4)}, {v(F4+3)}')
    a(f'v_cmp_lt_u32 vcc, 7, {v(F4)}')
    a(f's_cmp_lg_u64 vcc, 0')
    a(f's_cbranch_scc1 {lp}')
    a.label(ld)
    a(f'v_mov_b32 {v(t0)}, {s(S_TAG)}')
    a(f's_mov_b32 {s(sT)}, {WS_FL}')
    a(f's_mov_b64 exec, 1')
    a(f'buffer_store_dword {v(t0)}, off, {s(SRD_WS,4)}, {s(sT)} sc1')
    a.label(lend)
    stamps_flush(a)
    a('s_endpgm')
    return va.hi

def spoll(a, sOff, n, vF, vOff, vG=None):
    if not env('SPOLL', 0):
        poll(a, vF, vOff, sOff, vG); return
    ls, lp, ld = a.newlabel('pslow'), a.newlabel('sp'), a.newlabel('spd')
    a(f's_mov_b32 {s(S_CNT)}, {SPIN}')
    a(f's_cmp_eq_u32 {s(S_SAME)}, 0')
    a(f's_cbranch_scc1 {ls}')
    a.label(lp)
    a(f's_load_dwordx{n} {s(16,n)}, {s(S_PWS,2)}, {s(sOff)} glc')
    a(f's_sub_u32 {s(S_CNT)}, {s(S_CNT)}, 1')
    a(f's_cbranch_scc1 {ld}')
    a(f's_waitcnt lgkmcnt(0)')
    for i in range(n // 2):
        a(f's_cmp_eq_u64 {s(16+2*i,2)}, {s(S_TAG2,2)}')
        a(f's_cbranch_scc0 {lp}')
    a.label(ld)
    lq = a.newlabel('pq')
    DEFER.append((ls, ld, [f'{lq}:', f'buffer_load_dword {v(vF)}, {v(vOff)}, {s(SRD_WS,4)}, {s(sOff)} offen sc1',
                           f's_sub_u32 {s(S_CNT)}, {s(S_CNT)}, 1', f's_cbranch_scc1 {ld}', 's_waitcnt vmcnt(0)',
                           f'v_cmp_ne_u32 vcc, {s(S_TAG)}, {v(vF)}', 's_cmp_lg_u64 vcc, 0', f's_cbranch_scc1 {lq}']))
S_TAG2 = 34

def helper(a):
    stamp = stamp_ if 't' not in os.environ.get('HS', '') else (lambda *x, **k: None)
    sa = Alloc('s', S_FREE, S_LIM)
    va = Alloc('v', 2, VLIM)
    vL16 = 1
    sL, sT, sT2, sF24, sQ6 = [sa() for _ in range(5)]
    t0, t1, t2, t3, vFs, vWf, vWr = [va() for _ in range(7)]
    pC = [va(), va()]
    R = {k: (va(4, 2), va(4, 2), va(2)) for k in STG}
    a(f's_sub_u32 {s(sL)}, {s(S_W)}, 4')
    a(f's_setprio {env("PRIOH", 0)}')
    srd(a, SRD_A, S_PW2, 1536 * 1280)
    row_bits(a, sL, sT, sT2, t0, t1, t2, t3)
    row_pat(a, pC, 768, 8, 16, 1280, sT2, t0, t1, t2, t3, dma=False)
    a(f's_and_b32 {s(sT)}, {s(sL)}, 1')
    a(f's_lshl1_add_u32 {s(sF24)}, {s(S_J8)}, {s(sT)}')
    a(f's_mul_i32 {s(sF24)}, {s(sF24)}, 24576')
    a(f's_lshr_b32 {s(sT2)}, {s(sL)}, 1')
    a(f's_lshl_b32 {s(sT2)}, {s(sT2)}, 9')
    a(f's_add_u32 {s(sF24)}, {s(sF24)}, {WS_W24}')
    a(f'v_lshl_add_u32 {v(vFs)}, v0, 3, {s(sT2)}')
    a(f's_lshl_b32 {s(sT)}, {s(sT)}, 10')
    a(f'v_add_u32 {v(vWr)}, {s(sT)}, {v(vFs)}')
    a(f's_mul_i32 {s(sT)}, {s(sL)}, {2*WROW}')
    a(f'v_add_u32 {v(vWf)}, {s(sT)}, {v(vL16)}')
    a(f's_and_b32 {s(sQ6)}, {s(S_C64)}, 3')
    a(f's_mul_i32 {s(sQ6)}, {s(sQ6)}, 6')
    def get(k):
        w2_off(a, k, sQ6, sT, sT2, sF24)
        for e in range(2):
            if TH: a(f's_waitcnt vmcnt({TH-1})')
            a(f'buffer_load_dwordx4 {v(R[k][e],4)}, {v(pC[0])}, {s(SRD_A,4)}, {s(sT)} offen offset:{e*1280}')
        if env('NOFR', 0): a(f'buffer_load_dwordx2 {v(R[k][2],2)}, {v(vFs)}, {s(SRD_A,4)}, {s(sT)} offen')
        else: a(f'buffer_load_dwordx2 {v(R[k][2],2)}, {v(vFs)}, {s(SRD_WS,4)}, {s(sT2)} offen sc1')
    base = Base(a, [vWf, vWr], 0)
    def put(k):
        o = base.off(L_W2[k], BLK)
        for e in range(2): a(f'ds_write_b128 {v(vWf)}, {v(R[k][e],4)} offset:{o + e*WROW}')
        a(f'ds_write_b64 {v(vWr)}, {v(R[k][2],2)} offset:{o + 8*WROW}')
    HS = os.environ.get('HS', ',gg,,gg,ggg').split(',')
    todo, nd = list(STG), [sum(x.count('D') for x in PF)]
    tch = Touch(a, os.environ.get('HP_', 'D'), sL, sT, sT2, S_CNT, 4)
    def seq(L):
        for m in L:
            if m == 'g': get(todo.pop(0))
            elif m == 't': tch.go(env('HN', 15))
            else:
                if TH: a(f's_waitcnt vmcnt({TH-1})')
                claim(a, 'D', nd[0], sL, sT, sT2, R[STG[-1]][0], vL16); nd[0] += 1
    seq(HS[0])
    stamp(a)
    if env('BGO', 1): a(f's_barrier')
    seq(HS[1])
    stamp(a)
    a(f's_barrier')
    seq(HS[2])
    stamp(a)
    a(f's_barrier')
    seq(HS[3])
    stamp(a)
    a(f's_barrier')
    seq(HS[4] if len(HS) > 4 else '')
    if 'D' in ''.join(HS): a(f's_waitcnt vmcnt(0)')
    a(f's_barrier')
    seq(HS[5] if len(HS) > 5 else '')
    assert not todo and (not tch.q or 't' not in ''.join(HS))
    a(f's_barrier')
    a(f's_waitcnt vmcnt(0)')
    for lo, hi_, kw in YI:
        for k in range(lo, hi_):
            if k in STG: put(k)
        a(f's_waitcnt lgkmcnt(0)')
        stamp(a)
        a(f's_barrier')
    stamps_flush(a)
    a('s_endpgm')
    return va.hi

def compute(a):
    sa = Alloc('s', S_FREE, S_LIM)
    vL16 = 1
    sT, sT2, sTau, sKh, sTile, sKf = [sa() for _ in range(6)]
    sO1, sO2, sF1w, sF1r, sIP, sI4 = [sa() for _ in range(6)]
    sMask = sa(2); sCexp = sa(2)
    sOb = [sa() for _ in range(5)]
    sRowP, sRow4, sHP, sH4, sSTw, sF2w = [sa() for _ in range(6)]
    sF2r, sSTr, sHsrc, sD01, sD2, sF3w, sF3r, sDsrc, sR1 = [sa() for _ in range(9)]
    sC = [sa(2) for _ in range(3)]
    sDb = [sO1, sO2, sF1w, sF1r, sIP, sI4, sMask, sMask + 1]
    sBeta, sB4 = sRowP, sRow4
    hi = [0]
    va = Alloc('v', 2, VLIM)
    keep = va(12, 2)
    t0, t1, t2, t3 = va(), va(), va(), va()
    vL16s, vH4, vTr, vFr, vPo, vXa = [va() for _ in range(6)]
    vB = [va(), va()]
    p0 = va.n
    wk0 = va.n
    acc = [[va(4, 2) for m in range(5)] for n in range(2)]
    fX = [[va(4, 2) for m in range(5)] for st in range(2)]
    fW = [[va(4, 2) for n in range(2)] for st in range(2)]
    wk1 = va.n
    Cc, Cp = va(4, 2), va(4, 2)
    Mc, Mp = va(2), va(2)
    vX = [va(), va()]
    vW, vG0, vDump, vStat, vN, vXC = [va() for _ in range(6)]
    aC, aP, aVc, aVp, aVc4, aVp4 = [va() for _ in range(6)]
    hi[0] = va.hi
    if env('PRIOC', 1): a(f's_setprio {env("PRIOC", 1)}')
    assert EBV == Cc
    if not EB:
        a(f's_waitcnt lgkmcnt(0)')
        nonce_load(a)
    ET = env('ET', 1)
    if ET & 2:
        lf = a.newlabel('ep')
        a(f's_cmp_lg_u32 {s(S_W)}, 3')
        a(f's_cbranch_scc1 {lf}')
        a(f's_mul_i32 {s(sO1)}, {s(S_C64)}, {64*1280}')
        a(f's_load_dword {s(S_CNT)}, {s(S_POUT,2)}, {s(sO1)}')
        for ptr in (S_PWO, S_PW1, S_PW2, S_PB1, S_PB2): a(f's_load_dword {s(S_CNT)}, {s(ptr,2)}, 0')
        for m in 'OHDS':
            L, ptr, offs = region(m, S_W, sO1, sO2, 4)[0]
            for x in L: a(x)
            a(f's_load_dword {s(S_CNT)}, {s(ptr,2)}, {s(sO1)}')
        a.label(lf)
    a(f'v_and_b32 {v(t0)}, 15, v0')
    a(f'v_lshrrev_b32 {v(t1)}, 4, v0')
    a(f'v_lshrrev_b32 {v(t2)}, 1, {v(t0)}')
    a(f'v_xor_b32 {v(t3)}, {v(t2)}, {v(t1)}')
    a(f'v_lshlrev_b32 {v(t3)}, 4, {v(t3)}')
    a(f'v_lshl_add_u32 {v(t3)}, {v(t0)}, 7, {v(t3)}')
    a(f'v_add_u32 {v(vX[0])}, {XIMG}, {v(t3)}')
    a(f'v_xor_b32 {v(vX[1])}, 64, {v(vX[0])}')
    a(f'v_lshrrev_b32 {v(t3)}, 5, v0')
    a(f'v_xor_b32 {v(t2)}, {v(t2)}, {v(t3)}')
    a(f'v_lshlrev_b32 {v(t2)}, 4, {v(t2)}')
    a(f'v_lshl_add_u32 {v(t2)}, {v(t0)}, 7, {v(t2)}')
    a(f'v_and_b32 {v(vXC)}, 1, {v(t1)}')
    a(f'v_lshl_add_u32 {v(t2)}, {v(vXC)}, 3, {v(t2)}')
    a(f's_and_b32 {s(sTau)}, {s(S_W)}, 3')
    a(f's_lshl_b32 {s(sT)}, {s(sTau)}, 11')
    a(f'v_add_u32 {v(vXC)}, {s(sT)}, {v(t2)}')
    a(f'v_lshlrev_b32 {v(t2)}, 4, {v(t3)}')
    a(f'v_bfe_u32 {v(t3)}, v0, 2, 3')
    a(f'v_add_u32 {v(t2)}, {v(t2)}, {v(t3)}')
    a(f'v_mul_u32_u24 {v(t2)}, {WROW}, {v(t2)}')
    a(f'v_and_b32 {v(t3)}, 3, v0')
    a(f'v_lshl_add_u32 {v(t2)}, {v(t3)}, 3, {v(t2)}')
    a(f's_lshl_b32 {s(sT)}, {s(S_W)}, 6')
    a(f'v_add_u32 {v(vW)}, {s(sT)}, {v(t2)}')
    a(f's_lshr_b32 {s(sB4)}, {s(S_J8)}, 2')
    a(f's_add_u32 {s(sBeta)}, {s(sB4)}, {s(S_J8)}')
    a(f's_mul_i32 {s(sB4)}, {s(sB4)}, 5')
    a(f's_add_u32 {s(sB4)}, {s(sB4)}, 4')
    ord_init(a, sMask, sT, inv=True)
    for src, dst in ((sBeta, sIP), (sB4, sI4)):
        a(f's_sub_u32 {s(sT)}, {s(src)}, {s(S_XCD)}')
        a(f's_cselect_b32 {s(sT2)}, 10, 0')
        a(f's_add_u32 {s(sT)}, {s(sT)}, {s(sT2)}')
        a(f's_lshl_b32 {s(sT)}, {s(sT)}, 2')
        a(f's_lshr_b64 {s(sCexp,2)}, {s(sMask,2)}, {s(sT)}')
        a(f's_and_b32 {s(dst)}, {s(sCexp)}, 15')
    a(f's_and_b32 {s(sKf)}, {s(S_J8)}, 3')
    a(f's_lshl_b32 {s(sKf)}, {s(sKf)}, 5')
    ln0, ln1 = a.newlabel('n0'), a.newlabel('n1')
    a(f's_cmp_lg_u32 {s(S_W)}, 1')
    a(f's_cbranch_scc1 {ln1}')
    a(f'v_mov_b32 {v(vN)}, 0x3f803f80')
    a(f'v_and_b32 {v(t2)}, 31, v0')
    a(f'v_lshlrev_b32 {v(t2)}, 2, {v(t2)}')
    a(f'v_add_u32 {v(t3)}, {SLOT}, {v(t2)}')
    a(f'ds_write_b32 {v(t2)}, {v(vN)} offset:{XIMG + 64*128}')
    a(f'ds_write_b32 {v(t3)}, {v(vN)} offset:{XIMG + 64*128}')
    a(f'v_add_u32 {v(t3)}, {2*SLOT}, {v(t2)}')
    a(f'ds_write_b32 {v(t3)}, {v(vN)} offset:{XIMG + 64*128}')
    a.label(ln1)
    Touch(a, os.environ.get('CS', ''), S_W, sT, sT2, S_CNT, 8).go(99)
    srd(a, SRD_WS, S_PWS, WS_SIZE)
    if ET & 1:
        lf = a.newlabel('ef')
        a(f's_cmp_lg_u32 {s(S_W)}, 2')
        a(f's_cbranch_scc1 {lf}')
        a(f'v_lshrrev_b32 {v(vN)}, 2, v0')
        a(f'v_lshlrev_b32 {v(vN)}, 7, {v(vN)}')
        a(f'v_and_or_b32 {v(vN)}, v0, 3, {v(vN)}')
        a(f'v_lshlrev_b32 {v(vN)}, 7, {v(vN)}')
        a(f's_lshl_b32 {s(sT)}, {s(S_C)}, 9')
        a(f's_add_u32 {s(sT)}, {s(sT)}, {FL_1}')
        a(f's_mov_b64 exec, 0xfff')
        a(f'buffer_load_dword {v(vN)}, {v(vN)}, {s(SRD_WS,4)}, {s(sT)} offen sc1')
        a('s_mov_b64 exec, -1')
        a.label(lf)
    late = []
    real_a, a = a, late.append
    a(f'v_lshlrev_b32 {v(vL16)}, 4, v0')
    srd(a, SRD_B, S_POUT, 2048 * 1280)
    a(f'v_lshlrev_b32 {v(vStat)}, 3, {v(t0)}')
    a(f'v_add_u32 {v(vStat)}, {L_STAT}, {v(vStat)}')
    a(f'v_mul_u32_u24 {v(t2)}, {DROW}, {v(t0)}')
    a(f'v_lshl_add_u32 {v(t2)}, {v(t1)}, 3, {v(t2)}')
    a(f's_lshl_b32 {s(sT)}, {s(S_W)}, 6')
    a(f's_add_u32 {s(sT)}, {s(sT)}, {L_DUMP}')
    a(f'v_add_u32 {v(vDump)}, {s(sT)}, {v(t2)}')
    sCur, sPrev = sO1, sO2
    a(f's_lshr_b32 {s(sKh)}, {s(S_W)}, 2')
    a(f's_lshl_b32 {s(sCur)}, {s(sTau)}, 4')
    a(f's_sub_u32 {s(sPrev)}, {s(sCur)}, 16')
    a(f's_lshl_b32 {s(sT)}, {s(sTau)}, 2')
    a(f's_add_u32 {s(sT)}, {s(sT)}, 56')
    a(f's_bitcmp1_b32 {s(sTau)}, 0')
    a(f's_cselect_b32 {s(sPrev)}, {s(sPrev)}, {s(sT)}')
    a(f's_mul_i32 {s(sT)}, {s(sKh)}, 80')
    a(f's_add_u32 {s(sT)}, {s(sT)}, {L_DUMP}')
    a(f's_mul_i32 {s(sCur)}, {s(sCur)}, {DROW}')
    a(f's_mul_i32 {s(sPrev)}, {s(sPrev)}, {DROW}')
    a(f's_add_u32 {s(sCur)}, {s(sCur)}, {s(sT)}')
    a(f's_add_u32 {s(sPrev)}, {s(sPrev)}, {s(sT)}')
    a(f'v_add_u32 {v(aC)}, {s(sCur)}, {v(t2)}')
    a(f'v_add_u32 {v(aP)}, {s(sPrev)}, {v(t2)}')
    a(f'v_lshrrev_b32 {v(t2)}, 2, v0')
    a(f'v_mul_u32_u24 {v(t2)}, {DROW}, {v(t2)}')
    a(f'v_add_u32 {v(aVc4)}, {s(sCur)}, {v(t2)}')
    a(f'v_add_u32 {v(aVp4)}, {s(sPrev)}, {v(t2)}')
    a(f'v_and_b32 {v(t2)}, 3, v0')
    a(f'v_lshl_add_u32 {v(aVc)}, {v(t2)}, 3, {v(aVc4)}')
    a(f'v_lshl_add_u32 {v(aVp)}, {v(t2)}, 3, {v(aVp4)}')
    for q in range(3): a(f'v_cmp_eq_u32 {s(sC[q],2)}, {q+1}, {v(t2)}')
    a(f'v_bfe_u32 {v(t2)}, v0, 4, 1')
    a(f'v_lshrrev_b32 {v(t3)}, 5, v0')
    a(f'v_and_b32 {v(vL16s)}, 0xf0, {v(vL16)}')
    a(f'v_lshl_add_u32 {v(vH4)}, {v(t3)}, 8, {v(vL16s)}')
    a(f'v_lshl_add_u32 {v(vH4)}, {v(t2)}, 3, {v(vH4)}')
    a(f'v_lshl_add_u32 {v(t3)}, {v(t2)}, 1, {v(t3)}')
    a(f'v_lshl_add_u32 {v(vL16s)}, {v(t3)}, 8, {v(vL16s)}')
    tr_patterns(a, vTr, None, t2)
    a(f's_and_b32 {s(sT2)}, {s(S_W)}, 1')
    a(f's_lshl_b32 {s(sT)}, {s(sT2)}, 9')
    a(f's_add_u32 {s(sT)}, {s(sT)}, {L_WO[0]}')
    a(f'v_add_u32 {v(vTr)}, {s(sT)}, {v(vTr)}')
    a(f's_lshl_b32 {s(sT)}, {s(sT2)}, 10')
    a(f's_add_u32 {s(sT)}, {s(sT)}, {L_WO[0]}')
    a(f'v_add_u32 {v(vFr)}, {s(sT)}, {v(vL16)}')
    a(f's_mul_i32 {s(sT)}, {s(sT2)}, 20480')
    a(f'v_add_u32 {v(vB[0])}, {s(sT)}, {v(vL16)}')
    a(f's_sub_u32 {s(sT)}, 20480, {s(sT)}')
    a(f'v_add_u32 {v(vB[1])}, {s(sT)}, {v(vL16)}')
    a(f's_mul_i32 {s(sT)}, {s(sTau)}, 5120')
    a(f's_add_u32 {s(sT)}, {s(sT)}, {L_X2}')
    a(f'v_add_u32 {v(vXa)}, {s(sT)}, {v(vL16)}')
    a(f'v_lshlrev_b32 {v(vPo)}, 2, {v(t0)}')
    a(f'v_mov_b32 {v(keep+10)}, 0')
    a(f'v_mov_b32 {v(keep+11)}, 0')
    a(f's_and_b32 {s(sT)}, {s(sTau)}, 1')
    a(f's_or_b32 {s(sT)}, {s(sT)}, {s(S_C64)}')
    a(f's_cmp_eq_u32 {s(sT)}, 0')
    a(f's_cselect_b32 {s(sT)}, 100, 9')
    a(f'v_lshlrev_b32 {v(t1)}, 2, {v(t1)}')
    a(f'v_sub_u32 {v(t1)}, {v(t1)}, {v(t0)}')
    a(f'v_mov_b32 {v(t3)}, 0xf149f2ca')
    for r in range(4):
        a(f'v_add_u32 {v(t2)}, {r+7}, {v(t1)}')
        a(f'v_cmp_ge_u32 vcc, 7, {v(t2)}')
        a(f'v_cndmask_b32 {v(Cc+r)}, {v(t3)}, 0, vcc')
        a(f'v_add_u32 {v(t2)}, {r}, {v(t1)}')
        a(f'v_cmp_le_i32 vcc, {s(sT)}, {v(t2)}')
        a(f'v_cndmask_b32 {v(Cp+r)}, {v(t3)}, 0, vcc')
        a(f'v_cmp_ge_i32 vcc, 0, {v(t2)}')
        half = '0xffff' if r % 2 == 0 else '0xffff0000'
        a(f'v_mov_b32 {v(vG0)}, {half}')
        if r % 2 == 0:
            a(f'v_cndmask_b32 {v(Mc+r//2)}, 0, {v(vG0)}, vcc')
        else:
            a(f'v_cndmask_b32 {v(vG0)}, 0, {v(vG0)}, vcc')
            a(f'v_or_b32 {v(Mc+r//2)}, {v(Mc+r//2)}, {v(vG0)}')
    a(f'v_not_b32 {v(Mp)}, {v(Mc)}')
    a(f'v_not_b32 {v(Mp+1)}, {v(Mc+1)}')
    a(f'v_cmp_gt_u32 vcc, 16, v0')
    a(f'v_cndmask_b32 {v(vG0)}, 0, -1, vcc')
    cexp = struct.unpack('<I', struct.pack('<f', 20 ** -0.5 * math.log2(math.e)))[0]
    a(f's_mov_b32 {s(sCexp)}, {hex(cexp)}')
    a(f's_mov_b32 {s(sCexp+1)}, {hex(cexp)}')
    a(f's_lshl2_add_u32 {s(sTile)}, {s(S_C64)}, {s(sTau)}')
    a(f's_mul_i32 {s(sH4)}, {s(sTile)}, 20480')
    a(f's_lshl1_add_u32 {s(sT2)}, {s(S_J8)}, {s(sKh)}')
    a(f's_lshr_b32 {s(sT)}, {s(sT2)}, 3')
    a(f's_lshl1_add_u32 {s(sO1)}, {s(sT)}, {s(sT2)}')
    a(f's_lshl_b32 {s(sO1)}, {s(sO1)}, 10')
    a(f's_add_u32 {s(sO1)}, {s(sO1)}, {s(sH4)}')
    a(f's_lshl3_add_u32 {s(sF1w)}, {s(sT)}, {s(sT2)}')
    a(f's_mul_i32 {s(sO2)}, {s(sT)}, 10')
    a(f's_bfe_u32 {s(sT)}, {s(sT2)}, 0x10002')
    a(f's_add_u32 {s(sO2)}, {s(sO2)}, {s(sT)}')
    a(f's_add_u32 {s(sO2)}, {s(sO2)}, 8')
    a(f's_lshl_b32 {s(sO2)}, {s(sO2)}, 10')
    a(f's_add_u32 {s(sO2)}, {s(sO2)}, {s(sH4)}')
    a(f's_and_b32 {s(sT)}, {s(sT2)}, 3')
    a(f's_lshl_b32 {s(sT)}, {s(sT)}, 4')
    a(f's_mov_b64 {s(sMask,2)}, 0xffff')
    a(f's_lshl_b64 {s(sMask,2)}, {s(sMask,2)}, {s(sT)}')
    a(f's_and_b32 {s(sT2)}, {s(sTile)}, 1')
    a(f's_lshr_b32 {s(sT)}, {s(sTile)}, 1')
    a(f's_mul_i32 {s(sOb[4])}, {s(sT)}, 40960')
    a(f's_mul_i32 {s(sDsrc)}, {s(sT)}, 98304')
    a(f's_lshl_b32 {s(sT)}, {s(sT)}, 7')
    a(f's_lshl3_add_u32 {s(sF1w)}, {s(sT2)}, {s(sF1w)}')
    a(f's_lshl2_add_u32 {s(sF1w)}, {s(sF1w)}, {s(sT)}')
    a(f's_add_u32 {s(sF1w)}, {s(sF1w)}, {FL_1}')
    a(f's_lshl3_add_u32 {s(sF2w)}, {s(sT2)}, {s(S_J8)}')
    a(f's_lshl2_add_u32 {s(sF2w)}, {s(sF2w)}, {s(sT)}')
    a(f's_add_u32 {s(sF2w)}, {s(sF2w)}, {FL_2}')
    a(f's_lshl_b32 {s(sF3r)}, {s(sT2)}, 5')
    a(f's_lshl1_add_u32 {s(sF1r)}, {s(sF3r)}, {s(sT)}')
    a(f's_add_u32 {s(sF1r)}, {s(sF1r)}, {FL_1}')
    a(f's_add_u32 {s(sF3r)}, {s(sF3r)}, {s(sT)}')
    a(f's_add_u32 {s(sF3r)}, {s(sF3r)}, {FL_3}')
    a(f's_mul_i32 {s(sT)}, {s(sT2)}, 10240')
    a(f's_add_u32 {s(sOb[4])}, {s(sOb[4])}, {s(sT)}')
    a(f's_mul_i32 {s(sT)}, {s(sT2)}, 24576')
    a(f's_add_u32 {s(sDsrc)}, {s(sDsrc)}, {s(sT)}')
    a(f's_add_u32 {s(sDsrc)}, {s(sDsrc)}, {WS_DF}')
    for i in range(4):
        if RO:
            a(f's_add_u32 {s(sT)}, {s(S_C64)}, {i}')
            a(f's_and_b32 {s(sT)}, {s(sT)}, 3')
            a(f's_lshl_b32 {s(sT)}, {s(sT)}, 11')
            a(f's_add_u32 {s(sOb[i])}, {s(sOb[4])}, {s(sT)}')
        else: a(f's_add_u32 {s(sOb[i])}, {s(sOb[4])}, {2048*i}')
    a(f's_add_u32 {s(sOb[4])}, {s(sOb[4])}, 8192')
    a(f's_lshl3_add_u32 {s(sSTw)}, {s(sTile)}, {s(S_J8)}')
    a(f's_lshl_b32 {s(sSTw)}, {s(sSTw)}, 7')
    a(f's_add_u32 {s(sSTw)}, {s(sSTw)}, {WS_ST}')
    a(f's_add_u32 {s(sH4)}, {s(sH4)}, {WS_HF}')
    a(f's_lshl_b32 {s(sT)}, {s(sBeta)}, 11')
    a(f's_add_u32 {s(sHP)}, {s(sH4)}, {s(sT)}')
    a(f's_lshl_b32 {s(sB4)}, {s(sB4)}, 7')
    a(f's_add_u32 {s(sB4)}, {s(sB4)}, {s(sKf)}')
    a(f's_lshl4_add_u32 {s(sH4)}, {s(sB4)}, {s(sH4)}')
    a(f's_lshl_b32 {s(sBeta)}, {s(sBeta)}, 7')
    a(f's_lshl_b32 {s(sT2)}, {s(sT2)}, 5')
    a(f's_lshr_b32 {s(sT)}, {s(sTau)}, 1')
    a(f's_add_u32 {s(sT2)}, {s(sT2)}, {s(sT)}')
    a(f's_lshl_b32 {s(sT)}, {s(S_C64)}, 6')
    a(f's_add_u32 {s(sT2)}, {s(sT2)}, {s(sT)}')
    a(f's_mul_i32 {s(sT2)}, {s(sT2)}, 1280')
    a(f's_add_u32 {s(sRowP)}, {s(sBeta)}, {s(sT2)}')
    a(f's_add_u32 {s(sRow4)}, {s(sB4)}, {s(sT2)}')
    a(f's_lshl2_add_u32 {s(sT2)}, {s(S_C)}, {s(sTau)}')
    a(f's_lshl_b32 {s(sF2r)}, {s(sT2)}, 7')
    a(f's_lshl2_add_u32 {s(sF3w)}, {s(S_J)}, {s(sF2r)}')
    a(f's_add_u32 {s(sF3w)}, {s(sF3w)}, {FL_3}')
    a(f's_add_u32 {s(sF2r)}, {s(sF2r)}, {FL_2}')
    a(f's_lshl_b32 {s(sSTr)}, {s(sT2)}, 11')
    a(f's_add_u32 {s(sSTr)}, {s(sSTr)}, {WS_ST}')
    a(f's_mul_i32 {s(sHsrc)}, {s(sT2)}, 40960')
    a(f's_add_u32 {s(sHsrc)}, {s(sHsrc)}, {WS_HF}')
    a(f's_mul_i32 {s(sD2)}, {s(sT2)}, 98304')
    a(f's_mul_i32 {s(sT)}, {s(S_J)}, 3072')
    a(f's_add_u32 {s(sD2)}, {s(sD2)}, {s(sT)}')
    a(f's_add_u32 {s(sD2)}, {s(sD2)}, {WS_DF}')
    a(f's_bitcmp1_b32 {s(S_J)}, 0')
    a(f's_cselect_b32 {s(sT)}, 1024, 0')
    a(f's_cselect_b32 {s(sT2)}, 0, 2048')
    a(f's_add_u32 {s(sD01)}, {s(sD2)}, {s(sT)}')
    a(f's_add_u32 {s(sD2)}, {s(sD2)}, {s(sT2)}')
    if R1:
        a(f's_and_b32 {s(sT)}, {s(S_C)}, 1')
        a(f's_mul_i32 {s(sR1)}, {s(sT)}, 10240')
        a(f's_add_u32 {s(sHsrc)}, {s(sHsrc)}, {s(sR1)}')
        a(f's_lshl_b32 {s(sR1)}, {s(sR1)}, 1')
        a(f's_sub_u32 {s(sR1)}, 2048, {s(sR1)}')
    a = real_a
    ok = scc_cuts(late)
    NP = env('NP', 8)
    cuts = [0]
    for i in range(1, NP):
        c = len(late) * i // NP
        while not ok[c]: c += 1
        cuts.append(c)
    cuts.append(len(late))
    def hello():
        lh = a.newlabel('hello')
        nonce_to_tag(a)
        a(f's_mov_b32 {s(S_TAG2)}, {s(S_TAG)}')
        a(f's_mov_b32 {s(S_TAG2+1)}, {s(S_TAG)}')
        a(f's_cmp_lg_u32 {s(S_W)}, 0')
        a(f's_cbranch_scc1 {lh}')
        a(f's_getreg_b32 {s(S_CNT)}, hwreg(HW_REG_XCC_ID, 0, 3)')
        a(f's_or_b32 {s(S_CNT)}, {s(S_CNT)}, {s(S_TAG)}')
        a(f'v_mov_b32 {v(vG0)}, {s(S_CNT)}')
        a(f's_lshl4_add_u32 {s(S_CNT)}, {s(S_C)}, {s(S_J)}')
        a(f's_lshl_b32 {s(S_CNT)}, {s(S_CNT)}, 2')
        a(f's_add_u32 {s(S_CNT)}, {s(S_CNT)}, {FL_HELLO}')
        a(f's_mov_b64 exec, 1')
        a(f'buffer_store_dword {v(vG0)}, off, {s(SRD_WS,4)}, {s(S_CNT)} sc1')
        a(f's_mov_b64 exec, -1')
        a.label(lh)
    def reads(st):
        L = []
        for n in range(2):
            for jh in range(2):
                L.append(f'ds_read_b64_tr_b16 {v(fW[st][n]+2*jh,2)}, {v(vW)} offset:{st*512 + jh*8*WROW + n*32}')
        for m in range(5):
            L.append(f'ds_read_b128 {v(fX[st][m],4)}, {v(vX[st])} offset:{m*2048}')
        return L
    def mfmas(st, z=False):
        return [f'{MFMA} {v(acc[n][m],4)}, {v(fW[st][n],4)}, {v(fX[st][m],4)}, {"0" if z else v(acc[n][m],4)}'
                for m in range(5) for n in range(2)]
    def capture(it):
        base = (it % 3) * SLOT + XIMG
        for sI_, ns in ((sIP, 4), (sI4, 1)):
            lo, lb = a.newlabel('cap'), a.newlabel('capb')
            a(f's_cmp_eq_u32 {s(sI_)}, {it}')
            a(f's_cbranch_scc1 {lo}')
            a.label(lb)
            if ns == 4:
                L = [f'v_add_u32 {v(keep)}, {base}, {v(vXC)}'] + [f'v_xor_b32 {v(keep+2*n)}, {32*n}, {v(keep)}' for n in (1, 2, 3)]
                L += [f'ds_read_b64 {v(keep+2*n,2)}, {v(keep+2*n)}' for n in range(4)]
            else:
                L = [f'v_add_u32 {v(keep+8)}, {base}, {v(vXC)}', f'v_xor_b32 {v(keep+8)}, {s(sKf)}, {v(keep+8)}',
                     f'ds_read_b64 {v(keep+8,2)}, {v(keep+8)}']
            DEFER.append((lo, lb, L))
    st_ = fX[0][0]; cs = fX[0][3]; pk = fW[0][0]
    stamp(a)
    for it in range(10):
        a(f's_waitcnt lgkmcnt(0)')
        a(f's_barrier')
        stamp(a)
        M, RD = mfmas(1), reads(0)
        for i in range(10):
            if i < 5:
                for x in RD[2*i:2*i+2]: a(x)
            if it: a(M[i])
        capture(it)
        a(f's_waitcnt lgkmcnt(0)')
        M, RD = mfmas(0, it == 0), reads(1)
        for i in range(10):
            a(M[i])
            if i < 5:
                for x in RD[2*i:2*i+2]: a(x)
        if it < 9:
            d = hex(SLOT if it % 3 < 2 else (-2 * SLOT) & 0xffffffff)
            for r in (vX[0], vW, vX[1]): a(f'v_add_u32 {v(r)}, {d}, {v(r)}')
        if it == 2 and EB:
            assert not any(re.search(rf'v{Cc}\b', x) for x in late[:cuts[1]])
            a('s_waitcnt vmcnt(0)')
        if it == 0: hello()
        elif it <= NP:
            for x in late[cuts[it-1]:cuts[it]]: a(x)
    M = mfmas(1)
    M = M[8:] + M[:8]
    a(f'v_mov_b32 {v(t0)}, {L_TAG}')
    for m in (4, 0, 1, 2, 3):
        a(f'ds_read_b64 {v(st_+2*m,2)}, {v(vStat)} offset:{m*128}')
    a(f'ds_read_b32 {v(t3)}, {v(t0)}')
    a(f's_waitcnt lgkmcnt(6)')
    def norm(n, m, q):
        A = acc[n][m]
        L = []
        for h in range(2): L.append(f'v_pk_mul_f32 {v(A+2*h,2)}, {v(A+2*h,2)}, {v(st_+2*m,2)} op_sel_hi:[1,0]')
        for h in range(2): L.append(f'v_pk_fma_f32 {v(A+2*h,2)}, {v(st_+2*m,2)}, {v(cs+4*n+2*h,2)}, {v(A+2*h,2)} op_sel:[1,0,0] op_sel_hi:[1,1,1] neg_lo:[1,0,0] neg_hi:[1,0,0]')
        p = pk + 2 * (q % 4)
        L.append(f'v_cvt_pk_bf16_f32 {v(p)}, {v(A)}, {v(A+1)}')
        L.append(f'v_cvt_pk_bf16_f32 {v(p+1)}, {v(A+2)}, {v(A+3)}')
        L.append(f'ds_write_b64 {v(vDump)}, {v(p,2)} offset:{m*16*DROW + n*32}')
        return L
    dpp = [f'v_mov_b32_dpp {v(cs+4*n+r)}, {v(acc[n][4]+r)} row_newbcast:0 row_mask:0xf bank_mask:0xf' for n in range(2) for r in range(4)]
    for i, x in enumerate(M):
        a(x)
        if i >= 6: a(dpp[2*(i-6)]); a(dpp[2*(i-6)+1])
    a(f's_waitcnt lgkmcnt(0)')
    a(f'v_readfirstlane_b32 {s(S_SAME)}, {v(t3)}')
    lsk = a.newlabel('p1sk')
    for n in range(2):
        if env('XST', 0): stamp(a)
        if n == 1:
            a(f's_cmp_eq_u32 {s(S_W)}, 7')
            a(f's_cbranch_scc1 {lsk}')
        for q, m in enumerate((4, 0, 1, 2, 3)):
            for x in norm(n, m, q): a(x)
    a.label(lsk)
    if env('XST', 0): stamp(a)
    a(f's_waitcnt lgkmcnt(0)')
    a(f's_barrier')
    stamp(a)
    va2 = Alloc('v', wk0, wk1)
    Q = [va2(4, 2) for _ in range(2)]; Kc = [va2(4, 2) for _ in range(2)]; Kp = [va2(4, 2) for _ in range(2)]
    Vm = [va2(4, 2) for _ in range(2)]; V4 = [va2(4, 2) for _ in range(2)]
    Sc = [va2(4, 2) for _ in range(2)]; Sp = [va2(4, 2) for _ in range(2)]
    Om, O4 = va2(4, 2), va2(4, 2)
    for h in range(2):
        a(f'ds_read2_b64 {v(Q[h],4)}, {v(aC)} offset0:{5*h} offset1:{5*h+4}')
        a(f'ds_read2_b64 {v(Kc[h],4)}, {v(aC)} offset0:{20+5*h} offset1:{24+5*h}')
        a(f'ds_read2_b64 {v(Kp[h],4)}, {v(aP)} offset0:{20+5*h} offset1:{24+5*h}')
    for h in range(2):
        a(f'ds_read_b64_tr_b16 {v(Vm[h],2)}, {v(aVp)} offset:{320+40*h}')
        a(f'ds_read_b64_tr_b16 {v(Vm[h]+2,2)}, {v(aVc)} offset:{320+40*h}')
        a(f'ds_read_b64_tr_b16 {v(V4[h],2)}, {v(aVp4)} offset:{320+40*h+32}')
        a(f'ds_read_b64_tr_b16 {v(V4[h]+2,2)}, {v(aVc4)} offset:{320+40*h+32}')
    for h in range(2):
        a(f's_waitcnt lgkmcnt({8 + 3*(1-h)})')
        a(f'v_and_b32 {v(Q[h]+2)}, {v(Q[h]+2)}, {v(vG0)}')
        a(f'v_and_b32 {v(Q[h]+3)}, {v(Q[h]+3)}, {v(vG0)}')
        a(f'{MFMA} {v(Sc[h],4)}, {v(Kc[h],4)}, {v(Q[h],4)}, {v(Cc,4)}')
        a(f'{MFMA} {v(Sp[h],4)}, {v(Kp[h],4)}, {v(Q[h],4)}, {v(Cp,4)}')
    mx = [t0, t1]; tm = [t2, t3]
    for h in range(2):
        for r in range(4): a(f'v_max_f32 {v(Sc[h]+r)}, {v(Sc[h]+r)}, {v(Sp[h]+r)}')
        a(f'v_max3_f32 {v(mx[h])}, {v(Sc[h])}, {v(Sc[h]+1)}, {v(Sc[h]+2)}')
        a(f'v_max_f32 {v(mx[h])}, {v(mx[h])}, {v(Sc[h]+3)}')
    xg_reduce(a, mx, tm, 'v_max_f32')
    a(f'v_pk_mul_f32 {v(t0,2)}, {v(t0,2)}, {s(sCexp,2)}')
    for h in range(2):
        for p in range(2):
            a(f'v_pk_fma_f32 {v(Sc[h]+2*p,2)}, {v(Sc[h]+2*p,2)}, {s(sCexp,2)}, {v(t0,2)} op_sel:[0,0,{h}] op_sel_hi:[1,1,{h}] neg_lo:[0,0,1] neg_hi:[0,0,1]')
    for h in range(2):
        for r in range(4): a(f'v_exp_f32 {v(Sc[h]+r)}, {v(Sc[h]+r)}')
    for h in range(2): a(f'v_pk_add_f32 {v(Sp[h],2)}, {v(Sc[h],2)}, {v(Sc[h]+2,2)}')
    for h in range(2): a(f'v_add_f32 {v(mx[h])}, {v(Sp[h])}, {v(Sp[h]+1)}')
    xg_reduce(a, mx, tm, 'v_add_f32')
    for h in range(2): a(f'v_rcp_f32 {v(mx[h])}, {v(mx[h])}')
    for h in range(2):
        for p in range(2):
            a(f'v_pk_mul_f32 {v(Sc[h]+2*p,2)}, {v(Sc[h]+2*p,2)}, {v(t0,2)} op_sel:[0,{h}] op_sel_hi:[1,{h}]')
        a(f'v_cvt_pk_bf16_f32 {v(Sc[h])}, {v(Sc[h])}, {v(Sc[h]+1)}')
        a(f'v_cvt_pk_bf16_f32 {v(Sc[h]+1)}, {v(Sc[h]+2)}, {v(Sc[h]+3)}')
        a(f'v_and_b32 {v(Sp[h])}, {v(Sc[h])}, {v(Mp)}')
        a(f'v_and_b32 {v(Sp[h]+1)}, {v(Sc[h]+1)}, {v(Mp+1)}')
        a(f'v_and_b32 {v(Sp[h]+2)}, {v(Sc[h])}, {v(Mc)}')
        a(f'v_and_b32 {v(Sp[h]+3)}, {v(Sc[h]+1)}, {v(Mc+1)}')
        if h == 0: a(f's_waitcnt lgkmcnt(0)')
        a(f'{MFMA} {v(Q[h],4)}, {v(Vm[h],4)}, {v(Sp[h],4)}, 0')
        a(f'{MFMA} {v(Kc[h],4)}, {v(V4[h],4)}, {v(Sp[h],4)}, 0')
    for h in range(2):
        a(f'v_cvt_pk_bf16_f32 {v(Om+2*h)}, {v(Q[h])}, {v(Q[h]+1)}')
        a(f'v_cvt_pk_bf16_f32 {v(Om+2*h+1)}, {v(Q[h]+2)}, {v(Q[h]+3)}')
        a(f'v_cvt_pk_bf16_f32 {v(O4+2*h)}, {v(Kc[h])}, {v(Kc[h]+1)}')
        a(f'v_cvt_pk_bf16_f32 {v(O4+2*h+1)}, {v(Kc[h]+2)}, {v(Kc[h]+3)}')
    dual(a, [f'buffer_store_dwordx4 {v(Om,4)}, {v(vL16)}, {s(SRD_WS,4)}, {s(sO1)} offen@',
             f's_mov_b64 exec, {s(sMask,2)}',
             f'buffer_store_dwordx4 {v(O4,4)}, {v(vL16)}, {s(SRD_WS,4)}, {s(sO2)} offen@',
             f's_mov_b64 exec, -1'], 1)
    stamp(a)
    if env('BATT', 0): a(f's_barrier')
    publish(a, t0, sF1w)
    if not env('BATT', 0): a(f's_barrier')
    stamp(a)
    lhelp = a.newlabel('helper')
    a(f's_cmp_ge_u32 {s(S_W)}, 4')
    a(f's_cbranch_scc1 {lhelp}')
    nh = St.n
    if PRIO2: a(f's_setprio {PRIO2}')
    class G5:
        def __init__(g, K, LB, D, sB, per, base):
            va = Alloc('v', p0, VLIM)
            g.K, g.LB, g.D, g.sB, g.per, g.base = K, LB, D, sB, per, base
            g.acc = [[va(4, 2) for n in range(5)] for t in range(2)]
            g.ring = [va(4, 2) for _ in range(LA + 1)]
            g.fB = [[va(4, 2) for t in range(2)] for _ in range(D)]
            hi[0] = max(hi[0], va.hi)
            g.lg, g.vm = Cnt(15), Cnt(63)
        def rd(g, i, part):
            k, n = divmod(i, 5)
            if k >= g.K: return
            o = g.base.off(g.LB[k], BLK)
            R = g.ring[i % (LA + 1)]
            if n < 4: a(f'ds_read_b64_tr_b16 {v(R+2*part,2)}, {v(vTr)} offset:{o + part*256 + n*32}')
            elif part == 0: a(f'ds_read_b128 {v(R,4)}, {v(vFr)} offset:{o + 8*WROW}')
            else: return
            g.lg.add(i)
        def ld(g, k, t):
            if k >= g.K: return
            a(f'buffer_load_dwordx4 {v(g.fB[k % g.D][t],4)}, {v(vB[t])}, {s(SRD_WS,4)}, {s(g.sB[k // g.per])} offen offset:{(k % g.per)*1024} sc1')
            g.vm.add((k, t))
        def run(g, top):
            for k in range(g.K):
                top(k)
                for n in range(5):
                    i = 5 * k + n
                    for p, t in enumerate((0, 1) if k < g.K - 1 else (1, 0)):
                        w = []
                        if n == 0 and (p == 0 or k == 0): w.append(f'vmcnt({g.vm.after((k, t if k == 0 else 1))})')
                        if p == 0: w.append(f'lgkmcnt({g.lg.after(i)})')
                        if w: a('s_waitcnt ' + ' '.join(w))
                        C = '0' if k == 0 and t == 1 else v(g.acc[t][n], 4)
                        a(f'{MFMA} {v(g.acc[t][n],4)}, {v(g.ring[i % (LA+1)],4)}, {v(g.fB[k % g.D][t],4)}, {C}')
                        g.rd(i + LA, p)
                        if n == 4: g.ld(k + g.D, t)
        def exchange(g, out):
            for n in range(5): a(f'ds_write_b128 {v(vXa)}, {v(g.acc[1][n],4)} offset:{n*1024}')
            a(f's_bitcmp1_b32 {s(S_W)}, 0')
            a(f's_movk_i32 {s(sT)}, 5120')
            a(f's_cmovk_i32 {s(sT)}, {(-5120) & 0xffff}')
            a(f'v_add_u32 {v(t0)}, {s(sT)}, {v(vXa)}')
            a(f's_waitcnt lgkmcnt(0)')
            a(f's_barrier')
            stamp(a)
            for n in range(5): a(f'ds_read_b128 {v(g.acc[1][n],4)}, {v(t0)} offset:{n*1024}')
            for n in range(5):
                a(f's_waitcnt lgkmcnt({4-n})')
                A = g.acc[0][n]
                for h in range(2): a(f'v_pk_add_f32 {v(A+2*h,2)}, {v(A+2*h,2)}, {v(g.acc[1][n]+2*h,2)}')
                for h in range(2): a(f'v_cvt_pk_bf16_f32 {v(keep+2*n+h)}, {v(A+2*h)}, {v(A+2*h+1)}')
                if n in (1, 3):
                    for h in range(2): a(f'v_permlane16_swap_b32 {v(keep+2*n-2+h)}, {v(keep+2*n+h)}')
                if n != 0 and n != 2: out(n >> 1)
    def unpack(dst, src):
        a(f'v_lshlrev_b32 {v(dst)}, 16, {v(src)}')
        a(f'v_and_b32 {v(dst+1)}, 0xffff0000, {v(src)}')
    g = G5(10, L_WO, D2, sOb, 2, Base(a, [vTr, vFr], L_WO[0]))
    poll0(a, t2, vPo, sF1r)
    for i in range(LA): g.rd(i, 0); g.rd(i, 1)
    for i in range(10): unpack(g.acc[0][0] + 2 * i, keep + i)
    spoll(a, sF1r, 16, t2, vPo, t1)
    stamp(a)
    for k in range(D2): g.ld(k, 0); g.ld(k, 1)
    KG = env('KG', 0)
    stamp(a)
    g.run(lambda k: a('s_barrier') if k == KG and env('BGO', 1) else None)
    stamp(a)
    G_, S_, vOne = g.ring[0], g.ring[1], g.fB[0][0]
    for r in range(4): a(f'v_mov_b32 {v(vOne+r)}, 0x3f803f80')
    def out(i):
        if i < 2: dual(a, [f'buffer_store_dwordx4 {v(keep+4*i,4)}, {v(vL16s)}, {s(SRD_WS,4)}, {s(sHP)} offen offset:{1024*i}@'], 2)
        else: dual(a, [f'buffer_store_dwordx2 {v(keep+8,2)}, {v(vH4)}, {s(SRD_WS,4)}, {s(sH4)} offen@'], 2)
        a(f'{MFMA} {v(G_,4)}, {v(keep+4*i,4)}, {v(keep+4*i,4)}, {v(G_,4) if i else "0"}')
        a(f'{MFMA} {v(S_,4)}, {v(vOne,4)}, {v(keep+4*i,4)}, {v(S_,4) if i else "0"}')
    g.exchange(out)
    a(f'v_lshlrev_b32 {v(t1)}, 1, {v(vPo)}')
    a(f's_mov_b32 exec_lo, 0x00f0000f')
    a(f's_mov_b32 exec_hi, 0xf0000f00')
    a(f'v_cndmask_b32 {v(G_)}, {v(G_)}, {v(G_+1)}, {s(sC[0],2)}')
    a(f'v_cndmask_b32 {v(G_)}, {v(G_)}, {v(G_+2)}, {s(sC[1],2)}')
    a(f'v_cndmask_b32 {v(S_+1)}, {v(G_)}, {v(G_+3)}, {s(sC[2],2)}')
    dual(a, [f'buffer_store_dwordx2 {v(S_,2)}, {v(t1)}, {s(SRD_WS,4)}, {s(sSTw)} offen@'], 2)
    a(f's_mov_b64 exec, -1')
    stamp(a)
    base2 = g.base
    va = Alloc('v', p0, VLIM)
    acc = [va(16, 2) for _ in range(3)]
    ring = [va(4, 2) for _ in range(LA + 1)]
    fH = [va(4, 2) for _ in range(D3)]
    vA = [va(), va(), va()]
    vHs = va()
    hi[0] = max(hi[0], va.hi)
    stp = [acc[2] + 8 + 2 * q for q in range(4)] if False else [fH[D3-2], fH[D3-2] + 2, fH[D3-1], fH[D3-1] + 2]
    vS = t2; vRs = t1
    a(f'v_bfe_u32 {v(t0)}, v0, 2, 2')
    a(f'v_lshrrev_b32 {v(t2)}, 5, v0')
    a(f'v_lshl_add_u32 {v(t0)}, {v(t2)}, 3, {v(t0)}')
    a(f'v_bfe_u32 {v(t3)}, v0, 4, 1')
    a(f'v_and_b32 {v(vHs)}, 3, v0')
    a(f'v_lshlrev_b32 {v(vHs)}, 3, {v(vHs)}')
    a(f'v_lshl_add_u32 {v(vHs)}, {v(t3)}, 5, {v(vHs)}')
    a(f'v_lshl_add_u32 {v(vA[2])}, {v(t0)}, 6, {v(vHs)}')
    a(f'v_lshl_add_u32 {v(vA[1])}, {v(t0)}, 7, {v(vHs)}')
    a(f'v_bfe_u32 {v(t0)}, v0, 3, 1')
    a(f'v_lshl_add_u32 {v(vA[0])}, {v(t0)}, 6, {v(vA[1])}')
    a(f'v_xor_b32 {v(vA[1])}, 64, {v(vA[0])}')
    a(f'v_lshl_add_u32 {v(t1)}, {v(t2)}, 9, {v(t1)}')
    a(f'v_lshl_add_u32 {v(t1)}, {v(t3)}, 10, {v(t1)}')
    a(f'v_mul_u32_u24 {v(t3)}, 20480, {v(t3)}')
    a(f'v_lshl_add_u32 {v(t3)}, {v(t2)}, 8, {v(t3)}')
    a(f'v_lshl_add_u32 {v(vHs)}, {v(vPo)}, 2, {v(t3)}')
    publish(a, t0, sF2w)
    stamp(a)
    lg, vmc, base = Cnt(15), Cnt(63), Base(a, vA, 0)
    spoll(a, sF2r, 16, t0, vPo)
    stamp(a)
    def ld(k):
        if k >= 40: return
        if k and k % 4 == 0: a(f's_add_u32 {s(sHsrc)}, {s(sHsrc)}, {s(sR1) if R1 and k == 20 else 2048}')
        a(f'buffer_load_dwordx4 {v(fH[k % D3],4)}, {v(vHs)}, {s(SRD_WS,4)}, {s(sHsrc)} offen offset:{(k%4)*512} sc1')
        vmc.add(k)
    for k in range(4): ld(k)
    for q in range(4):
        a(f'buffer_load_dwordx2 {v(stp[q],2)}, {v(t1)}, {s(SRD_WS,4)}, {s(sSTr)} offen offset:{q*128} sc1')
        vmc.add('st')
    for k in range(4, D3 - 2): ld(k)
    a(f's_barrier')
    stamp(a)
    def rd3(i):
        k, n = divmod(i, 3)
        R = ring[i % (LA + 1)]
        if k == 40:
            a(f'ds_read_b64 {v(R,2)}, {v(t0)} offset:{n*256}')
            lg.add(i)
        if k >= 40: return
        o = base.off(L_W1[k >> 2], BLK1)
        for jh in range(2):
            r = 16 * (k & 3) + 4 * jh
            a(f'ds_read_b64_tr_b16 {v(R+2*jh,2)}, {v(vA[n])} offset:{o + (r*128 if n < 2 else 8192 + r*64)}')
        lg.add(i, 2)
    for i in range(LA): rd3(i)
    class LA_:
        def __init__(self): self.L = []
        def __call__(self, x): self.L.append(x)
    la = LA_()
    for h in range(2):
        la(f'v_add_f32 {v(vS+h)}, {v(stp[0]+h)}, {v(stp[1]+h)}')
        la(f'v_add_f32 {v(t0+h)}, {v(stp[2]+h)}, {v(stp[3]+h)}')
    nfirst = len(la.L)
    for h in range(2): la(f'v_add_f32 {v(vS+h)}, {v(vS+h)}, {v(t0+h)}')
    for h in range(2): la(f'v_mov_b32 {v(t0+h)}, {v(vS+h)}')
    for h in range(2): la(f'v_permlane32_swap_b32 {v(vS+h)}, {v(t0+h)}')
    for h in range(2): la(f'v_add_f32 {v(vS+h)}, {v(vS+h)}, {v(t0+h)}')
    la.L += ln_stats(vS, vS + 1, vRs, raw=True)
    la(f'v_cvt_pk_bf16_f32 {v(vS+1)}, -{v(vS)}, {v(vS+1)}')
    la(f'v_cvt_pk_bf16_f32 {v(vS)}, -{v(vS)}, -{v(vS)}')
    la(f'v_cmp_gt_u32 vcc, 32, v0')
    la(f'v_cndmask_b32 {v(vS)}, 0, {v(vS)}, vcc')
    la(f'v_cndmask_b32 {v(vS+1)}, 0, {v(vS+1)}, vcc')
    la(f'v_and_b32 {v(t0)}, 31, v0')
    la(f'v_lshlrev_b32 {v(t0)}, 3, {v(t0)}')
    la(f'v_add_u32 {v(t0)}, {L_CS}, {v(t0)}')
    fill = {}
    for i, x in enumerate(la.L): fill.setdefault(13 + (0 if i < nfirst else i), []).append(x)
    Bx = fH[40 % D3]
    fill.setdefault(112, []).extend([f'v_mov_b32 {v(Bx)}, {v(vS)}', f'v_mov_b32 {v(Bx+1)}, {v(vS+1)}'])
    fill.setdefault(113, []).extend([f'v_mov_b32 {v(Bx+2)}, 0', f'v_mov_b32 {v(Bx+3)}, 0'])
    fill.setdefault(114, []).extend([f'v_bfe_u32 {v(t3)}, v0, 4, 1', f'v_mul_u32_u24 {v(t3)}, {49152 - 20480}, {v(t3)}'])
    fill.setdefault(115, []).extend([f'v_add_u32 {v(vHs)}, {v(t3)}, {v(vHs)}'])
    assert 3 * (40 - D3) < 112
    for k in range(41):
        if k in (16, 28):
            a(f's_barrier')
            if env('XST', 0): stamp(a)
        for n in range(3):
            i = 3 * k + n
            w = f'lgkmcnt({lg.after(i)})'
            if n == 0 and k < 40: w = f'vmcnt({vmc.after(k)}) ' + w
            a(f's_waitcnt {w}')
            a(f'{MFMA32} {v(acc[n],16)}, {v(ring[i % (LA+1)],4)}, {v(fH[k % D3],4)}, {"0" if k == 0 else v(acc[n],16)}')
            rd3(i + LA)
            for x in fill.get(i, []): a(x)
            if i == 13: ld(D3 - 2); ld(D3 - 1); ld(D3); ld(D3 + 1); ld(D3 + 2); ld(D3 + 3)
            if n == 2 and k >= 4: ld(k + D3)
    stamp(a)
    if X3E: a(f's_barrier')
    for n in range(3):
        for c in range(2):
            A_ = acc[n] + 8 * c
            o_ = ring[(2 * n + c) % (LA + 1)]
            for r in range(8): a(f'v_max_f32 {v(A_+r)}, 0, {v(A_+r)}')
            for h in range(4): a(f'v_pk_mul_f32 {v(A_+2*h,2)}, {v(A_+2*h,2)}, {v(t0,2)} op_sel:[0,1] op_sel_hi:[1,1]')
            for h in range(4): a(f'v_pk_mul_f32 {v(A_+2*h,2)}, {v(A_+2*h,2)}, {v(A_+2*h,2)}')
            for h in range(4): a(f'v_cvt_pk_bf16_f32 {v(o_+h)}, {v(A_+2*h)}, {v(A_+2*h+1)}')
            dual(a, [f'buffer_store_dwordx4 {v(o_,4)}, {v(vHs)}, {s(SRD_WS,4)}, {s(sD01 if n < 2 else sD2)} offen offset:{(n&1)*1024 + c*512}@'], 4)
    stamp(a)
    if not X3E: a(f's_barrier')
    g = G5(24, L_W2, D4, sDb, 3, base2)
    b2 = g.fB[D4-1][0] - 4
    a(f'v_lshrrev_b32 {v(t1)}, 4, v0')
    a(f'v_lshlrev_b32 {v(t1)}, 3, {v(t1)}')
    a(f'v_add_u32 {v(t2)}, {L_B2}, {v(t1)}')
    for n in range(5): a(f'ds_read_b64 {v(b2+2*n,2)}, {v(t2)} offset:{32*n}')
    for i in range(8):
        if R2:
            a(f's_lshl1_add_u32 {s(sT)}, {s(S_C64)}, {i}')
            a(f's_and_b32 {s(sT)}, {s(sT)}, 7')
            a(f's_mul_i32 {s(sT)}, {s(sT)}, 3072')
            a(f's_add_u32 {s(sDb[i])}, {s(sDsrc)}, {s(sT)}')
        else: a(f's_add_u32 {s(sDb[i])}, {s(sDsrc)}, {3072*i}')
    for p in range(2):
        for h in range(2): a(f'v_permlane16_swap_b32 {v(keep+4*p+h)}, {v(keep+4*p+2+h)}')
    a(f'v_and_b32 {v(t3)}, 28, {v(vPo)}')
    publish(a, t0, sF3w)
    stamp(a)
    poll0(a, g.fB[0][1], t3, sF3r)
    for i in range(LA): g.rd(i, 0); g.rd(i, 1)
    a(f's_and_b32 {s(sT2)}, {s(S_W)}, 1')
    a(f's_mul_i32 {s(sT)}, {s(sT2)}, 49152')
    a(f'v_add_u32 {v(vB[0])}, {s(sT)}, {v(vL16)}')
    a(f's_sub_u32 {s(sT)}, 49152, {s(sT)}')
    a(f'v_add_u32 {v(vB[1])}, {s(sT)}, {v(vL16)}')
    a(f's_waitcnt lgkmcnt({len(g.lg.q)})')
    for i in range(10):
        unpack(g.acc[0][0] + 2 * i, keep + i)
        unpack(g.acc[1][0] + 2 * i, b2 + i)
    for i in range(10):
        A = g.acc[0][0] + 2 * i
        a(f'v_pk_add_f32 {v(A,2)}, {v(A,2)}, {v(g.acc[1][0] + 2*i,2)}')
    spoll(a, sF3r, 8, g.fB[0][1], t3, g.fB[0][1] + 1)
    stamp(a)
    for k in range(D4): g.ld(k, 0); g.ld(k, 1)
    a(f'v_mul_u32_u24 {v(t2)}, 640, {v(vPo)}')
    a(f'v_add_u32 {v(vH4)}, {v(t2)}, {v(t1)}')
    a(f'v_lshrrev_b32 {v(vL16s)}, 8, {v(vL16s)}')
    a(f'v_lshl_add_u32 {v(vL16s)}, {v(vL16s)}, 4, {v(t2)}')
    a(f'v_add_u32 {v(vXa)}, {hex((L_X4 - L_X2) & 0xffffffff)}, {v(vXa)}')
    stamp(a)
    def top(k):
        if k in YB:
            a(f's_barrier')
            if env('XST', 0): stamp(a)
    g.run(top)
    stamp(a)
    def out(i):
        if i < 2: a(f'buffer_store_dwordx4 {v(keep+4*i,4)}, {v(vL16s)}, {s(SRD_B,4)}, {s(sRowP)} offen offset:{64*i}')
        else: a(f'buffer_store_dwordx2 {v(keep+8,2)}, {v(vH4)}, {s(SRD_B,4)}, {s(sRow4)} offen')
    g.exchange(out)
    stamp(a)
    stamps_flush(a)
    a('s_endpgm')
    nf = St.n
    a.label(lhelp)
    St.n = nh
    hi[0] = max(hi[0], helper(a))
    St.n = nf
    for ls, lj, L in DEFER:
        a.label(ls)
        for x in L: a(x)
        a(f's_branch {lj}')
    return hi[0]

EB = os.environ.get('EB', 'x')
EBV = 122
def burst(a):
    sT, sT2, sO = 52, 53, 54
    D = {'q': (S_PWQKV, 640*3840), 'x': (S_PX, 2048*1280), 'o': (S_PWO, 640*1280), 'a': (S_PW1, 640*3072), 'b': (S_PW2, 1536*1280)}
    a(f'v_lshlrev_b32 v1, 4, v0')
    a(f's_lshl3_add_u32 {s(sT)}, s2, {s(S_W)}')
    a(f's_lshl3_add_u32 {s(sT2)}, {s(S_C64)}, {s(S_J8)}')
    a(f's_lshl3_add_u32 {s(sT2)}, {s(sT2)}, {s(S_W)}')
    for q, m in enumerate(EB): a(f's_mul_i32 {s(sO+q)}, {s(sT2 if m == "x" else sT)}, {D[m][1] // 2048}')
    a(f's_mov_b32 {s(sT)}, {640*3840 - 64}')
    a(f's_waitcnt lgkmcnt(0)')
    if env('ES', 1):
        a(f's_load_dword {s(S_CNT)}, {s(S_PWQKV,2)}, 0')
        a(f's_load_dword {s(S_CNT)}, {s(S_PWQKV,2)}, {s(sT)}')
    nonce_load(a)
    for rnd in range(2):
        for q, m in enumerate(EB):
            ptr, nb = D[m]
            ln = min(64, (nb // 2048 - 1024 * rnd) // 16)
            if ln <= 0: continue
            if rnd == 0: srd(a, 60 + 4 * q, ptr, nb)
            if ln < 64:
                a(f's_mov_b32 exec_lo, {hex((1 << min(ln, 32)) - 1)}')
                a(f's_mov_b32 exec_hi, {hex((1 << max(ln - 32, 0)) - 1)}')
            a(f'buffer_load_dwordx4 {v(EBV,4)}, v1, {s(60 + 4*q,4)}, {s(sO+q)} offen offset:{1024 * rnd}')
    a('s_mov_b64 exec, -1')

def build():
    K = NAME + '_kernel'
    head = '; generated by gen/gen5.py: fused persistent kernel, 8 compute + 4 loader waves per workgroup\n'
    head += f'; @launch grid=(256,1,1) block=(768,1,1) lds={LDS_SIZE}\n'
    head += '.amdgcn_target "amdgcn-amd-amdhsa--gfx950"\n.text\n'
    a = Asm()
    a(f'.globl {K}\n.p2align 8\n.type {K},@function')
    a.label(K)
    lend, lld = a.newlabel('end'), a.newlabel('loader')
    a(f's_cmp_ge_u32 s2, 256')
    a(f's_cbranch_scc1 {lend}')
    a(f's_load_dwordx16 s[16:31], s[0:1], 0')
    a(f's_load_dwordx4 s[32:35], s[0:1], 64')
    a(f's_load_dwordx2 s[36:37], s[0:1], 80')
    if STAMPS:
        a(f's_memrealtime s[96:97]')
        a(f's_memtime s[100:101]')
    a(f'v_lshrrev_b32 v1, 6, v0')
    a(f'v_and_b32 v0, 63, v0')
    a(f'v_readfirstlane_b32 {s(S_W)}, v1')
    if env('LF', 0):
        a(f's_sub_u32 {s(S_W)}, {s(S_W)}, 4')
        a(f's_cselect_b32 {s(S_XCD)}, 12, 0')
        a(f's_add_u32 {s(S_W)}, {s(S_W)}, {s(S_XCD)}')
    a(f's_and_b32 {s(S_XCD)}, s2, 7')
    a(f's_lshr_b32 {s(S_R)}, s2, 3')
    a(f's_lshr_b32 {s(S_C)}, {s(S_R)}, 4')
    a(f's_lshl1_add_u32 {s(S_C)}, {s(S_XCD)}, {s(S_C)}')
    a(f's_and_b32 {s(S_J)}, {s(S_R)}, 15')
    a(f's_lshr_b32 {s(S_C64)}, {s(S_J)}, 3')
    a(f's_lshl1_add_u32 {s(S_C64)}, {s(S_C)}, {s(S_C64)}')
    a(f's_and_b32 {s(S_J8)}, {s(S_J)}, 7')
    if STAMPS:
        a(f's_waitcnt lgkmcnt(0)')
        a(f'v_writelane_b32 v{VST}, s96, 0')
        a(f'v_writelane_b32 v{VST}, s100, 1')
        St.n = 2
        stamp(a)
    a(f's_cmp_lt_u32 {s(S_W)}, 8')
    lcomp = a.newlabel('compute')
    if EB:
        a(f's_cbranch_scc0 {lld}')
        burst(a)
        a(f's_branch {lcomp}')
        a.label(lld)
    else: a(f's_cbranch_scc1 {lcomp}')
    n0 = St.n
    nl = loader(a)
    print('loader stamps', St.n, file=sys.stderr)
    a.label(lend)
    a('s_endpgm')
    a.label(lcomp)
    St.n = n0
    nc = compute(a)
    print('compute stamps', St.n, 'vgprs', nl, nc, file=sys.stderr)
    print('nops inserted', a.pad(), file=sys.stderr)
    desc = f'''.section .rodata,"a"
.p2align 6
.amdhsa_kernel {K}
  .amdhsa_next_free_vgpr 168
  .amdhsa_next_free_sgpr 102
  .amdhsa_accum_offset 168
  .amdhsa_group_segment_fixed_size 0
  .amdhsa_kernarg_size 88
  .amdhsa_user_sgpr_count 2
  .amdhsa_user_sgpr_kernarg_segment_ptr 1
  .amdhsa_system_sgpr_workgroup_id_x 1
.end_amdhsa_kernel
'''
    return head + a.text() + desc

if __name__ == '__main__':
    out = sys.argv[1] if len(sys.argv) > 1 else f'cdna_kernels/{NAME}.s'
    open(out, 'w').write(build())
```

```python
import sys, os, struct, math
sys.path.insert(0, os.path.dirname(os.path.abspath(__file__)))
from asmlib import Asm, Alloc, v, s

NAME = 'sequential_preLN__sliding_local_dilated__dense_activation_squared_relu__prompt'
def env(n, d): return int(os.environ.get(n, d))
STAMPS = env('STAMPS', 0)
ROT    = env('ROT', 3)
FORCE_SLOW = env('SLOW', 0)
D2, D3, D4 = env('D2', 8), env('D3', 16), env('D4', 8)
LA     = env('LA', 5)
PRIO   = env('PRIO', 3)
PRIO2  = env('PRIO2', 3)
SPF    = env('SPF', 0)
NB8    = env('NB8', 0)
N1A, N1B = env('N1A', 4), env('N1B', 1)
NSTG   = env('NSTG', 7)
HA     = env('HA', 6)
TH, T1, TW = env('TH', 4), env('T1', 4), env('TW', 0)
RO, R1, R2 = env('RO', 1), env('R1', 1), env('R2', 1)
X3E    = env('X3E', 0)
OB     = os.environ.get('OB', '').replace('_', ' ')
PFH    = env('PFH', 0)
PF     = os.environ.get('PF', ',,,,,,').split(',')

WS_OF  = 0
WS_HF  = 4 << 20
WS_DF  = 8 << 20
WS_ST  = 16 << 20
WS_WO4 = 20 << 20
WS_W24 = WS_WO4 + (256 << 10)
WS_FL  = 28 << 20
FL_HELLO, FL_WO, FL_W2 = WS_FL + 1024, WS_FL + 4096, WS_FL + 8192
FL_1, FL_2, FL_3 = WS_FL + 16384, WS_FL + 32768, WS_FL + 49152
WS_TS = 29 << 20
WS_SIZE = 32 << 20

WROW  = 1056
XIMG  = 32 * WROW
SLOT  = XIMG + 10240
BLK, BLK1 = 8 * WROW + 2048, 12288
L_DUMP = 2 * SLOT
L_WO  = [SLOT + BLK * b for b in range(4)] + [135808, 146304] + [BLK * b for b in range(4)]
L_W1  = [BLK1 * b for b in range(7)] + [115456 + BLK1 * b for b in range(3)]
L_W2  = [BLK * b for b in (9, 10, 0, 1, 2, 3, 4, 5, 6, 7, 8, 11, 12, 13, 14)]
L_W2 += L_W2[:9]
L_X2, L_X4 = 9 * BLK, 7 * BLK
L_STAGE = 156800
L_CSP = L_STAGE
L_STAT = 160896
L_TAG = L_STAT + 640
L_B2  = L_TAG + 64
L_CS  = L_TAG + 256
DROW = 488
LDS_SIZE = 163840
SPIN = 1 << 16

S_PX, S_PWQKV, S_PWO, S_PBX, S_PW1, S_PB1, S_PW2, S_PB2 = 16, 18, 20, 22, 24, 26, 28, 30
S_POUT, S_PDBG, S_PWS = 32, 34, 36
SRD_WS, SRD_A, SRD_B, SRD_C = 4, 8, 12, 48
S_W, S_XCD, S_R, S_C, S_J, S_C64, S_J8, S_TAG, S_SAME, S_CNT = 38, 39, 40, 41, 42, 43, 44, 45, 46, 47
S_FREE = 52
S_LIM = 96
VLIM = 167 if STAMPS else 168
VST = 167
MFMA = 'v_mfma_f32_16x16x32_bf16'
MFMA32 = 'v_mfma_f32_32x32x16_bf16'

class St:
    n = 0
def stamp(a, real=False, sidx=None, cnt=1):
    if not STAMPS: return
    a(f'{"s_memrealtime" if real else "s_memtime"} s[98:99]')
    a('s_waitcnt lgkmcnt(0)')
    if sidx is None:
        a(f'v_writelane_b32 v{VST}, s98, {St.n}')
    else:
        a(f's_add_u32 m0, {s(sidx)}, {St.n}')
        a(f'v_writelane_b32 v{VST}, s98, m0')
    St.n += cnt
    assert St.n <= 64
stamp_ = stamp
def stamps_flush(a):
    if not STAMPS: return
    a('s_waitcnt vmcnt(0)')
    stamp(a); stamp(a, True)
    a(f'v_writelane_b32 v{VST}, {St.n}, 63')
    a(f's_mul_i32 s3, s2, 12')
    a(f's_add_u32 s3, s3, {s(S_W)}')
    a(f's_lshl_b32 s3, s3, 8')
    a(f's_add_u32 s3, s3, {WS_TS}')
    a('s_mov_b64 exec, -1')
    a('v_lshlrev_b32 v1, 2, v0')
    a(f'buffer_store_dword v{VST}, v1, {s(SRD_WS,4)}, s3 offen')

DG = os.environ.get('DG', '')
def mark(a, n):
    if DG == n:
        a('s_memrealtime s[98:99]')
        a('s_waitcnt lgkmcnt(0)')
def srd(a, dst, ptr, size):
    a(f's_mov_b32 {s(dst)}, {s(ptr)}')
    a(f's_and_b32 {s(dst+1)}, {s(ptr+1)}, 0xffff')
    a(f's_mov_b32 {s(dst+2)}, {size}')
    a(f's_mov_b32 {s(dst+3)}, 0x00020000')

def bf16r(a, x):
    a(f'v_cvt_pk_bf16_f32 {v(x)}, {v(x)}, {v(x)}')
    a(f'v_lshlrev_b32 {v(x)}, 16, {v(x)}')

def xg_reduce(a, xs, tmps, op):
    for sw in ('v_permlane32_swap_b32', 'v_permlane16_swap_b32'):
        for x, t in zip(xs, tmps): a(f'v_mov_b32 {v(t)}, {v(x)}')
        for x, t in zip(xs, tmps): a(f'{sw} {v(x)}, {v(t)}')
        for x, t in zip(xs, tmps): a(f'{op} {v(x)}, {v(x)}, {v(t)}')

def ln_stats(vsum, vsq, t0, raw=False):
    L = []
    a = L.append
    inv = 0x3ACCCCCD
    a(f'v_mul_f32 {v(vsum)}, {hex(inv)}, {v(vsum)}')
    a(f'v_mul_f32 {v(vsq)}, {hex(inv)}, {v(vsq)}')
    a(f'v_fma_f32 {v(vsq)}, -{v(vsum)}, {v(vsum)}, {v(vsq)}')
    a(f'v_max_f32 {v(vsq)}, 0, {v(vsq)}')
    bf16r(a, vsq)
    a(f'v_add_f32 {v(vsq)}, 0x3727C5AC, {v(vsq)}')
    bf16r(a, vsq)
    a(f'v_sqrt_f32 {v(vsq)}, {v(vsq)}')
    bf16r(a, vsum)
    bf16r(a, vsq)
    a(f'v_rcp_f32 {v(t0)}, {v(vsq)}')
    if raw: return L
    a(f'v_mul_f32 {v(vsq)}, {v(vsum)}, {v(t0)}')
    a(f'v_mov_b32 {v(vsum)}, {v(t0)}')
    return L

DEFER = []
def dual(a, lines, bit=0):
    if env('SD', 7) & bit:
        for x in lines: a(x.replace('@', ' sc1'))
        return
    ls, lj = a.newlabel('slow'), a.newlabel('join')
    a(f's_cmp_eq_u32 {s(S_SAME)}, 0')
    a(f's_cbranch_scc1 {ls}')
    for x in lines: a(x.replace('@', os.environ.get('SB', '').replace('_', ' ')))
    a.label(lj)
    DEFER.append((ls, lj, [x.replace('@', ' sc1') for x in lines]))

def publish(a, vT, sFlag):
    a(f'v_mov_b32 {v(vT)}, {s(S_TAG)}')
    a(f's_mov_b64 exec, 1')
    a(f's_waitcnt vmcnt(0)')
    dual(a, [f'buffer_store_dword {v(vT)}, off, {s(SRD_WS,4)}, {s(sFlag)}@'])
    a(f's_mov_b64 exec, -1')

def poll0(a, vF, vOff, sOff):
    if env('PP', 1): a(f'buffer_load_dword {v(vF)}, {v(vOff)}, {s(SRD_WS,4)}, {s(sOff)} offen sc1')
def poll(a, vF, vOff, sOff, vG=None):
    lp, ld = a.newlabel('poll'), a.newlabel('polld')
    if vG is not None and env('PP', 1):
        ldf = lambda r: a(f'buffer_load_dword {v(r)}, {v(vOff)}, {s(SRD_WS,4)}, {s(sOff)} offen sc1')
        a(f's_mov_b32 {s(S_CNT)}, {SPIN}')
        a.label(lp)
        for x, y in ((vG, vF), (vF, vG)):
            ldf(x)
            a(f's_waitcnt vmcnt(1)')
            a(f'v_cmp_ne_u32 vcc, {s(S_TAG)}, {v(y)}')
            a(f's_cmp_eq_u64 vcc, 0')
            a(f's_cbranch_scc1 {ld}')
        a(f's_sub_u32 {s(S_CNT)}, {s(S_CNT)}, 1')
        a(f's_cbranch_scc0 {lp}')
        a.label(ld)
        return
    a(f's_mov_b32 {s(S_CNT)}, {SPIN}')
    a.label(lp)
    a(f'buffer_load_dword {v(vF)}, {v(vOff)}, {s(SRD_WS,4)}, {s(sOff)} offen sc1')
    a(f's_sub_u32 {s(S_CNT)}, {s(S_CNT)}, 1')
    a(f's_cbranch_scc1 {ld}')
    a(f's_waitcnt vmcnt(0)')
    a(f'v_cmp_ne_u32 vcc, {s(S_TAG)}, {v(vF)}')
    a(f's_cmp_lg_u64 vcc, 0')
    a(f's_cbranch_scc1 {lp}')
    a.label(ld)

TABS = {
 1: [list(range(10))] * 4,
 2: [list(range(10)), [5,6,7,8,9,0,1,2,3,4]] * 2,
 3: [[0,1,4,2,3,5,8,6,7,9], [0,2,1,3,6,4,5,7,9,8], [1,0,2,5,3,4,6,9,7,8], [1,3,0,2,4,7,5,6,8,9]],
 4: [[0,1,2,3,4,5,6,7,8,9], [1,2,3,0,5,6,7,4,9,8], [2,3,0,1,6,7,4,5,8,9], [3,0,1,2,7,4,5,6,9,8]],
 5: [[0,1,2,5,3,4,6,9,7,8], [0,2,1,3,6,4,5,7,8,9], [0,3,1,2,5,7,4,6,8,9], [0,1,4,2,3,5,8,6,7,9]],
}
def ord_init(a, sOrd, sT, inv=False):
    tab = [sum((i << (4 * c)) if inv else (c << (4 * i)) for i, c in enumerate(r)) for r in TABS[ROT]]
    a(f's_add_u32 {s(sT)}, {s(S_C64)}, {s(S_J8)}')
    a(f's_and_b32 {s(sT)}, {s(sT)}, 3')
    a(f's_mov_b32 {s(sOrd)}, {hex(tab[0] & 0xffffffff)}')
    a(f's_mov_b32 {s(sOrd+1)}, {hex(tab[0] >> 32)}')
    for q in range(1, 4):
        a(f's_cmp_eq_u32 {s(sT)}, {q}')
        a(f's_cselect_b32 {s(sOrd)}, {hex(tab[q] & 0xffffffff)}, {s(sOrd)}')
        a(f's_cselect_b32 {s(sOrd+1)}, {hex(tab[q] >> 32)}, {s(sOrd+1)}')
def ord_next(sOrd, dst, sT2):
    return [f's_and_b32 {s(dst)}, {s(sOrd)}, 15',
            f's_add_u32 {s(dst)}, {s(dst)}, {s(S_XCD)}',
            f's_sub_u32 {s(sT2)}, {s(dst)}, 10',
            f's_cselect_b32 {s(dst)}, {s(dst)}, {s(sT2)}',
            f's_lshr_b64 {s(sOrd,2)}, {s(sOrd,2)}, 4']

def nonce_load(a):
    a(f's_mov_b32 {s(S_TAG)}, {WS_FL}')
    a(f's_load_dword {s(S_TAG)}, {s(S_PWS,2)}, {s(S_TAG)}')
def nonce_to_tag(a):
    a(f's_and_b32 {s(S_TAG)}, {s(S_TAG)}, 0xfffffff8')
    a(f's_add_u32 {s(S_TAG)}, {s(S_TAG)}, 8')

def tr_patterns(a, vF, vH, t):
    a(f'v_bfe_u32 {v(t)}, v0, 2, 3')
    a(f'v_mul_u32_u24 {v(vF)}, {WROW}, {v(t)}')
    a(f'v_lshrrev_b32 {v(t)}, 5, v0')
    a(f'v_lshl_add_u32 {v(vF)}, {v(t)}, 7, {v(vF)}')
    if vH is not None:
        a(f'v_lshlrev_b32 {v(vH)}, 8, {v(t)}')
        a(f'v_bfe_u32 {v(t)}, v0, 4, 1')
        a(f'v_mul_u32_u24 {v(t)}, {WROW}, {v(t)}')
        a(f'v_add_u32 {v(vH)}, {v(t)}, {v(vH)}')
        a(f'v_bfe_u32 {v(t)}, v0, 2, 2')
        a(f'v_lshl_add_u32 {v(vH)}, {v(t)}, 6, {v(vH)}')
    a(f'v_and_b32 {v(t)}, 3, v0')
    a(f'v_lshl_add_u32 {v(vF)}, {v(t)}, 3, {v(vF)}')
    if vH is not None: a(f'v_lshl_add_u32 {v(vH)}, {v(t)}, 3, {v(vH)}')

class Cnt:
    def __init__(self, cap): self.q, self.cap, self.alias = [], cap, {}
    def add(self, tag, n=1): self.q += [tag] * n
    def after(self, pred):
        if not callable(pred): pred = self.alias.get(pred, pred)
        f = pred if callable(pred) else (lambda t: t == pred)
        idx = [i for i, t in enumerate(self.q) if f(t)]
        return min(len(self.q) - 1 - idx[-1], self.cap)

def w2_off(a, k, sQ6, sA, sB, sFb):
    if R2:
        a(f's_add_u32 {s(sA)}, {s(sQ6)}, {k}')
        a(f's_sub_u32 {s(sB)}, {s(sA)}, 24')
        a(f's_cselect_b32 {s(sA)}, {s(sA)}, {s(sB)}')
        a(f's_lshl_b32 {s(sB)}, {s(sA)}, 10')
        a(f's_mul_i32 {s(sA)}, {s(sA)}, {32*1280}')
        a(f's_add_u32 {s(sB)}, {s(sB)}, {s(sFb)}')
    else:
        a(f's_mov_b32 {s(sA)}, {32*k*1280}')
        a(f's_add_u32 {s(sB)}, {s(sFb)}, {k*1024}')
def row_pat(a, P, c1, c2, c3, rs, scol, t0, t1, t2, t3, dma=True):
    a(f'v_mul_u32_u24 {v(P[0])}, {c1*rs}, {v(t1)}')
    a(f'v_mul_u32_u24 {v(P[1])}, {c2*rs}, {v(t2)}')
    a(f'v_add3_u32 {v(P[0])}, {v(P[0])}, {v(P[1])}, {v(t0)}')
    a(f'v_mul_u32_u24 {v(P[1])}, {c3*rs}, {v(t3)}')
    a(f'v_add3_u32 {v(P[0])}, {v(P[0])}, {v(P[1])}, {s(scol)}')
    if dma: a(f'v_add_u32 {v(P[1])}, {rs - WROW}, {v(P[0])}')
def row_bits(a, sL, sT, sT2, t0, t1, t2, t3):
    a(f's_lshr_b32 {s(sT)}, {s(S_J8)}, 2')
    a(f's_add_u32 {s(sT)}, {s(sT)}, {s(S_J8)}')
    a(f's_lshl_b32 {s(sT)}, {s(sT)}, 7')
    a(f'v_and_b32 {v(t0)}, 7, v0')
    a(f'v_lshlrev_b32 {v(t0)}, 4, {v(t0)}')
    a(f'v_lshrrev_b32 {v(t1)}, 5, v0')
    a(f'v_bfe_u32 {v(t2)}, v0, 4, 1')
    a(f'v_bfe_u32 {v(t3)}, v0, 3, 1')
    a(f's_mul_i32 {s(sT2)}, {s(sL)}, 2560')
    a(f's_add_u32 {s(sT2)}, {s(sT2)}, {s(sT)}')

class Base:
    def __init__(self, a, regs, cur): self.a, self.regs, self.cur = a, regs, cur
    def off(self, addr, span):
        if not (self.cur <= addr and addr + span - self.cur <= 65536):
            for r in self.regs: self.a(f'v_add_u32 {v(r)}, {hex((addr - self.cur) & 0xffffffff)}, {v(r)}')
            self.cur = addr
        return addr - self.cur

import re
def scc_cuts(L):
    rd = lambda x: re.match(r's_(cselect|cbranch_scc|addc|subb|cmov)', x)
    wr = lambda x: x.startswith('s_') and not re.match(r's_(mov|mul_i32|cselect|cmov|waitcnt|nop|getreg|setprio)', x)
    ok = [True] * (len(L) + 1)
    live = False
    for i in range(len(L) - 1, -1, -1):
        if rd(L[i]): live = True
        elif wr(L[i]): live = False
        ok[i] = not live
    return ok

def claim(a, m, q, sL, sA, sB, vD, vL16):
    off = 0
    if m == 'D':
        a(f's_lshl2_add_u32 {s(sA)}, {s(S_C)}, {s(sL)}')
        a(f's_lshl_b32 {s(sA)}, {s(sA)}, 5')
        a(f's_add_u32 {s(sA)}, {s(sA)}, {s(S_J)}')
        a(f's_mul_i32 {s(sA)}, {s(sA)}, 3072')
        a(f's_add_u32 {s(sA)}, {s(sA)}, {WS_DF + 49152 * (q // 3)}')
        off = 1024 * (q % 3); assert q < 6
    elif m == 'S':
        a(f's_lshl2_add_u32 {s(sA)}, {s(S_C64)}, {s(sL)}')
        a(f's_lshl3_add_u32 {s(sA)}, {s(sA)}, {s(S_J8)}')
        a(f's_lshl_b32 {s(sA)}, {s(sA)}, 7')
        a(f's_add_u32 {s(sA)}, {s(sA)}, {WS_ST}')
        a(f's_mov_b64 exec, 0xff'); assert q < 1
    else:
        assert q < 3
        a(f's_lshl2_add_u32 {s(sA)}, {s(S_C64)}, {s(sL)}')
        a(f's_mul_i32 {s(sA)}, {s(sA)}, 40')
        a(f's_and_b32 {s(sB)}, {s(S_J8)}, 4')
        if q < 2:
            a(f's_lshl2_add_u32 {s(sA)}, {s(S_J8)}, {s(sA)}')
            a(f's_add_u32 {s(sA)}, {s(sA)}, {s(sB)}')
            off = 1024 * q
        else:
            a(f's_lshl2_add_u32 {s(sA)}, {s(sB)}, {s(sA)}')
            a(f's_add_u32 {s(sA)}, {s(sA)}, {s(S_J8)}')
            a(f's_add_u32 {s(sA)}, {s(sA)}, 16')
            a(f's_mov_b32 exec_hi, 0')
        a(f's_lshl_b32 {s(sA)}, {s(sA)}, 9')
        if m == 'H': a(f's_add_u32 {s(sA)}, {s(sA)}, {WS_HF}')
    if env('CLD', 1): a(f'buffer_load_dwordx4 {v(vD,4)}, {v(vL16)}, {s(SRD_WS,4)}, {s(sA)} offen offset:{off} sc1')
    else: a(f'buffer_store_dwordx4 {v(vD,4)}, {v(vL16)}, {s(SRD_WS,4)}, {s(sA)} offen offset:{off} sc1')
    a('s_mov_b64 exec, -1')

SS = env('SS', 64)
def region(m, sL, sA, sB, nw):
    L = []
    a = L.append
    if m in 'oab':
        ptr, nb = {'o': (S_PWO, 640 * 1280), 'a': (S_PW1, 640 * 3072), 'b': (S_PW2, 1536 * 1280)}[m]
        P = -(-nb // (128 * 256 * nw)) * 128
        a(f's_mul_i32 {s(sA)}, s2, {nw}')
        a(f's_add_u32 {s(sA)}, {s(sA)}, {s(sL)}')
        a(f's_mul_i32 {s(sA)}, {s(sA)}, {P}')
        a(f's_min_u32 {s(sA)}, {s(sA)}, {nb - P}')
        return [(L, ptr, list(range(0, P, SS)))]
    if m == 'U':
        a(f's_mul_i32 {s(sA)}, {s(S_C64)}, {64*1280}')
        return [(L, S_POUT, [0])]
    if m == 'T':
        return [(r[0], r[1], [0]) for x in 'OHDS' for r in region(x, sL, sA, sB, nw)[:1]]
    if m == 'x':
        a(f's_lshl3_add_u32 {s(sA)}, {s(S_C64)}, {s(S_J8)}')
        a(f's_lshl3_add_u32 {s(sA)}, {s(sA)}, {s(sL)}')
        a(f's_mul_i32 {s(sA)}, {s(sA)}, 1280')
        return [(L, S_PX, list(range(0, 1280, SS)))]
    R = []
    for q, nb in {'D': ((0, 3072), (3, 3072)), 'S': ((0, 128),), 'O': ((0, 2048), (2, 512)), 'H': ((0, 2048), (2, 512))}[m]:
        L = []
        claim(L.append, m, q, sL, sA, sB, 0, 0)
        R.append(([x for x in L if 'exec' not in x and 'buffer' not in x], S_PWS, list(range(0, nb, SS))))
    return R
class Touch:
    def __init__(self, a, spec, sL, sA, sB, sJ, nw):
        self.a, self.sA, self.sJ = a, sA, sJ
        self.q = [r for m in spec for r in region(m, sL, sA, sB, nw)]
    def go(self, n):
        while n and self.q:
            L, ptr, offs = self.q[0]
            for x in L: self.a(x)
            while n and offs:
                self.a(f's_load_dword {s(self.sJ)}, {s(ptr,2)}, {s(self.sA)} offset:{offs.pop(0)}'); n -= 1
            if not offs: self.q.pop(0)

STG = list(range(env('ST0', 11), env('ST0', 11) + NSTG))
YB = [int(x) for x in os.environ.get('YB', '2,6,14,20').split(',')]
YI, _lo = [], 11
for _j in range(len(YB)):
    _hi = min(15 + (YB[_j-1] if _j else 0), 24)
    _kw = YB[_j+1] if _j + 1 < len(YB) else 23
    assert _kw < _hi
    YI.append((_lo, _hi, _kw)); _lo = _hi

def loader(a):
    stamp = stamp_
    sa = Alloc('s', S_FREE, S_LIM)
    va = Alloc('v', 1, VLIM)
    sL, sT, sT2, sI, sOffW, sOffX, sMW, sMX, sMH, sSlot, sXm = [sa() for _ in range(11)]
    sOrd = sa(2); sHm = sa(2)
    SRD_D = sa(4)
    vL16 = va()
    t0, t1, t2, t3 = va(), va(), va(), va()
    pA, pB, pC = [[va(), va()] for _ in range(3)]
    pD, pE, vWf, vWh, vB1, vCp = [va() for _ in range(6)]
    vDm = va(4, 2)
    selF, selH, accC = va(4, 2), va(4, 2), va(4, 2)
    u0 = va.n
    stg = [va(4, 2) for _ in range(30)]
    va.release(u0)
    vW = [va() for _ in range(8)]
    vX = [va() for _ in range(3)]
    vN, vF, vFo, vU, vTg = va(), va(), va(), va(), va()
    sPf = sa()
    WMASK = '0x3fffffff'
    if PRIO: a(f's_setprio {PRIO}')
    a(f's_sub_u32 {s(sL)}, {s(S_W)}, 8')
    a(f'v_lshrrev_b32 {v(t0)}, 3, v0')
    a(f'v_lshrrev_b32 {v(t1)}, 4, v0')
    a(f'v_and_b32 {v(t2)}, 7, v0')
    a(f'v_xor_b32 {v(t1)}, {v(t1)}, {v(t2)}')
    a(f's_lshr_b32 {s(sT)}, {s(sL)}, 1')
    a(f's_lshl_b32 {s(sT2)}, {s(S_C64)}, 6')
    a(f's_add_u32 {s(sT2)}, {s(sT2)}, {s(sT)}')
    a(f's_and_b32 {s(sT)}, {s(sL)}, 1')
    a(f's_lshl3_add_u32 {s(sMH)}, {s(sT)}, {s(sT2)}')
    a(f's_sub_u32 {s(sMH)}, {s(sMH)}, 16')
    a(f's_lshl_b32 {s(sT)}, {s(sT)}, 5')
    a(f's_add_u32 {s(sT2)}, {s(sT2)}, {s(sT)}')
    a(f'v_lshl_add_u32 {v(t2)}, {v(t0)}, 1, {s(sT2)}')
    a(f'v_lshl_add_u32 {v(t3)}, {v(t0)}, 1, {s(sMH)}')
    a(f'v_mul_u32_u24 {v(t2)}, 1280, {v(t2)}')
    a(f'v_max_i32 {v(t3)}, 0, {v(t3)}')
    a(f'v_lshl_add_u32 {v(vX[0])}, {v(t1)}, 4, {v(t2)}')
    a(f'v_mul_u32_u24 {v(t3)}, 1280, {v(t3)}')
    a(f'v_xor_b32 {v(vX[1])}, 64, {v(vX[0])}')
    a(f's_lshl_b32 {s(sT)}, {s(sL)}, 1')
    a(f'v_xor_b32 {v(t1)}, {s(sT)}, {v(t1)}')
    a(f'v_add_u32 {v(vX[1])}, {16*1280 - 1024}, {v(vX[1])}')
    a(f'v_lshl_add_u32 {v(vX[2])}, {v(t1)}, 4, {v(t3)}')
    a(f's_cmp_eq_u32 {s(sL)}, 0')
    a(f's_cselect_b32 {s(sXm)}, 0xffffff00, -1')
    a(f's_lshl_b32 {s(sMX)}, {s(sL)}, 11')
    a(f's_add_u32 {s(sMX)}, {s(sMX)}, {XIMG}')
    a(f's_lshl_b32 {s(sMH)}, {s(sL)}, 9')
    a(f's_add_u32 {s(sMH)}, {s(sMH)}, {XIMG + 8192}')
    ord_init(a, sOrd, sT)
    nxt = ord_next(sOrd, sOffX, sOffW) + [f's_mul_i32 {s(sOffW)}, {s(sOffX)}, {64*3840}', f's_lshl_b32 {s(sOffX)}, {s(sOffX)}, 7']
    for x in nxt: a(x)
    a(f'v_and_b32 {v(t0)}, 31, v0')
    a(f'v_lshrrev_b32 {v(t1)}, 5, v0')
    a(f'v_mul_u32_u24 {v(t2)}, 26, {v(t0)}')
    a(f'v_lshrrev_b32 {v(t2)}, 8, {v(t2)}')
    a(f'v_mul_u32_u24 {v(t2)}, 1120, {v(t2)}')
    a(f'v_lshl_add_u32 {v(t2)}, {v(t0)}, 4, {v(t2)}')
    a(f'v_mul_u32_u24 {v(t3)}, {32*3840}, {v(t1)}')
    a(f's_mul_i32 {s(sT)}, {s(S_J8)}, 160')
    a(f's_mul_i32 {s(sT2)}, {s(sL)}, {8*3840}')
    a(f's_add_u32 {s(sT)}, {s(sT)}, {s(sT2)}')
    a(f'v_add3_u32 {v(vW[0])}, {v(t2)}, {v(t3)}, {s(sT)}')
    for i in range(1, 8):
        a(f'v_add_u32 {v(vW[i])}, {i*3840 - (i&3)*WROW}, {v(vW[0])}')
    a(f's_lshr_b32 {s(sMW)}, {s(sL)}, 1')
    a(f's_lshl_b32 {s(sMW)}, {s(sMW)}, 2')
    a(f's_and_b32 {s(sT2)}, {s(sL)}, 1')
    a(f's_add_u32 {s(sMW)}, {s(sMW)}, {s(sT2)}')
    a(f's_mul_i32 {s(sMW)}, {s(sMW)}, {4*WROW}')
    a(f's_mov_b32 {s(sSlot)}, 0')
    a(f's_waitcnt lgkmcnt(0)')
    srd(a, SRD_B, S_PX, 2048 * 1280)
    srd(a, SRD_A, S_PWQKV, 640 * 3840)

    def chunk_dma():
        P = []
        P.append([f's_add_u32 m0, {s(sSlot)}, {s(sMX)}', 's_mov_b64 exec, -1',
                  f'buffer_load_dwordx4 {v(vX[0])}, {s(SRD_B,4)}, {s(sOffX)} offen lds',
                  f'buffer_load_dwordx4 {v(vX[1])}, {s(SRD_B,4)}, {s(sOffX)} offen offset:1024 lds',
                  f's_add_u32 m0, {s(sSlot)}, {s(sMH)}', f's_mov_b32 exec_lo, {s(sXm)}', 's_mov_b32 exec_hi, 0',
                  f'buffer_load_dwordx4 {v(vX[2])}, {s(SRD_B,4)}, {s(sOffX)} offen lds'])
        P.append([f's_add_u32 m0, {s(sSlot)}, {s(sMW)}', f's_mov_b32 exec_lo, {WMASK}', f's_mov_b32 exec_hi, {WMASK}'])
        for i in range(8):
            p = []
            if i == 4: p += [f's_add_u32 m0, m0, {8*WROW}', 's_nop 0']
            p.append(f'buffer_load_dwordx4 {v(vW[i])}, {s(SRD_A,4)}, {s(sOffW)} offen offset:{(i&3)*WROW} lds')
            P.append(p)
        P.append(['s_mov_b64 exec, -1'] + nxt + [f's_add_u32 {s(sSlot)}, {s(sSlot)}, {SLOT}',
                  f's_cmp_eq_u32 {s(sSlot)}, {3*SLOT}',
                  f's_cselect_b32 {s(sSlot)}, 0, {s(sSlot)}'])
        return P
    NCH = 11
    Q0, Q1, Q2 = env('Q0', 5), env('Q1', 7), env('Q2', 9)
    qn = lambda q: q + 2 if q else 0
    fillq = []
    def emit(lo, hi, per=0):
        P = chunk_dma()
        wm = P[1][1:]
        for q in range(lo, hi):
            if q == 0:
                for x in P[0]: a(x)
            else:
                if q == 1 or q == lo:
                    for x in P[1]: a(x)
                    if q > 5: a(f's_add_u32 m0, m0, {8*WROW}'); a('s_nop 0')
                for x in P[q + 1]: a(x)
            if per and fillq:
                a('s_mov_b64 exec, -1')
                n = per
                ok = scc_cuts(fillq)
                while n < len(fillq) and not ok[n]: n += 1
                for x in fillq[:n]: a(x)
                del fillq[:n]
                if 0 < q < hi - 1:
                    for x in wm: a(x)
        if hi == 9 and lo < 9:
            for x in P[-1]: a(x)
        else: a('s_mov_b64 exec, -1')
    stamp(a)
    emit(0, 9)
    stamp(a)
    nonce_load(a)
    emit(0, Q0)
    stamp(a)
    real_a, unit = a, []
    class LB_:
        def __call__(self, x): unit.append(x)
        def label(self, l): unit.append(l + ':')
        def newlabel(self, x): return real_a.newlabel(x)
    a = LB_()
    sBase, sG, sJs, sD, sFlag = [sa() for _ in range(5)]
    l_w2, l_go, l_no = a.newlabel('cw2'), a.newlabel('cgo'), a.newlabel('cno')
    srd(a, SRD_C, S_PWO, 640 * 1280)
    srd(a, SRD_D, S_PW2, 1536 * 1280)
    a(f's_cmp_ge_u32 s2, 136')
    a(f's_cbranch_scc1 {l_no}')
    a(f's_and_b32 {s(sD)}, s2, 1')
    a(f's_lshl2_add_u32 {s(sFlag)}, {s(sD)}, {s(sL)}')
    a(f's_mul_i32 {s(sD)}, {s(sD)}, 640')
    a(f'v_and_b32 {v(t0)}, 7, v0')
    a(f'v_lshlrev_b32 {v(t0)}, 4, {v(t0)}')
    a(f'v_add3_u32 {v(t0)}, {v(t0)}, {s(sD)}, 64')
    a(f'v_lshrrev_b32 {v(t1)}, 5, v0')
    a(f'v_bfe_u32 {v(t2)}, v0, 3, 2')
    a(f's_lshl_b32 {s(sT)}, {s(sL)}, 10')
    a(f's_add_u32 m0, {s(sT)}, {L_STAGE - 448}')
    a(f's_cmp_ge_u32 s2, 40')
    a(f's_cbranch_scc1 {l_w2}')
    a(f's_lshr_b32 {s(sT)}, s2, 1')
    a(f's_cmp_ge_u32 {s(sT)}, 10')
    a(f's_cselect_b32 {s(sT2)}, 10, 0')
    a(f's_cselect_b32 {s(sBase)}, 320, 0')
    a(f's_sub_u32 {s(sT2)}, {s(sT)}, {s(sT2)}')
    a(f's_mul_i32 {s(sG)}, {s(sT2)}, 40')
    a(f's_mul_i32 {s(sJs)}, {s(sT2)}, 160')
    a(f's_sub_u32 {s(sJs)}, {s(sJs)}, {8*160-16}')
    a(f's_cmp_lt_u32 {s(sT2)}, 8')
    a(f's_cselect_b32 {s(sG)}, {s(sG)}, {s(sJs)}')
    a(f's_cselect_b32 {s(sJs)}, 4, 40')
    a(f's_add_u32 {s(sBase)}, {s(sBase)}, {s(sG)}')
    a(f's_mul_i32 {s(sJs)}, {s(sJs)}, {s(sL)}')
    a(f's_add_u32 {s(sBase)}, {s(sBase)}, {s(sJs)}')
    a(f's_mul_i32 {s(sBase)}, {s(sBase)}, 1280')
    a(f'v_mad_u32_u24 {v(t1)}, {v(t1)}, 20, {v(t2)}')
    a(f'v_mul_u32_u24 {v(t1)}, 1280, {v(t1)}')
    a(f'v_add_u32 {v(t0)}, {v(t0)}, {v(t1)}')
    a(f'buffer_load_dwordx4 {v(t0)}, {s(SRD_C,4)}, {s(sBase)} offen offset:448 lds')
    a(f's_mul_i32 {s(sD)}, {s(sFlag)}, 20')
    a(f's_add_u32 {s(sD)}, {s(sD)}, {WS_WO4 >> 10}')
    a(f's_lshl_b32 {s(sFlag)}, {s(sFlag)}, 7')
    a(f's_add_u32 {s(sFlag)}, {s(sFlag)}, {FL_WO}')
    a(f's_branch {l_go}')
    a.label(l_w2)
    a(f's_sub_u32 {s(sT)}, s2, 40')
    a(f's_lshr_b32 {s(sT)}, {s(sT)}, 1')
    a(f's_and_b32 {s(sG)}, {s(sL)}, 2')
    a(f's_add_u32 {s(sG)}, {s(sG)}, {s(sL)}')
    a(f's_lshl3_add_u32 {s(sBase)}, {s(sT)}, {s(sG)}')
    a(f's_mul_i32 {s(sBase)}, {s(sBase)}, {4*1280}')
    a(f'v_lshl_add_u32 {v(t1)}, {v(t1)}, 3, {v(t2)}')
    a(f'v_mul_u32_u24 {v(t1)}, 1280, {v(t1)}')
    a(f'v_add_u32 {v(t0)}, {v(t0)}, {v(t1)}')
    a(f'buffer_load_dwordx4 {v(t0)}, {s(SRD_D,4)}, {s(sBase)} offen offset:448 lds')
    a(f's_mul_i32 {s(sD)}, {s(sFlag)}, 48')
    a(f's_add_u32 {s(sD)}, {s(sD)}, {WS_W24 >> 10}')
    a(f's_lshl_b32 {s(sFlag)}, {s(sFlag)}, 8')
    a(f's_add_u32 {s(sFlag)}, {s(sFlag)}, {FL_W2}')
    a.label(l_go)
    a(f's_lshl2_add_u32 {s(sFlag)}, {s(sT)}, {s(sFlag)}')
    a(f's_add_u32 {s(sD)}, {s(sD)}, {s(sT)}')
    a(f's_lshl_b32 {s(sD)}, {s(sD)}, 10')
    a.label(l_no)
    a = real_a
    fS = [[va(4, 4) for st in range(2)] for tl in range(2)]
    accG = [va(4, 4) for _ in range(2)]; accS = [va(4, 4) for _ in range(2)]
    vOne = va(4, 4)
    vS = [va(), va()]; vSh = [va(), va()]
    F = va(8, 4)
    sFo, sRd = sa(), sa()
    p1hi = va.n
    a(f'v_and_b32 {v(t0)}, 15, v0')
    a(f'v_lshrrev_b32 {v(t1)}, 4, v0')
    a(f'v_lshrrev_b32 {v(t2)}, 1, {v(t0)}')
    a(f'v_xor_b32 {v(t2)}, {v(t2)}, {v(t1)}')
    a(f'v_lshlrev_b32 {v(t2)}, 4, {v(t2)}')
    a(f'v_lshl_add_u32 {v(t2)}, {v(t0)}, 7, {v(t2)}')
    a(f'v_add_u32 {v(vS[0])}, {s(sMX)}, {v(t2)}')
    a(f'v_add_u32 {v(vSh[0])}, {XIMG + 8192}, {v(t2)}')
    a(f'v_xor_b32 {v(vS[1])}, 64, {v(vS[0])}')
    a(f'v_xor_b32 {v(vSh[1])}, 64, {v(vSh[0])}')
    for r in range(4): a(f'v_mov_b32 {v(vOne+r)}, 0x3f803f80')
    a(f's_mov_b32 {s(sRd)}, 0')
    def stat_reads():
        for st in range(2): a(f'ds_read_b128 {v(fS[0][st],4)}, {v(vS[st])}')
        for st in range(2): a(f'ds_read_b128 {v(fS[1][st],4)}, {v(vSh[st])}')
    def stat_mfma(first=False, last=False):
        if not last:
            a(f's_add_u32 {s(sRd)}, {s(sRd)}, {SLOT}')
            a(f's_cmp_eq_u32 {s(sRd)}, {3*SLOT}')
            a(f's_cselect_b32 {s(sRd)}, 0, {s(sRd)}')
            a(f's_movk_i32 {s(sI)}, {SLOT//16}'); a(f's_cmovk_i32 {s(sI)}, {(-2*SLOT//16) & 0xffff}'); a(f's_mul_i32 {s(sI)}, {s(sI)}, 16')
            for r in vS + vSh: a(f'v_add_u32 {v(r)}, {s(sI)}, {v(r)}')
        a(f's_waitcnt lgkmcnt(0)')
        for st in range(2):
            for tl in range(2):
                z = first and st == 0
                a(f'{MFMA} {v(accG[tl],4)}, {v(fS[tl][st],4)}, {v(fS[tl][st],4)}, {"0" if z else v(accG[tl],4)}')
                a(f'{MFMA} {v(accS[tl],4)}, {v(vOne,4)}, {v(fS[tl][st],4)}, {"0" if z else v(accS[tl],4)}')
    def put_unit():
        for x in unit:
            if x.endswith(':'): a.label(x[:-1])
            else: a(x)
    UE = env('UE', 1)
    if UE:
        lu = a.newlabel('ue')
        unit.insert(-1, f's_branch {lu}')
        put_unit()
        a(f's_waitcnt vmcnt({qn(Q0)})')
        a.label(lu)
    a(f's_waitcnt vmcnt({qn(Q0) + UE}) lgkmcnt(0)')
    stamp(a)
    a(f's_barrier')
    stat_reads()
    emit(Q0, 9)
    if not UE: put_unit()
    late = []
    real_a, a = a, late.append
    srd(a, SRD_WS, S_PWS, WS_SIZE)
    a(f'v_lshlrev_b32 {v(vL16)}, 4, v0')
    a(f'v_lshrrev_b32 {v(t0)}, 4, v0')
    a(f'v_lshlrev_b32 {v(t0)}, 10, {v(t0)}')
    a(f'v_bfe_u32 {v(t1)}, v0, 2, 2')
    a(f'v_lshl_add_u32 {v(t0)}, {v(t1)}, 7, {v(t0)}')
    a(f'v_and_b32 {v(t1)}, 3, v0')
    a(f'v_lshl_add_u32 {v(t0)}, {v(t1)}, 3, {v(t0)}')
    a(f's_lshl_b32 {s(sT)}, {s(sL)}, 5')
    a(f's_add_u32 {s(sT)}, {s(sT)}, {L_STAGE}')
    a(f'v_add_u32 {v(vU)}, {s(sT)}, {v(t0)}')
    a(f'v_mov_b32 {v(vTg)}, {L_TAG}')
    nonce_to_tag(a)
    a(f'v_mov_b32 {v(vN)}, {s(S_TAG)}')
    SRD_E = S_PX
    srd(a, SRD_E, S_PW1, 640 * 3072)
    nearly = len(late)
    a(f's_lshl_b32 {s(sFo)}, {s(S_J8)}, 8')
    a(f's_add_u32 {s(sFo)}, {s(sFo)}, {FL_W2}')
    a(f's_mov_b32 {s(sT2)}, 47')
    a(f's_lshl_b32 {s(sT)}, {s(S_J8)}, 7')
    a(f's_add_u32 {s(sT)}, {s(sT)}, {FL_WO}')
    a(f's_cmp_eq_u32 {s(sL)}, 1')
    a(f's_cselect_b32 {s(sFo)}, {s(sT)}, {s(sFo)}')
    a(f's_cselect_b32 {s(sT2)}, 19, {s(sT2)}')
    a(f's_lshl_b32 {s(sT)}, {s(S_C)}, 6')
    a(f's_add_u32 {s(sT)}, {s(sT)}, {FL_HELLO}')
    a(f's_cmp_eq_u32 {s(sL)}, 0')
    a(f's_cselect_b32 {s(sFo)}, {s(sT)}, {s(sFo)}')
    a(f's_cselect_b32 {s(sT2)}, 15, {s(sT2)}')
    a(f'v_min_u32 {v(vFo)}, {s(sT2)}, v0')
    a(f'v_lshlrev_b32 {v(vFo)}, 2, {v(vFo)}')
    sM2, sMf, sFo4, sF24, sQ2, sQ6, sR1 = sBase, sG, sJs, sa(), sa(), sa(), sa()
    row_bits(a, sL, sT, sT2, t0, t1, t2, t3)
    row_pat(a, pA, 320, 20, 8, 1280, sT2, t0, t1, t2, t3)
    row_pat(a, pC, 768, 8, 16, 1280, sT2, t0, t1, t2, t3)
    a(f's_lshr_b32 {s(sT)}, {s(sL)}, 1')
    a(f's_sub_u32 {s(sHm)}, {s(sT)}, 1')
    a(f's_not_b32 {s(sHm+1)}, {s(sHm)}')
    a(f's_mul_i32 {s(sT)}, {s(sT)}, {36*1280}')
    a(f's_add_u32 {s(sT2)}, {s(sT2)}, {s(sT)}')
    a(f's_add_u32 {s(sT2)}, {s(sT2)}, {16*1280}')
    row_pat(a, pB, 320, 20, 80, 1280, sT2, t0, t1, t2, t3)
    a(f's_mul_i32 {s(sT)}, {s(S_J)}, 192')
    a(f's_mul_i32 {s(sT2)}, {s(sL)}, {16*3072}')
    a(f's_add_u32 {s(sT)}, {s(sT)}, {s(sT2)}')
    a(f's_bitcmp1_b32 {s(S_J)}, 0')
    a(f's_cselect_b32 {s(sT2)}, 64, 0')
    a(f's_cselect_b32 {s(sM2)}, 0, 128')
    a(f's_cselect_b32 {s(sMf)}, 16, 0')
    a(f's_add_u32 {s(sT2)}, {s(sT2)}, {s(sT)}')
    a(f's_add_u32 {s(sT)}, {s(sM2)}, {s(sT)}')
    a(f'v_lshrrev_b32 {v(t1)}, 3, v0')
    a(f'v_mul_u32_u24 {v(t1)}, 3072, {v(t1)}')
    a(f'v_add3_u32 {v(pD)}, {v(t1)}, {v(t0)}, {s(sT2)}')
    a(f'v_lshrrev_b32 {v(t1)}, 2, v0')
    a(f'v_mul_u32_u24 {v(t1)}, 3072, {v(t1)}')
    a(f'v_and_b32 {v(t0)}, 0x30, {v(t0)}')
    a(f'v_add3_u32 {v(pE)}, {v(t1)}, {v(t0)}, {s(sT)}')
    a(f'v_lshlrev_b32 {v(t2)}, 6, {v(t2)}')
    a(f'v_xor_b32 {v(t2)}, {v(t2)}, {v(vL16)}')
    a(f's_lshl_b32 {s(sT)}, {s(sL)}, 11')
    a(f'v_add_u32 {v(vWf)}, {s(sT)}, {v(t2)}')
    a(f's_lshl_b32 {s(sT)}, {s(sL)}, 10')
    a(f'v_add_u32 {v(vWh)}, {s(sT)}, {v(vL16)}')
    a(f'v_add_u32 {v(t0)}, {s(sMf)}, v0')
    a(f'v_subrev_u32 {v(t1)}, 48, {v(t0)}')
    a(f'v_min_u32 {v(t0)}, {v(t0)}, {v(t1)}')
    a(f'v_lshlrev_b32 {v(vB1)}, 2, {v(t0)}')
    a(f'v_and_b32 {v(t0)}, 1, v0')
    a(f'v_lshlrev_b32 {v(t0)}, 4, {v(t0)}')
    a(f'v_lshlrev_b32 {v(t0)}, {v(t0)}, {v(vOne)}')
    a(f'v_bfe_u32 {v(t1)}, v0, 0, 1')
    a(f'v_add_u32 {v(t1)}, -1, {v(t1)}')
    a(f'v_lshlrev_b32 {v(t1)}, 16, {v(t1)}')
    a(f'v_bfi_b32 {v(t0)}, {v(t1)}, 0, {v(t0)}')
    a(f'v_bfe_u32 {v(t1)}, v0, 1, 3')
    for r in range(8):
        a(f'v_cmp_eq_u32 vcc, {r}, {v(t1)}')
        a(f'v_cndmask_b32 {v(selF + r if r < 4 else selH + r - 4)}, 0, {v(t0)}, vcc')
    a(f'v_and_b32 {v(t0)}, 15, v0')
    a(f'v_lshlrev_b32 {v(t0)}, 5, {v(t0)}')
    a(f'v_and_b32 {v(t1)}, 16, v0')
    a(f'v_and_b32 {v(t2)}, 32, v0')
    a(f'v_lshl_add_u32 {v(t1)}, {v(t2)}, 3, {v(t1)}')
    a(f's_mul_i32 {s(sT)}, {s(sL)}, 384')
    a(f's_add_u32 {s(sT)}, {s(sT)}, {L_CSP}')
    a(f'v_add3_u32 {v(vCp)}, {v(t0)}, {v(t1)}, {s(sT)}')
    a(f's_mul_i32 {s(sM2)}, {s(sL)}, {2*WROW}')
    a(f's_and_b32 {s(sT)}, {s(sL)}, 1')
    a(f's_lshl_b32 {s(sMf)}, {s(sT)}, 10')
    a(f's_lshl1_add_u32 {s(sT)}, {s(S_J8)}, {s(sT)}')
    a(f's_mul_i32 {s(sFo4)}, {s(sT)}, 10240')
    a(f's_add_u32 {s(sFo4)}, {s(sFo4)}, {WS_WO4}')
    a(f's_mul_i32 {s(sF24)}, {s(sT)}, 24576')
    a(f's_add_u32 {s(sF24)}, {s(sF24)}, {WS_W24}')
    a(f's_and_b32 {s(sT)}, {s(S_C64)}, 3')
    a(f's_lshl_b32 {s(sQ2)}, {s(sT)}, 1')
    a(f's_mul_i32 {s(sQ6)}, {s(sT)}, 6')
    a(f's_and_b32 {s(sT)}, {s(S_C)}, 1')
    a(f's_mul_i32 {s(sR1)}, {s(sT)}, {5*64*3072}')
    a = real_a
    fillq += late
    FP = env('FP', 7)
    emit(0, Q1, env('FP0', 3))
    while len(late) - len(fillq) < nearly or not scc_cuts(fillq)[0]: a(fillq.pop(0))
    stat_mfma(first=True)
    SP, SN, S0 = os.environ.get('SP', 'oa'), env('SN', 7), env('S0', 0)
    tch = Touch(a, SP, sL, sI, sPf, S_CNT, 4)
    if SP: stamp = lambda *x, **k: None
    if S0 <= 0: tch.go(SN)
    a(f's_waitcnt vmcnt({qn(Q1)})')
    stamp(a)
    a(f's_barrier')
    stat_reads()
    for jh in range(2):
        a(f'ds_read_b64_tr_b16 {v(F+2*jh,2)}, {v(vU)} offset:{512*jh}')
    emit(Q1, 9, env('FP1', 0))
    emit(0, Q2, env('FP1', 0))
    stat_mfma()
    if S0 <= 1: tch.go(SN)
    a(f's_waitcnt vmcnt({qn(Q2)})')
    stamp(a)
    pfn = {x: 0 for x in 'oabOHDSFwu'}
    O1 = [7, 6, 8, 9, 0, 1, 2, 3, 4, 5]
    def touch(L):
        n = 0
        for m in L:
            if m in 'wu':
                assert not fillq
                q = pfn[m]; pfn[m] += 1
                if m == 'w':
                    assert stg[3*O1[q]] >= p1hi
                    blk1(O1[q]); n += 3
                else: blk('o', 4 + q, main=True); n += 2
                continue
            if m in 'OHDSF':
                q = pfn[m]; pfn[m] += 1; n += 1
                if m == 'F':
                    a(f'v_lshrrev_b32 {v(vDm)}, 2, v0')
                    a(f'v_lshlrev_b32 {v(vDm)}, 7, {v(vDm)}')
                    a(f'v_and_or_b32 {v(vDm)}, v0, 3, {v(vDm)}')
                    a(f'v_lshlrev_b32 {v(vDm)}, 7, {v(vDm)}')
                    a(f's_lshl_b32 {s(sI)}, {s(S_C)}, 9')
                    a(f's_add_u32 {s(sI)}, {s(sI)}, {FL_1}')
                    a(f's_mov_b64 exec, 0xfff')
                    a(f'buffer_load_dword {v(vDm)}, {v(vDm)}, {s(SRD_WS,4)}, {s(sI)} offen sc1')
                    a('s_mov_b64 exec, -1')
                    continue
                claim(a, m, q, sL, sI, sPf, vDm, vL16)
                continue
            n += 1
            sr, nb = {'o': (SRD_C, 800), 'a': (SRD_E, 1920), 'b': (SRD_D, 1920)}[m]
            ln = 50 if m == 'o' else 60
            a(f's_lshl2_add_u32 {s(sI)}, s2, {s(sL)}')
            a(f's_mul_i32 {s(sI)}, {s(sI)}, {nb}')
            a(f's_mov_b32 exec_hi, {hex((1 << (ln - 32)) - 1)}')
            a(f'buffer_load_dwordx4 {v(vDm,4)}, {v(vL16)}, {s(sr,4)}, {s(sI)} offen offset:{pfn[m] * ln * 16}')
            pfn[m] += 1
            assert pfn[m] * ln * 16 <= nb
        if L: a('s_mov_b64 exec, -1')
        return n

    vm = Cnt(63)
    def thr(n):
        if n: a(f's_waitcnt vmcnt({n-1})')
    early = []
    def blk(kind, k, th=0, main=False):
        if kind == 'o':
            P, sr, lb = (pA if k < 8 else pB), SRD_C, L_WO[k]
            if RO and k < 8:
                a(f's_add_u32 {s(sT)}, {s(sQ2)}, {k}')
                a(f's_and_b32 {s(sT)}, {s(sT)}, 7')
                a(f's_lshl_b32 {s(sT2)}, {s(sT)}, 10')
                a(f's_mul_i32 {s(sT)}, {s(sT)}, {40*1280}')
                a(f's_add_u32 {s(sT2)}, {s(sT2)}, {s(sFo4)}')
            else:
                a(f's_mov_b32 {s(sT)}, {(40*k if k < 8 else 160*(k-8))*1280}')
                a(f's_add_u32 {s(sT2)}, {s(sFo4)}, {k*1024}')
        else:
            P, sr, lb = pC, SRD_D, L_W2[k]
            w2_off(a, k, sQ6, sT, sT2, sF24)
        if (kind, k) not in early:
            a(f's_add_u32 m0, {s(sM2)}, {lb}')
            for e in range(2):
                thr(th)
                a(f'buffer_load_dwordx4 {v(P[e])}, {s(sr,4)}, {s(sT)} offen offset:{e*WROW} lds')
            vm.add((kind, k), 2)
        if main:
            early.append((kind, k)); return
        a(f's_add_u32 m0, {s(sMf)}, {lb + 8*WROW}')
        a(f's_mov_b64 exec, {s(sHm,2)}')
        if env('NOFR', 0): a(f'buffer_load_dwordx4 {v(vL16)}, {s(sr,4)}, {s(sT)} offen lds')
        else: a(f'buffer_load_dwordx4 {v(vL16)}, {s(SRD_WS,4)}, {s(sT2)} offen sc1 lds')
        a(f's_mov_b64 exec, -1')
        vm.add((kind, k), 1)
    def blk1(c, th=0):
        if R1: a(f's_add_u32 {s(sT)}, {s(sR1)}, {64*c*3072}' if c < 5 else f's_sub_u32 {s(sT)}, {64*c*3072}, {s(sR1)}')
        else: a(f's_mov_b32 {s(sT)}, {64*c*3072}')
        a(f's_add_u32 {s(sT2)}, {s(sT)}, {8*3072}')
        for e in range(3):
            thr(th)
            a(f'buffer_load_dwordx4 {v(stg[3*c+e],4)}, {v(pD if e < 2 else pE)}, {s(SRD_E,4)}, {s(sT2 if e == 1 else sT)} offen')
        vm.add(('1', c), 3)
    SH = env('SH', 5)
    for it in range(2, 8):
        a(f's_barrier')
        if it > SH: a(f's_waitcnt vmcnt(8)')
        stat_reads()
        if it == 2: emit(Q2, 9, FP)
        if it in (2, 4):
            lsk = a.newlabel('ev')
            a(f's_cmp_ge_u32 s2, 136')
            a(f's_cbranch_scc1 {lsk}')
            if it == 2: a(f'buffer_store_dwordx4 {v(F,4)}, {v(vL16)}, {s(SRD_WS,4)}, {s(sD)} offen sc1')
            else:
                a(f's_mov_b64 exec, 1')
                a(f'buffer_store_dword {v(vN)}, off, {s(SRD_WS,4)}, {s(sFlag)} sc1')
                a(f's_mov_b64 exec, -1')
            a.label(lsk)
        if it == 6:
            assert not fillq
            a(f'buffer_load_dword {v(vF)}, {v(vFo)}, {s(SRD_WS,4)}, {s(sFo)} offen sc1')
        npf = touch(PF[it - 2])
        emit(0, 9, FP)
        if it < 7: vm.add('c', NCH)
        stamp(a)
        stat_mfma()
        if it == SH:
            assert it not in (2, 4)
            a(f's_waitcnt vmcnt({NCH + npf + (it == 6) + 8})')
            stat_reads()
            stat_mfma()
        if it == 7: break
        if S0 <= it: tch.go(SN)
        if it in (2, 4):
            lsk = a.newlabel('ew')
            a(f's_cmp_lt_u32 s2, 136')
            a(f's_cbranch_scc1 {lsk}')
            a(f's_waitcnt vmcnt({NCH + npf})')
            a.label(lsk)
        a(f's_waitcnt vmcnt({NCH + npf + (it in (2, 4, 6))})')
        stamp(a)
    vm.add('x9', 3); vm.add('c9', 8)
    stamp = stamp_
    assert not tch.q
    srd(a, SRD_B, S_PB1, 1536 * 2)
    lchk, lok = a.newlabel('chk'), a.newlabel('ok')
    a(f's_mov_b32 {s(S_CNT)}, {SPIN}')
    a(f's_waitcnt vmcnt({NCH + npf})')
    a.label(lchk)
    a(f'v_and_b32 {v(t0)}, -8, {v(vF)}')
    a(f'v_cmp_ne_u32 vcc, {s(S_TAG)}, {v(t0)}')
    a(f's_cmp_eq_u64 vcc, 0')
    a(f's_cbranch_scc1 {lok}')
    a(f's_sub_u32 {s(S_CNT)}, {s(S_CNT)}, 1')
    a(f's_cbranch_scc1 {lok}')
    a(f'buffer_load_dword {v(vF)}, {v(vFo)}, {s(SRD_WS,4)}, {s(sFo)} offen sc1')
    a(f's_waitcnt vmcnt(0)')
    a(f's_branch {lchk}')
    a.label(lok)
    stamp(a)
    a(f's_barrier')
    if SH < 8: a(f's_waitcnt vmcnt(8)')
    stat_reads()
    N17 = pfn['w']
    N18 = N17 + env('N18', 0)
    assert all(stg[3*c] >= p1hi for c in O1[:N18])
    for b in range(NB8): blk('o', b)
    lns = a.newlabel('ns')
    a(f's_cmp_lg_u32 {s(sL)}, 0')
    a(f's_cbranch_scc1 {lns}')
    a(f'v_readfirstlane_b32 {s(sT)}, {v(vF)}')
    a(f'v_cmp_ne_u32 vcc, {s(sT)}, {v(vF)}')
    a(f's_cmp_eq_u64 vcc, 0')
    a(f's_cselect_b32 {s(sT)}, {0 if FORCE_SLOW else 1}, 0')
    a(f'v_mov_b32 {v(t0)}, {s(sT)}')
    a(f'ds_write_b32 {v(vTg)}, {v(t0)}')
    a.label(lns)
    if SH >= 8:
        stat_mfma()
        a(f's_waitcnt vmcnt({vm.after("x9")})')
        stat_reads()
    a(f'v_and_b32 {v(t2)}, 3, v0')
    a(f'v_and_b32 {v(t1)}, 15, v0')
    a(f'v_lshlrev_b32 {v(t1)}, 3, {v(t1)}')
    a(f'v_add_u32 {v(t3)}, {L_STAT + 512}, {v(t1)}')
    a(f's_lshl_b32 {s(sT)}, {s(sL)}, 7')
    a(f's_add_u32 {s(sT)}, {s(sT)}, {L_STAT}')
    a(f'v_add_u32 {v(t1)}, {s(sT)}, {v(t1)}')
    sC = [sa(2) for _ in range(3)]
    for q in range(3): a(f'v_cmp_eq_u32 {s(sC[q],2)}, {q+1}, {v(t2)}')
    a(f's_mul_i32 {s(sT)}, {s(sL)}, 20')
    a(f's_lshl_b64 {s(sOrd,2)}, 15, {s(sT)}')
    stat_mfma(last=True)
    ch = []
    for tl in range(2):
        G = accG[tl]; vSum = F + 2 * tl; vSq = vSum + 1
        L = [f'v_cndmask_b32 {v(vSq)}, {v(G)}, {v(G+1)}, {s(sC[0],2)}',
             f'v_cndmask_b32 {v(vSq)}, {v(vSq)}, {v(G+2)}, {s(sC[1],2)}',
             f'v_cndmask_b32 {v(vSq)}, {v(vSq)}, {v(G+3)}, {s(sC[2],2)}',
             f'v_mov_b32 {v(vSum)}, {v(accS[tl])}'] + ln_stats(vSum, vSq, F + 4 + tl)
        ch.append(L)
    for x, y in zip(*ch): a(x); a(y)
    a(f's_mov_b32 exec_lo, 0x00f0000f')
    a(f's_mov_b32 exec_hi, 0xf0000f00')
    a(f'ds_write_b64 {v(t1)}, {v(F,2)}')
    a(f's_mov_b64 exec, {s(sOrd,2)}')
    a(f'ds_write_b64 {v(t3)}, {v(F+2,2)}')
    a(f's_mov_b64 exec, -1')
    stamp(a)
    NB9 = env('NB9', 3)
    for b in range(NB8, NB8 + NB9): blk('o', b)
    for c in O1[N17:N18]: blk1(c)
    a(f's_waitcnt vmcnt({vm.after("c9")}) lgkmcnt(0)')
    stamp(a)
    a(f's_barrier')
    a(f's_setprio {env("PRIO3", 0)}')
    vm.add('pf', touch(PF[6]))
    for b in range(NB8 + NB9, 6): blk('o', b)
    a(f's_mul_i32 {s(sT)}, {s(S_J)}, 192')
    a(f'buffer_load_dword {v(vB1)}, {v(vB1)}, {s(SRD_B,4)}, {s(sT)} offen')
    srd(a, SRD_B, S_PB2, 640 * 2)
    a(f's_lshr_b32 {s(sT)}, {s(S_J8)}, 2')
    a(f's_add_u32 {s(sT2)}, {s(sT)}, {s(S_J8)}')
    a(f's_lshl_b32 {s(sT2)}, {s(sT2)}, 7')
    a(f's_lshl4_add_u32 {s(sT)}, {s(sT)}, {s(S_J8)}')
    a(f's_lshl_b32 {s(sT)}, {s(sT)}, 5')
    a(f's_add_u32 {s(sT)}, {s(sT)}, {512 - 128}')
    a(f'v_mov_b32 {v(t0)}, {s(sT2)}')
    a(f'v_mov_b32 {v(t1)}, {s(sT)}')
    a(f'v_cmp_gt_u32 vcc, 32, v0')
    a(f'v_cndmask_b32 {v(t0)}, {v(t1)}, {v(t0)}, vcc')
    a(f'v_lshl_add_u32 {v(t0)}, v0, 2, {v(t0)}')
    a(f's_mov_b32 m0, {L_B2}')
    a(f's_mov_b32 exec_hi, 0xff')
    a(f'buffer_load_dword {v(t0)}, {s(SRD_B,4)}, 0 offen lds')
    a(f's_mov_b64 exec, -1')
    vm.add('b', 2)
    N1C = env('N1C', 0)
    global N1A
    N1A += N18
    for c in O1[N18:N1A]: blk1(c)
    LP, LN = os.environ.get('LP', 'b'), [int(x) for x in os.environ.get('LN', '15,15,15,15').split(',')]
    tch = Touch(a, LP, sL, sI, sPf, S_CNT, 4)
    if LP: stamp = lambda *x, **k: None
    tch.go(LN[0])
    stamp(a)
    a(f's_barrier')
    for b in range(6, 10): blk('o', b)
    for c in O1[N1A:N1A+N1B]: blk1(c)
    tch.go(LN[1])
    a(f's_waitcnt vmcnt({vm.after(lambda t: t[0] == "o")})')
    stamp(a)
    a(f's_barrier')
    base = Base(a, [vWf, vWh], 0)
    csn = [0]
    def csum(c):
        a(f's_waitcnt vmcnt({vm.after(("1", c))})')
        for e in range(3):
            a(f'{MFMA} {v(accC,4)}, {v(selF if e < 2 else selH,4)}, {v(stg[3*c+e],4)}, {v(accC,4) if csn[0] else "0"}')
            csn[0] += 1
    def put(c):
        o = base.off(L_W1[c], BLK1)
        for e in range(3):
            a(f'ds_write_b128 {v(vWf if e < 2 else vWh)}, {v(stg[3*c+e],4)} offset:{o + (e*1024 if e < 2 else 8192)}')
    for c in O1[N1A+N1B:N1A+N1B+N1C]: blk1(c, T1)
    for c in O1[:N1A]: csum(c)
    if N1A: put(7)
    tch.go(LN[2])
    stamp(a)
    if env('BGO', 1): a(f's_barrier')
    for c in O1[N1A+N1B+N1C:]: blk1(c, T1)
    CSE = max(N1A, env('CSE', N1A + N1B + N1C))
    tch.go(LN[3])
    for c in O1[N1A:CSE]: csum(c)
    assert not tch.q
    stamp(a)
    stamp = stamp_
    a(f's_barrier')
    for i, c in enumerate(O1):
        if i >= CSE: a(f's_waitcnt vmcnt({vm.after(("1", c))})')
        if c != 7 or not N1A: put(c)
    for c in O1[CSE:]: csum(c)
    for r in range(4): a(f'v_add_f32_dpp {v(accC+r)}, {v(accC+r)}, {v(accC+r)} row_ror:8 row_mask:0xf bank_mask:0xf')
    for r in range(4): a(f'v_add_f32_dpp {v(accC+r)}, {v(accC+r)}, {v(accC+r)} row_ror:4 row_mask:0xc bank_mask:0xf')
    a(f's_mov_b32 exec_lo, 0x00ff00ff')
    a(f's_mov_b32 exec_hi, 0x000f000f')
    a(f'ds_write_b128 {v(vCp)}, {v(accC,4)}')
    a(f's_mov_b64 exec, -1')
    a(f's_waitcnt lgkmcnt(0)')
    stamp(a)
    a(f's_barrier')
    for k in (0, 1): blk('2', k, TW)
    lcs = a.newlabel('lcs')
    a(f's_cmp_lg_u32 {s(sL)}, 3')
    a(f's_cbranch_scc1 {lcs}')
    q = stg[0]
    a(f'v_lshlrev_b32 {v(t0)}, 3, v0')
    a(f'v_add_u32 {v(t0)}, {L_CSP}, {v(t0)}')
    for p in range(4): a(f'ds_read_b64 {v(q+2*p,2)}, {v(t0)} offset:{384*p}')
    a(f'v_add_u32 {v(t0)}, {L_CS}, {v(vL16)}')
    a(f's_waitcnt lgkmcnt(0)')
    a(f'v_pk_add_f32 {v(q,2)}, {v(q,2)}, {v(q+2,2)}')
    a(f'v_pk_add_f32 {v(q+4,2)}, {v(q+4,2)}, {v(q+6,2)}')
    a(f'v_pk_add_f32 {v(q,2)}, {v(q,2)}, {v(q+4,2)}')
    for lv in range(3):
        a(f'v_cvt_pk_bf16_f32 {v(q+8+lv)}, {v(q)}, {v(q+1)}')
        if lv < 2:
            a(f'v_lshlrev_b32 {v(q+2)}, 16, {v(q+8+lv)}')
            a(f'v_and_b32 {v(q+3)}, 0xffff0000, {v(q+8+lv)}')
            a(f'v_pk_add_f32 {v(q,2)}, {v(q,2)}, {v(q+2,2)} neg_lo:[0,1] neg_hi:[0,1]')
    a(f's_mov_b32 {s(sT)}, 0x05040100')
    a(f's_mov_b32 {s(sT2)}, 0x07060302')
    a(f'v_perm_b32 {v(q+4)}, {v(q+9)}, {v(q+8)}, {s(sT)}')
    a(f'v_perm_b32 {v(q+5)}, {v(vB1)}, {v(q+10)}, {s(sT)}')
    a(f'v_perm_b32 {v(q+6)}, {v(q+9)}, {v(q+8)}, {s(sT2)}')
    a(f'v_perm_b32 {v(q+7)}, {v(vB1)}, {v(q+10)}, {s(sT2)}')
    a(f's_mov_b32 exec_hi, 0xffff')
    a(f'ds_write_b128 {v(t0)}, {v(q+4,4)}')
    a(f's_mov_b64 exec, -1')
    a(f's_waitcnt lgkmcnt(0)')
    a.label(lcs)
    stamp(a)
    a(f's_barrier')
    for k in range(2, 6): blk('2', k, TW)
    stamp(a)
    a(f's_barrier')
    for k in range(6, 11): blk('2', k, TW)
    def w2wait(kmax):
        a(f's_waitcnt vmcnt({vm.after(lambda t: t[0] == "2" and t[1] <= kmax)})')
    w2wait(YB[0])
    stamp(a)
    a(f's_barrier')
    a(f's_setprio {env("PRIO4", 3)}')
    for lo, hi_, kw in YI:
        for k in range(lo, hi_):
            if k not in STG: blk('2', k, TW)
        w2wait(kw)
        stamp(a)
        a(f's_barrier')
    F4 = stg[0]
    lend = a.newlabel('lend')
    a(f's_or_b32 {s(sT)}, s2, {s(sL)}')
    a(f's_cmp_lg_u32 {s(sT)}, 0')
    a(f's_cbranch_scc1 {lend}')
    lp, ld = a.newlabel('bp'), a.newlabel('bd')
    a(f's_mov_b32 {s(S_CNT)}, {SPIN}')
    a(f's_mov_b32 {s(sT)}, {FL_HELLO}')
    a.label(lp)
    a(f'buffer_load_dwordx4 {v(F4,4)}, {v(vL16)}, {s(SRD_WS,4)}, {s(sT)} offen sc1')
    a(f's_sub_u32 {s(S_CNT)}, {s(S_CNT)}, 1')
    a(f's_cbranch_scc1 {ld}')
    a(f's_waitcnt vmcnt(0)')
    for r in range(4): a(f'v_xor_b32 {v(F4+r)}, {s(S_TAG)}, {v(F4+r)}')
    a(f'v_or3_b32 {v(F4)}, {v(F4)}, {v(F4+1)}, {v(F4+2)}')
    a(f'v_or_b32 {v(F4)}, {v(F4)}, {v(F4+3)}')
    a(f'v_cmp_lt_u32 vcc, 7, {v(F4)}')
    a(f's_cmp_lg_u64 vcc, 0')
    a(f's_cbranch_scc1 {lp}')
    a.label(ld)
    a(f'v_mov_b32 {v(t0)}, {s(S_TAG)}')
    a(f's_mov_b32 {s(sT)}, {WS_FL}')
    a(f's_mov_b64 exec, 1')
    a(f'buffer_store_dword {v(t0)}, off, {s(SRD_WS,4)}, {s(sT)} sc1')
    a.label(lend)
    stamps_flush(a)
    a('s_endpgm')
    return va.hi

def spoll(a, sOff, n, vF, vOff, vG=None):
    if not env('SPOLL', 0):
        poll(a, vF, vOff, sOff, vG); return
    ls, lp, ld = a.newlabel('pslow'), a.newlabel('sp'), a.newlabel('spd')
    a(f's_mov_b32 {s(S_CNT)}, {SPIN}')
    a(f's_cmp_eq_u32 {s(S_SAME)}, 0')
    a(f's_cbranch_scc1 {ls}')
    a.label(lp)
    a(f's_load_dwordx{n} {s(16,n)}, {s(S_PWS,2)}, {s(sOff)} glc')
    a(f's_sub_u32 {s(S_CNT)}, {s(S_CNT)}, 1')
    a(f's_cbranch_scc1 {ld}')
    a(f's_waitcnt lgkmcnt(0)')
    for i in range(n // 2):
        a(f's_cmp_eq_u64 {s(16+2*i,2)}, {s(S_TAG2,2)}')
        a(f's_cbranch_scc0 {lp}')
    a.label(ld)
    lq = a.newlabel('pq')
    DEFER.append((ls, ld, [f'{lq}:', f'buffer_load_dword {v(vF)}, {v(vOff)}, {s(SRD_WS,4)}, {s(sOff)} offen sc1',
                           f's_sub_u32 {s(S_CNT)}, {s(S_CNT)}, 1', f's_cbranch_scc1 {ld}', 's_waitcnt vmcnt(0)',
                           f'v_cmp_ne_u32 vcc, {s(S_TAG)}, {v(vF)}', 's_cmp_lg_u64 vcc, 0', f's_cbranch_scc1 {lq}']))
S_TAG2 = 34

def helper(a):
    stamp = stamp_ if 't' not in os.environ.get('HS', '') else (lambda *x, **k: None)
    sa = Alloc('s', S_FREE, S_LIM)
    va = Alloc('v', 2, VLIM)
    vL16 = 1
    sL, sT, sT2, sF24, sQ6 = [sa() for _ in range(5)]
    t0, t1, t2, t3, vFs, vWf, vWr = [va() for _ in range(7)]
    pC = [va(), va()]
    R = {k: (va(4, 2), va(4, 2), va(2)) for k in STG}
    a(f's_sub_u32 {s(sL)}, {s(S_W)}, 4')
    a(f's_setprio {env("PRIOH", 0)}')
    srd(a, SRD_A, S_PW2, 1536 * 1280)
    row_bits(a, sL, sT, sT2, t0, t1, t2, t3)
    row_pat(a, pC, 768, 8, 16, 1280, sT2, t0, t1, t2, t3, dma=False)
    a(f's_and_b32 {s(sT)}, {s(sL)}, 1')
    a(f's_lshl1_add_u32 {s(sF24)}, {s(S_J8)}, {s(sT)}')
    a(f's_mul_i32 {s(sF24)}, {s(sF24)}, 24576')
    a(f's_lshr_b32 {s(sT2)}, {s(sL)}, 1')
    a(f's_lshl_b32 {s(sT2)}, {s(sT2)}, 9')
    a(f's_add_u32 {s(sF24)}, {s(sF24)}, {WS_W24}')
    a(f'v_lshl_add_u32 {v(vFs)}, v0, 3, {s(sT2)}')
    a(f's_lshl_b32 {s(sT)}, {s(sT)}, 10')
    a(f'v_add_u32 {v(vWr)}, {s(sT)}, {v(vFs)}')
    a(f's_mul_i32 {s(sT)}, {s(sL)}, {2*WROW}')
    a(f'v_add_u32 {v(vWf)}, {s(sT)}, {v(vL16)}')
    a(f's_and_b32 {s(sQ6)}, {s(S_C64)}, 3')
    a(f's_mul_i32 {s(sQ6)}, {s(sQ6)}, 6')
    def get(k):
        w2_off(a, k, sQ6, sT, sT2, sF24)
        for e in range(2):
            if TH: a(f's_waitcnt vmcnt({TH-1})')
            a(f'buffer_load_dwordx4 {v(R[k][e],4)}, {v(pC[0])}, {s(SRD_A,4)}, {s(sT)} offen offset:{e*1280}')
        if env('NOFR', 0): a(f'buffer_load_dwordx2 {v(R[k][2],2)}, {v(vFs)}, {s(SRD_A,4)}, {s(sT)} offen')
        else: a(f'buffer_load_dwordx2 {v(R[k][2],2)}, {v(vFs)}, {s(SRD_WS,4)}, {s(sT2)} offen sc1')
    base = Base(a, [vWf, vWr], 0)
    def put(k):
        o = base.off(L_W2[k], BLK)
        for e in range(2): a(f'ds_write_b128 {v(vWf)}, {v(R[k][e],4)} offset:{o + e*WROW}')
        a(f'ds_write_b64 {v(vWr)}, {v(R[k][2],2)} offset:{o + 8*WROW}')
    HS = os.environ.get('HS', ',gg,,gg,ggg').split(',')
    todo, nd = list(STG), [sum(x.count('D') for x in PF)]
    tch = Touch(a, os.environ.get('HP_', 'D'), sL, sT, sT2, S_CNT, 4)
    def seq(L):
        for m in L:
            if m == 'g': get(todo.pop(0))
            elif m == 't': tch.go(env('HN', 15))
            else:
                if TH: a(f's_waitcnt vmcnt({TH-1})')
                claim(a, 'D', nd[0], sL, sT, sT2, R[STG[-1]][0], vL16); nd[0] += 1
    seq(HS[0])
    stamp(a)
    if env('BGO', 1): a(f's_barrier')
    seq(HS[1])
    stamp(a)
    a(f's_barrier')
    seq(HS[2])
    stamp(a)
    a(f's_barrier')
    seq(HS[3])
    stamp(a)
    a(f's_barrier')
    seq(HS[4] if len(HS) > 4 else '')
    if 'D' in ''.join(HS): a(f's_waitcnt vmcnt(0)')
    a(f's_barrier')
    seq(HS[5] if len(HS) > 5 else '')
    assert not todo and (not tch.q or 't' not in ''.join(HS))
    a(f's_barrier')
    a(f's_waitcnt vmcnt(0)')
    for lo, hi_, kw in YI:
        for k in range(lo, hi_):
            if k in STG: put(k)
        a(f's_waitcnt lgkmcnt(0)')
        stamp(a)
        a(f's_barrier')
    stamps_flush(a)
    a('s_endpgm')
    return va.hi

def compute(a):
    sa = Alloc('s', S_FREE, S_LIM)
    vL16 = 1
    sT, sT2, sTau, sKh, sTile, sKf = [sa() for _ in range(6)]
    sO1, sO2, sF1w, sF1r, sIP, sI4 = [sa() for _ in range(6)]
    sMask = sa(2); sCexp = sa(2)
    sOb = [sa() for _ in range(5)]
    sRowP, sRow4, sHP, sH4, sSTw, sF2w = [sa() for _ in range(6)]
    sF2r, sSTr, sHsrc, sD01, sD2, sF3w, sF3r, sDsrc, sR1 = [sa() for _ in range(9)]
    sC = [sa(2) for _ in range(3)]
    sDb = [sO1, sO2, sF1w, sF1r, sIP, sI4, sMask, sMask + 1]
    sBeta, sB4 = sRowP, sRow4
    hi = [0]
    va = Alloc('v', 2, VLIM)
    keep = va(12, 2)
    t0, t1, t2, t3 = va(), va(), va(), va()
    vL16s, vH4, vTr, vFr, vPo, vXa = [va() for _ in range(6)]
    vB = [va(), va()]
    p0 = va.n
    wk0 = va.n
    acc = [[va(4, 2) for m in range(5)] for n in range(2)]
    fX = [[va(4, 2) for m in range(5)] for st in range(2)]
    fW = [[va(4, 2) for n in range(2)] for st in range(2)]
    wk1 = va.n
    Cc, Cp = va(4, 2), va(4, 2)
    Mc, Mp = va(2), va(2)
    vX = [va(), va()]
    vW, vG0, vDump, vStat, vN, vXC = [va() for _ in range(6)]
    aC, aP, aVc, aVp, aVc4, aVp4 = [va() for _ in range(6)]
    hi[0] = va.hi
    if env('PRIOC', 1): a(f's_setprio {env("PRIOC", 1)}')
    assert EBV == Cc
    if not EB:
        a(f's_waitcnt lgkmcnt(0)')
        nonce_load(a)
    ET = env('ET', 1)
    if ET & 2:
        lf = a.newlabel('ep')
        a(f's_cmp_lg_u32 {s(S_W)}, 3')
        a(f's_cbranch_scc1 {lf}')
        a(f's_mul_i32 {s(sO1)}, {s(S_C64)}, {64*1280}')
        a(f's_load_dword {s(S_CNT)}, {s(S_POUT,2)}, {s(sO1)}')
        for ptr in (S_PWO, S_PW1, S_PW2, S_PB1, S_PB2): a(f's_load_dword {s(S_CNT)}, {s(ptr,2)}, 0')
        for m in 'OHDS':
            L, ptr, offs = region(m, S_W, sO1, sO2, 4)[0]
            for x in L: a(x)
            a(f's_load_dword {s(S_CNT)}, {s(ptr,2)}, {s(sO1)}')
        a.label(lf)
    a(f'v_and_b32 {v(t0)}, 15, v0')
    a(f'v_lshrrev_b32 {v(t1)}, 4, v0')
    a(f'v_lshrrev_b32 {v(t2)}, 1, {v(t0)}')
    a(f'v_xor_b32 {v(t3)}, {v(t2)}, {v(t1)}')
    a(f'v_lshlrev_b32 {v(t3)}, 4, {v(t3)}')
    a(f'v_lshl_add_u32 {v(t3)}, {v(t0)}, 7, {v(t3)}')
    a(f'v_add_u32 {v(vX[0])}, {XIMG}, {v(t3)}')
    a(f'v_xor_b32 {v(vX[1])}, 64, {v(vX[0])}')
    a(f'v_lshrrev_b32 {v(t3)}, 5, v0')
    a(f'v_xor_b32 {v(t2)}, {v(t2)}, {v(t3)}')
    a(f'v_lshlrev_b32 {v(t2)}, 4, {v(t2)}')
    a(f'v_lshl_add_u32 {v(t2)}, {v(t0)}, 7, {v(t2)}')
    a(f'v_and_b32 {v(vXC)}, 1, {v(t1)}')
    a(f'v_lshl_add_u32 {v(t2)}, {v(vXC)}, 3, {v(t2)}')
    a(f's_and_b32 {s(sTau)}, {s(S_W)}, 3')
    a(f's_lshl_b32 {s(sT)}, {s(sTau)}, 11')
    a(f'v_add_u32 {v(vXC)}, {s(sT)}, {v(t2)}')
    a(f'v_lshlrev_b32 {v(t2)}, 4, {v(t3)}')
    a(f'v_bfe_u32 {v(t3)}, v0, 2, 3')
    a(f'v_add_u32 {v(t2)}, {v(t2)}, {v(t3)}')
    a(f'v_mul_u32_u24 {v(t2)}, {WROW}, {v(t2)}')
    a(f'v_and_b32 {v(t3)}, 3, v0')
    a(f'v_lshl_add_u32 {v(t2)}, {v(t3)}, 3, {v(t2)}')
    a(f's_lshl_b32 {s(sT)}, {s(S_W)}, 6')
    a(f'v_add_u32 {v(vW)}, {s(sT)}, {v(t2)}')
    a(f's_lshr_b32 {s(sB4)}, {s(S_J8)}, 2')
    a(f's_add_u32 {s(sBeta)}, {s(sB4)}, {s(S_J8)}')
    a(f's_mul_i32 {s(sB4)}, {s(sB4)}, 5')
    a(f's_add_u32 {s(sB4)}, {s(sB4)}, 4')
    ord_init(a, sMask, sT, inv=True)
    for src, dst in ((sBeta, sIP), (sB4, sI4)):
        a(f's_sub_u32 {s(sT)}, {s(src)}, {s(S_XCD)}')
        a(f's_cselect_b32 {s(sT2)}, 10, 0')
        a(f's_add_u32 {s(sT)}, {s(sT)}, {s(sT2)}')
        a(f's_lshl_b32 {s(sT)}, {s(sT)}, 2')
        a(f's_lshr_b64 {s(sCexp,2)}, {s(sMask,2)}, {s(sT)}')
        a(f's_and_b32 {s(dst)}, {s(sCexp)}, 15')
    a(f's_and_b32 {s(sKf)}, {s(S_J8)}, 3')
    a(f's_lshl_b32 {s(sKf)}, {s(sKf)}, 5')
    ln0, ln1 = a.newlabel('n0'), a.newlabel('n1')
    a(f's_cmp_lg_u32 {s(S_W)}, 1')
    a(f's_cbranch_scc1 {ln1}')
    a(f'v_mov_b32 {v(vN)}, 0x3f803f80')
    a(f'v_and_b32 {v(t2)}, 31, v0')
    a(f'v_lshlrev_b32 {v(t2)}, 2, {v(t2)}')
    a(f'v_add_u32 {v(t3)}, {SLOT}, {v(t2)}')
    a(f'ds_write_b32 {v(t2)}, {v(vN)} offset:{XIMG + 64*128}')
    a(f'ds_write_b32 {v(t3)}, {v(vN)} offset:{XIMG + 64*128}')
    a(f'v_add_u32 {v(t3)}, {2*SLOT}, {v(t2)}')
    a(f'ds_write_b32 {v(t3)}, {v(vN)} offset:{XIMG + 64*128}')
    a.label(ln1)
    Touch(a, os.environ.get('CS', ''), S_W, sT, sT2, S_CNT, 8).go(99)
    srd(a, SRD_WS, S_PWS, WS_SIZE)
    if ET & 1:
        lf = a.newlabel('ef')
        a(f's_cmp_lg_u32 {s(S_W)}, 2')
        a(f's_cbranch_scc1 {lf}')
        a(f'v_lshrrev_b32 {v(vN)}, 2, v0')
        a(f'v_lshlrev_b32 {v(vN)}, 7, {v(vN)}')
        a(f'v_and_or_b32 {v(vN)}, v0, 3, {v(vN)}')
        a(f'v_lshlrev_b32 {v(vN)}, 7, {v(vN)}')
        a(f's_lshl_b32 {s(sT)}, {s(S_C)}, 9')
        a(f's_add_u32 {s(sT)}, {s(sT)}, {FL_1}')
        a(f's_mov_b64 exec, 0xfff')
        a(f'buffer_load_dword {v(vN)}, {v(vN)}, {s(SRD_WS,4)}, {s(sT)} offen sc1')
        a('s_mov_b64 exec, -1')
        a.label(lf)
    late = []
    real_a, a = a, late.append
    a(f'v_lshlrev_b32 {v(vL16)}, 4, v0')
    srd(a, SRD_B, S_POUT, 2048 * 1280)
    a(f'v_lshlrev_b32 {v(vStat)}, 3, {v(t0)}')
    a(f'v_add_u32 {v(vStat)}, {L_STAT}, {v(vStat)}')
    a(f'v_mul_u32_u24 {v(t2)}, {DROW}, {v(t0)}')
    a(f'v_lshl_add_u32 {v(t2)}, {v(t1)}, 3, {v(t2)}')
    a(f's_lshl_b32 {s(sT)}, {s(S_W)}, 6')
    a(f's_add_u32 {s(sT)}, {s(sT)}, {L_DUMP}')
    a(f'v_add_u32 {v(vDump)}, {s(sT)}, {v(t2)}')
    sCur, sPrev = sO1, sO2
    a(f's_lshr_b32 {s(sKh)}, {s(S_W)}, 2')
    a(f's_lshl_b32 {s(sCur)}, {s(sTau)}, 4')
    a(f's_sub_u32 {s(sPrev)}, {s(sCur)}, 16')
    a(f's_lshl_b32 {s(sT)}, {s(sTau)}, 2')
    a(f's_add_u32 {s(sT)}, {s(sT)}, 56')
    a(f's_bitcmp1_b32 {s(sTau)}, 0')
    a(f's_cselect_b32 {s(sPrev)}, {s(sPrev)}, {s(sT)}')
    a(f's_mul_i32 {s(sT)}, {s(sKh)}, 80')
    a(f's_add_u32 {s(sT)}, {s(sT)}, {L_DUMP}')
    a(f's_mul_i32 {s(sCur)}, {s(sCur)}, {DROW}')
    a(f's_mul_i32 {s(sPrev)}, {s(sPrev)}, {DROW}')
    a(f's_add_u32 {s(sCur)}, {s(sCur)}, {s(sT)}')
    a(f's_add_u32 {s(sPrev)}, {s(sPrev)}, {s(sT)}')
    a(f'v_add_u32 {v(aC)}, {s(sCur)}, {v(t2)}')
    a(f'v_add_u32 {v(aP)}, {s(sPrev)}, {v(t2)}')
    a(f'v_lshrrev_b32 {v(t2)}, 2, v0')
    a(f'v_mul_u32_u24 {v(t2)}, {DROW}, {v(t2)}')
    a(f'v_add_u32 {v(aVc4)}, {s(sCur)}, {v(t2)}')
    a(f'v_add_u32 {v(aVp4)}, {s(sPrev)}, {v(t2)}')
    a(f'v_and_b32 {v(t2)}, 3, v0')
    a(f'v_lshl_add_u32 {v(aVc)}, {v(t2)}, 3, {v(aVc4)}')
    a(f'v_lshl_add_u32 {v(aVp)}, {v(t2)}, 3, {v(aVp4)}')
    for q in range(3): a(f'v_cmp_eq_u32 {s(sC[q],2)}, {q+1}, {v(t2)}')
    a(f'v_bfe_u32 {v(t2)}, v0, 4, 1')
    a(f'v_lshrrev_b32 {v(t3)}, 5, v0')
    a(f'v_and_b32 {v(vL16s)}, 0xf0, {v(vL16)}')
    a(f'v_lshl_add_u32 {v(vH4)}, {v(t3)}, 8, {v(vL16s)}')
    a(f'v_lshl_add_u32 {v(vH4)}, {v(t2)}, 3, {v(vH4)}')
    a(f'v_lshl_add_u32 {v(t3)}, {v(t2)}, 1, {v(t3)}')
    a(f'v_lshl_add_u32 {v(vL16s)}, {v(t3)}, 8, {v(vL16s)}')
    tr_patterns(a, vTr, None, t2)
    a(f's_and_b32 {s(sT2)}, {s(S_W)}, 1')
    a(f's_lshl_b32 {s(sT)}, {s(sT2)}, 9')
    a(f's_add_u32 {s(sT)}, {s(sT)}, {L_WO[0]}')
    a(f'v_add_u32 {v(vTr)}, {s(sT)}, {v(vTr)}')
    a(f's_lshl_b32 {s(sT)}, {s(sT2)}, 10')
    a(f's_add_u32 {s(sT)}, {s(sT)}, {L_WO[0]}')
    a(f'v_add_u32 {v(vFr)}, {s(sT)}, {v(vL16)}')
    a(f's_mul_i32 {s(sT)}, {s(sT2)}, 20480')
    a(f'v_add_u32 {v(vB[0])}, {s(sT)}, {v(vL16)}')
    a(f's_sub_u32 {s(sT)}, 20480, {s(sT)}')
    a(f'v_add_u32 {v(vB[1])}, {s(sT)}, {v(vL16)}')
    a(f's_mul_i32 {s(sT)}, {s(sTau)}, 5120')
    a(f's_add_u32 {s(sT)}, {s(sT)}, {L_X2}')
    a(f'v_add_u32 {v(vXa)}, {s(sT)}, {v(vL16)}')
    a(f'v_lshlrev_b32 {v(vPo)}, 2, {v(t0)}')
    a(f'v_mov_b32 {v(keep+10)}, 0')
    a(f'v_mov_b32 {v(keep+11)}, 0')
    a(f's_and_b32 {s(sT)}, {s(sTau)}, 1')
    a(f's_or_b32 {s(sT)}, {s(sT)}, {s(S_C64)}')
    a(f's_cmp_eq_u32 {s(sT)}, 0')
    a(f's_cselect_b32 {s(sT)}, 100, 9')
    a(f'v_lshlrev_b32 {v(t1)}, 2, {v(t1)}')
    a(f'v_sub_u32 {v(t1)}, {v(t1)}, {v(t0)}')
    a(f'v_mov_b32 {v(t3)}, 0xf149f2ca')
    for r in range(4):
        a(f'v_add_u32 {v(t2)}, {r+7}, {v(t1)}')
        a(f'v_cmp_ge_u32 vcc, 7, {v(t2)}')
        a(f'v_cndmask_b32 {v(Cc+r)}, {v(t3)}, 0, vcc')
        a(f'v_add_u32 {v(t2)}, {r}, {v(t1)}')
        a(f'v_cmp_le_i32 vcc, {s(sT)}, {v(t2)}')
        a(f'v_cndmask_b32 {v(Cp+r)}, {v(t3)}, 0, vcc')
        a(f'v_cmp_ge_i32 vcc, 0, {v(t2)}')
        half = '0xffff' if r % 2 == 0 else '0xffff0000'
        a(f'v_mov_b32 {v(vG0)}, {half}')
        if r % 2 == 0:
            a(f'v_cndmask_b32 {v(Mc+r//2)}, 0, {v(vG0)}, vcc')
        else:
            a(f'v_cndmask_b32 {v(vG0)}, 0, {v(vG0)}, vcc')
            a(f'v_or_b32 {v(Mc+r//2)}, {v(Mc+r//2)}, {v(vG0)}')
    a(f'v_not_b32 {v(Mp)}, {v(Mc)}')
    a(f'v_not_b32 {v(Mp+1)}, {v(Mc+1)}')
    a(f'v_cmp_gt_u32 vcc, 16, v0')
    a(f'v_cndmask_b32 {v(vG0)}, 0, -1, vcc')
    cexp = struct.unpack('<I', struct.pack('<f', 20 ** -0.5 * math.log2(math.e)))[0]
    a(f's_mov_b32 {s(sCexp)}, {hex(cexp)}')
    a(f's_mov_b32 {s(sCexp+1)}, {hex(cexp)}')
    a(f's_lshl2_add_u32 {s(sTile)}, {s(S_C64)}, {s(sTau)}')
    a(f's_mul_i32 {s(sH4)}, {s(sTile)}, 20480')
    a(f's_lshl1_add_u32 {s(sT2)}, {s(S_J8)}, {s(sKh)}')
    a(f's_lshr_b32 {s(sT)}, {s(sT2)}, 3')
    a(f's_lshl1_add_u32 {s(sO1)}, {s(sT)}, {s(sT2)}')
    a(f's_lshl_b32 {s(sO1)}, {s(sO1)}, 10')
    a(f's_add_u32 {s(sO1)}, {s(sO1)}, {s(sH4)}')
    a(f's_lshl3_add_u32 {s(sF1w)}, {s(sT)}, {s(sT2)}')
    a(f's_mul_i32 {s(sO2)}, {s(sT)}, 10')
    a(f's_bfe_u32 {s(sT)}, {s(sT2)}, 0x10002')
    a(f's_add_u32 {s(sO2)}, {s(sO2)}, {s(sT)}')
    a(f's_add_u32 {s(sO2)}, {s(sO2)}, 8')
    a(f's_lshl_b32 {s(sO2)}, {s(sO2)}, 10')
    a(f's_add_u32 {s(sO2)}, {s(sO2)}, {s(sH4)}')
    a(f's_and_b32 {s(sT)}, {s(sT2)}, 3')
    a(f's_lshl_b32 {s(sT)}, {s(sT)}, 4')
    a(f's_mov_b64 {s(sMask,2)}, 0xffff')
    a(f's_lshl_b64 {s(sMask,2)}, {s(sMask,2)}, {s(sT)}')
    a(f's_and_b32 {s(sT2)}, {s(sTile)}, 1')
    a(f's_lshr_b32 {s(sT)}, {s(sTile)}, 1')
    a(f's_mul_i32 {s(sOb[4])}, {s(sT)}, 40960')
    a(f's_mul_i32 {s(sDsrc)}, {s(sT)}, 98304')
    a(f's_lshl_b32 {s(sT)}, {s(sT)}, 7')
    a(f's_lshl3_add_u32 {s(sF1w)}, {s(sT2)}, {s(sF1w)}')
    a(f's_lshl2_add_u32 {s(sF1w)}, {s(sF1w)}, {s(sT)}')
    a(f's_add_u32 {s(sF1w)}, {s(sF1w)}, {FL_1}')
    a(f's_lshl3_add_u32 {s(sF2w)}, {s(sT2)}, {s(S_J8)}')
    a(f's_lshl2_add_u32 {s(sF2w)}, {s(sF2w)}, {s(sT)}')
    a(f's_add_u32 {s(sF2w)}, {s(sF2w)}, {FL_2}')
    a(f's_lshl_b32 {s(sF3r)}, {s(sT2)}, 5')
    a(f's_lshl1_add_u32 {s(sF1r)}, {s(sF3r)}, {s(sT)}')
    a(f's_add_u32 {s(sF1r)}, {s(sF1r)}, {FL_1}')
    a(f's_add_u32 {s(sF3r)}, {s(sF3r)}, {s(sT)}')
    a(f's_add_u32 {s(sF3r)}, {s(sF3r)}, {FL_3}')
    a(f's_mul_i32 {s(sT)}, {s(sT2)}, 10240')
    a(f's_add_u32 {s(sOb[4])}, {s(sOb[4])}, {s(sT)}')
    a(f's_mul_i32 {s(sT)}, {s(sT2)}, 24576')
    a(f's_add_u32 {s(sDsrc)}, {s(sDsrc)}, {s(sT)}')
    a(f's_add_u32 {s(sDsrc)}, {s(sDsrc)}, {WS_DF}')
    for i in range(4):
        if RO:
            a(f's_add_u32 {s(sT)}, {s(S_C64)}, {i}')
            a(f's_and_b32 {s(sT)}, {s(sT)}, 3')
            a(f's_lshl_b32 {s(sT)}, {s(sT)}, 11')
            a(f's_add_u32 {s(sOb[i])}, {s(sOb[4])}, {s(sT)}')
        else: a(f's_add_u32 {s(sOb[i])}, {s(sOb[4])}, {2048*i}')
    a(f's_add_u32 {s(sOb[4])}, {s(sOb[4])}, 8192')
    a(f's_lshl3_add_u32 {s(sSTw)}, {s(sTile)}, {s(S_J8)}')
    a(f's_lshl_b32 {s(sSTw)}, {s(sSTw)}, 7')
    a(f's_add_u32 {s(sSTw)}, {s(sSTw)}, {WS_ST}')
    a(f's_add_u32 {s(sH4)}, {s(sH4)}, {WS_HF}')
    a(f's_lshl_b32 {s(sT)}, {s(sBeta)}, 11')
    a(f's_add_u32 {s(sHP)}, {s(sH4)}, {s(sT)}')
    a(f's_lshl_b32 {s(sB4)}, {s(sB4)}, 7')
    a(f's_add_u32 {s(sB4)}, {s(sB4)}, {s(sKf)}')
    a(f's_lshl4_add_u32 {s(sH4)}, {s(sB4)}, {s(sH4)}')
    a(f's_lshl_b32 {s(sBeta)}, {s(sBeta)}, 7')
    a(f's_lshl_b32 {s(sT2)}, {s(sT2)}, 5')
    a(f's_lshr_b32 {s(sT)}, {s(sTau)}, 1')
    a(f's_add_u32 {s(sT2)}, {s(sT2)}, {s(sT)}')
    a(f's_lshl_b32 {s(sT)}, {s(S_C64)}, 6')
    a(f's_add_u32 {s(sT2)}, {s(sT2)}, {s(sT)}')
    a(f's_mul_i32 {s(sT2)}, {s(sT2)}, 1280')
    a(f's_add_u32 {s(sRowP)}, {s(sBeta)}, {s(sT2)}')
    a(f's_add_u32 {s(sRow4)}, {s(sB4)}, {s(sT2)}')
    a(f's_lshl2_add_u32 {s(sT2)}, {s(S_C)}, {s(sTau)}')
    a(f's_lshl_b32 {s(sF2r)}, {s(sT2)}, 7')
    a(f's_lshl2_add_u32 {s(sF3w)}, {s(S_J)}, {s(sF2r)}')
    a(f's_add_u32 {s(sF3w)}, {s(sF3w)}, {FL_3}')
    a(f's_add_u32 {s(sF2r)}, {s(sF2r)}, {FL_2}')
    a(f's_lshl_b32 {s(sSTr)}, {s(sT2)}, 11')
    a(f's_add_u32 {s(sSTr)}, {s(sSTr)}, {WS_ST}')
    a(f's_mul_i32 {s(sHsrc)}, {s(sT2)}, 40960')
    a(f's_add_u32 {s(sHsrc)}, {s(sHsrc)}, {WS_HF}')
    a(f's_mul_i32 {s(sD2)}, {s(sT2)}, 98304')
    a(f's_mul_i32 {s(sT)}, {s(S_J)}, 3072')
    a(f's_add_u32 {s(sD2)}, {s(sD2)}, {s(sT)}')
    a(f's_add_u32 {s(sD2)}, {s(sD2)}, {WS_DF}')
    a(f's_bitcmp1_b32 {s(S_J)}, 0')
    a(f's_cselect_b32 {s(sT)}, 1024, 0')
    a(f's_cselect_b32 {s(sT2)}, 0, 2048')
    a(f's_add_u32 {s(sD01)}, {s(sD2)}, {s(sT)}')
    a(f's_add_u32 {s(sD2)}, {s(sD2)}, {s(sT2)}')
    if R1:
        a(f's_and_b32 {s(sT)}, {s(S_C)}, 1')
        a(f's_mul_i32 {s(sR1)}, {s(sT)}, 10240')
        a(f's_add_u32 {s(sHsrc)}, {s(sHsrc)}, {s(sR1)}')
        a(f's_lshl_b32 {s(sR1)}, {s(sR1)}, 1')
        a(f's_sub_u32 {s(sR1)}, 2048, {s(sR1)}')
    a = real_a
    ok = scc_cuts(late)
    NP = env('NP', 8)
    cuts = [0]
    for i in range(1, NP):
        c = len(late) * i // NP
        while not ok[c]: c += 1
        cuts.append(c)
    cuts.append(len(late))
    def hello():
        lh = a.newlabel('hello')
        nonce_to_tag(a)
        a(f's_mov_b32 {s(S_TAG2)}, {s(S_TAG)}')
        a(f's_mov_b32 {s(S_TAG2+1)}, {s(S_TAG)}')
        a(f's_cmp_lg_u32 {s(S_W)}, 0')
        a(f's_cbranch_scc1 {lh}')
        a(f's_getreg_b32 {s(S_CNT)}, hwreg(HW_REG_XCC_ID, 0, 3)')
        a(f's_or_b32 {s(S_CNT)}, {s(S_CNT)}, {s(S_TAG)}')
        a(f'v_mov_b32 {v(vG0)}, {s(S_CNT)}')
        a(f's_lshl4_add_u32 {s(S_CNT)}, {s(S_C)}, {s(S_J)}')
        a(f's_lshl_b32 {s(S_CNT)}, {s(S_CNT)}, 2')
        a(f's_add_u32 {s(S_CNT)}, {s(S_CNT)}, {FL_HELLO}')
        a(f's_mov_b64 exec, 1')
        a(f'buffer_store_dword {v(vG0)}, off, {s(SRD_WS,4)}, {s(S_CNT)} sc1')
        a(f's_mov_b64 exec, -1')
        a.label(lh)
    def reads(st):
        L = []
        for n in range(2):
            for jh in range(2):
                L.append(f'ds_read_b64_tr_b16 {v(fW[st][n]+2*jh,2)}, {v(vW)} offset:{st*512 + jh*8*WROW + n*32}')
        for m in range(5):
            L.append(f'ds_read_b128 {v(fX[st][m],4)}, {v(vX[st])} offset:{m*2048}')
        return L
    def mfmas(st, z=False):
        return [f'{MFMA} {v(acc[n][m],4)}, {v(fW[st][n],4)}, {v(fX[st][m],4)}, {"0" if z else v(acc[n][m],4)}'
                for m in range(5) for n in range(2)]
    def capture(it):
        base = (it % 3) * SLOT + XIMG
        for sI_, ns in ((sIP, 4), (sI4, 1)):
            lo, lb = a.newlabel('cap'), a.newlabel('capb')
            a(f's_cmp_eq_u32 {s(sI_)}, {it}')
            a(f's_cbranch_scc1 {lo}')
            a.label(lb)
            if ns == 4:
                L = [f'v_add_u32 {v(keep)}, {base}, {v(vXC)}'] + [f'v_xor_b32 {v(keep+2*n)}, {32*n}, {v(keep)}' for n in (1, 2, 3)]
                L += [f'ds_read_b64 {v(keep+2*n,2)}, {v(keep+2*n)}' for n in range(4)]
            else:
                L = [f'v_add_u32 {v(keep+8)}, {base}, {v(vXC)}', f'v_xor_b32 {v(keep+8)}, {s(sKf)}, {v(keep+8)}',
                     f'ds_read_b64 {v(keep+8,2)}, {v(keep+8)}']
            DEFER.append((lo, lb, L))
    st_ = fX[0][0]; cs = fX[0][3]; pk = fW[0][0]
    stamp(a)
    for it in range(10):
        a(f's_waitcnt lgkmcnt(0)')
        a(f's_barrier')
        stamp(a)
        mark(a, f'b{it}')
        M, RD = mfmas(1), reads(0)
        for i in range(10):
            if i < 5:
                for x in RD[2*i:2*i+2]: a(x)
            if it: a(M[i])
        capture(it)
        a(f's_waitcnt lgkmcnt(0)')
        M, RD = mfmas(0, it == 0), reads(1)
        for i in range(10):
            a(M[i])
            if i < 5:
                for x in RD[2*i:2*i+2]: a(x)
        if it < 9:
            d = hex(SLOT if it % 3 < 2 else (-2 * SLOT) & 0xffffffff)
            for r in (vX[0], vW, vX[1]): a(f'v_add_u32 {v(r)}, {d}, {v(r)}')
        if it == 2 and EB:
            assert not any(re.search(rf'v{Cc}\b', x) for x in late[:cuts[1]])
            a('s_waitcnt vmcnt(0)')
        if it == 0: hello()
        elif it <= NP:
            for x in late[cuts[it-1]:cuts[it]]: a(x)
    M = mfmas(1)
    M = M[8:] + M[:8]
    a(f'v_mov_b32 {v(t0)}, {L_TAG}')
    for m in (4, 0, 1, 2, 3):
        a(f'ds_read_b64 {v(st_+2*m,2)}, {v(vStat)} offset:{m*128}')
    a(f'ds_read_b32 {v(t3)}, {v(t0)}')
    a(f's_waitcnt lgkmcnt(6)')
    def norm(n, m, q):
        A = acc[n][m]
        L = []
        for h in range(2): L.append(f'v_pk_mul_f32 {v(A+2*h,2)}, {v(A+2*h,2)}, {v(st_+2*m,2)} op_sel_hi:[1,0]')
        for h in range(2): L.append(f'v_pk_fma_f32 {v(A+2*h,2)}, {v(st_+2*m,2)}, {v(cs+4*n+2*h,2)}, {v(A+2*h,2)} op_sel:[1,0,0] op_sel_hi:[1,1,1] neg_lo:[1,0,0] neg_hi:[1,0,0]')
        p = pk + 2 * (q % 4)
        L.append(f'v_cvt_pk_bf16_f32 {v(p)}, {v(A)}, {v(A+1)}')
        L.append(f'v_cvt_pk_bf16_f32 {v(p+1)}, {v(A+2)}, {v(A+3)}')
        L.append(f'ds_write_b64 {v(vDump)}, {v(p,2)} offset:{m*16*DROW + n*32}')
        return L
    dpp = [f'v_mov_b32_dpp {v(cs+4*n+r)}, {v(acc[n][4]+r)} row_newbcast:0 row_mask:0xf bank_mask:0xf' for n in range(2) for r in range(4)]
    for i, x in enumerate(M):
        a(x)
        if i >= 6: a(dpp[2*(i-6)]); a(dpp[2*(i-6)+1])
    a(f's_waitcnt lgkmcnt(0)')
    a(f'v_readfirstlane_b32 {s(S_SAME)}, {v(t3)}')
    lsk = a.newlabel('p1sk')
    for n in range(2):
        if env('XST', 0): stamp(a)
        if n == 1:
            a(f's_cmp_eq_u32 {s(S_W)}, 7')
            a(f's_cbranch_scc1 {lsk}')
        for q, m in enumerate((4, 0, 1, 2, 3)):
            for x in norm(n, m, q): a(x)
    a.label(lsk)
    if env('XST', 0): stamp(a)
    a(f's_waitcnt lgkmcnt(0)')
    a(f's_barrier')
    stamp(a)
    va2 = Alloc('v', wk0, wk1)
    Q = [va2(4, 2) for _ in range(2)]; Kc = [va2(4, 2) for _ in range(2)]; Kp = [va2(4, 2) for _ in range(2)]
    Vm = [va2(4, 2) for _ in range(2)]; V4 = [va2(4, 2) for _ in range(2)]
    Sc = [va2(4, 2) for _ in range(2)]; Sp = [va2(4, 2) for _ in range(2)]
    Om, O4 = va2(4, 2), va2(4, 2)
    for h in range(2):
        a(f'ds_read2_b64 {v(Q[h],4)}, {v(aC)} offset0:{5*h} offset1:{5*h+4}')
        a(f'ds_read2_b64 {v(Kc[h],4)}, {v(aC)} offset0:{20+5*h} offset1:{24+5*h}')
        a(f'ds_read2_b64 {v(Kp[h],4)}, {v(aP)} offset0:{20+5*h} offset1:{24+5*h}')
    for h in range(2):
        a(f'ds_read_b64_tr_b16 {v(Vm[h],2)}, {v(aVp)} offset:{320+40*h}')
        a(f'ds_read_b64_tr_b16 {v(Vm[h]+2,2)}, {v(aVc)} offset:{320+40*h}')
        a(f'ds_read_b64_tr_b16 {v(V4[h],2)}, {v(aVp4)} offset:{320+40*h+32}')
        a(f'ds_read_b64_tr_b16 {v(V4[h]+2,2)}, {v(aVc4)} offset:{320+40*h+32}')
    for h in range(2):
        a(f's_waitcnt lgkmcnt({8 + 3*(1-h)})')
        a(f'v_and_b32 {v(Q[h]+2)}, {v(Q[h]+2)}, {v(vG0)}')
        a(f'v_and_b32 {v(Q[h]+3)}, {v(Q[h]+3)}, {v(vG0)}')
        a(f'{MFMA} {v(Sc[h],4)}, {v(Kc[h],4)}, {v(Q[h],4)}, {v(Cc,4)}')
        a(f'{MFMA} {v(Sp[h],4)}, {v(Kp[h],4)}, {v(Q[h],4)}, {v(Cp,4)}')
    mx = [t0, t1]; tm = [t2, t3]
    for h in range(2):
        for r in range(4): a(f'v_max_f32 {v(Sc[h]+r)}, {v(Sc[h]+r)}, {v(Sp[h]+r)}')
        a(f'v_max3_f32 {v(mx[h])}, {v(Sc[h])}, {v(Sc[h]+1)}, {v(Sc[h]+2)}')
        a(f'v_max_f32 {v(mx[h])}, {v(mx[h])}, {v(Sc[h]+3)}')
    xg_reduce(a, mx, tm, 'v_max_f32')
    a(f'v_pk_mul_f32 {v(t0,2)}, {v(t0,2)}, {s(sCexp,2)}')
    for h in range(2):
        for p in range(2):
            a(f'v_pk_fma_f32 {v(Sc[h]+2*p,2)}, {v(Sc[h]+2*p,2)}, {s(sCexp,2)}, {v(t0,2)} op_sel:[0,0,{h}] op_sel_hi:[1,1,{h}] neg_lo:[0,0,1] neg_hi:[0,0,1]')
    for h in range(2):
        for r in range(4): a(f'v_exp_f32 {v(Sc[h]+r)}, {v(Sc[h]+r)}')
    for h in range(2): a(f'v_pk_add_f32 {v(Sp[h],2)}, {v(Sc[h],2)}, {v(Sc[h]+2,2)}')
    for h in range(2): a(f'v_add_f32 {v(mx[h])}, {v(Sp[h])}, {v(Sp[h]+1)}')
    xg_reduce(a, mx, tm, 'v_add_f32')
    for h in range(2): a(f'v_rcp_f32 {v(mx[h])}, {v(mx[h])}')
    for h in range(2):
        for p in range(2):
            a(f'v_pk_mul_f32 {v(Sc[h]+2*p,2)}, {v(Sc[h]+2*p,2)}, {v(t0,2)} op_sel:[0,{h}] op_sel_hi:[1,{h}]')
        a(f'v_cvt_pk_bf16_f32 {v(Sc[h])}, {v(Sc[h])}, {v(Sc[h]+1)}')
        a(f'v_cvt_pk_bf16_f32 {v(Sc[h]+1)}, {v(Sc[h]+2)}, {v(Sc[h]+3)}')
        a(f'v_and_b32 {v(Sp[h])}, {v(Sc[h])}, {v(Mp)}')
        a(f'v_and_b32 {v(Sp[h]+1)}, {v(Sc[h]+1)}, {v(Mp+1)}')
        a(f'v_and_b32 {v(Sp[h]+2)}, {v(Sc[h])}, {v(Mc)}')
        a(f'v_and_b32 {v(Sp[h]+3)}, {v(Sc[h]+1)}, {v(Mc+1)}')
        if h == 0: a(f's_waitcnt lgkmcnt(0)')
        a(f'{MFMA} {v(Q[h],4)}, {v(Vm[h],4)}, {v(Sp[h],4)}, 0')
        a(f'{MFMA} {v(Kc[h],4)}, {v(V4[h],4)}, {v(Sp[h],4)}, 0')
    for h in range(2):
        a(f'v_cvt_pk_bf16_f32 {v(Om+2*h)}, {v(Q[h])}, {v(Q[h]+1)}')
        a(f'v_cvt_pk_bf16_f32 {v(Om+2*h+1)}, {v(Q[h]+2)}, {v(Q[h]+3)}')
        a(f'v_cvt_pk_bf16_f32 {v(O4+2*h)}, {v(Kc[h])}, {v(Kc[h]+1)}')
        a(f'v_cvt_pk_bf16_f32 {v(O4+2*h+1)}, {v(Kc[h]+2)}, {v(Kc[h]+3)}')
    dual(a, [f'buffer_store_dwordx4 {v(Om,4)}, {v(vL16)}, {s(SRD_WS,4)}, {s(sO1)} offen@',
             f's_mov_b64 exec, {s(sMask,2)}',
             f'buffer_store_dwordx4 {v(O4,4)}, {v(vL16)}, {s(SRD_WS,4)}, {s(sO2)} offen@',
             f's_mov_b64 exec, -1'], 1)
    stamp(a)
    if env('BATT', 0): a(f's_barrier')
    publish(a, t0, sF1w)
    if not env('BATT', 0): a(f's_barrier')
    stamp(a)
    lhelp = a.newlabel('helper')
    a(f's_cmp_ge_u32 {s(S_W)}, 4')
    a(f's_cbranch_scc1 {lhelp}')
    nh = St.n
    if PRIO2: a(f's_setprio {PRIO2}')
    class G5:
        def __init__(g, K, LB, D, sB, per, base):
            va = Alloc('v', p0, VLIM)
            g.K, g.LB, g.D, g.sB, g.per, g.base = K, LB, D, sB, per, base
            g.acc = [[va(4, 2) for n in range(5)] for t in range(2)]
            g.ring = [va(4, 2) for _ in range(LA + 1)]
            g.fB = [[va(4, 2) for t in range(2)] for _ in range(D)]
            hi[0] = max(hi[0], va.hi)
            g.lg, g.vm = Cnt(15), Cnt(63)
        def rd(g, i, part):
            k, n = divmod(i, 5)
            if k >= g.K: return
            o = g.base.off(g.LB[k], BLK)
            R = g.ring[i % (LA + 1)]
            if n < 4: a(f'ds_read_b64_tr_b16 {v(R+2*part,2)}, {v(vTr)} offset:{o + part*256 + n*32}')
            elif part == 0: a(f'ds_read_b128 {v(R,4)}, {v(vFr)} offset:{o + 8*WROW}')
            else: return
            g.lg.add(i)
        def ld(g, k, t):
            if k >= g.K: return
            a(f'buffer_load_dwordx4 {v(g.fB[k % g.D][t],4)}, {v(vB[t])}, {s(SRD_WS,4)}, {s(g.sB[k // g.per])} offen offset:{(k % g.per)*1024} sc1')
            g.vm.add((k, t))
        def run(g, top):
            for k in range(g.K):
                top(k)
                for n in range(5):
                    i = 5 * k + n
                    for p, t in enumerate((0, 1) if k < g.K - 1 else (1, 0)):
                        w = []
                        if n == 0 and (p == 0 or k == 0): w.append(f'vmcnt({g.vm.after((k, t if k == 0 else 1))})')
                        if p == 0: w.append(f'lgkmcnt({g.lg.after(i)})')
                        if w: a('s_waitcnt ' + ' '.join(w))
                        C = '0' if k == 0 and t == 1 else v(g.acc[t][n], 4)
                        a(f'{MFMA} {v(g.acc[t][n],4)}, {v(g.ring[i % (LA+1)],4)}, {v(g.fB[k % g.D][t],4)}, {C}')
                        g.rd(i + LA, p)
                        if n == 4: g.ld(k + g.D, t)
        def exchange(g, out):
            for n in range(5): a(f'ds_write_b128 {v(vXa)}, {v(g.acc[1][n],4)} offset:{n*1024}')
            a(f's_bitcmp1_b32 {s(S_W)}, 0')
            a(f's_movk_i32 {s(sT)}, 5120')
            a(f's_cmovk_i32 {s(sT)}, {(-5120) & 0xffff}')
            a(f'v_add_u32 {v(t0)}, {s(sT)}, {v(vXa)}')
            a(f's_waitcnt lgkmcnt(0)')
            a(f's_barrier')
            stamp(a)
            for n in range(5): a(f'ds_read_b128 {v(g.acc[1][n],4)}, {v(t0)} offset:{n*1024}')
            for n in range(5):
                a(f's_waitcnt lgkmcnt({4-n})')
                A = g.acc[0][n]
                for h in range(2): a(f'v_pk_add_f32 {v(A+2*h,2)}, {v(A+2*h,2)}, {v(g.acc[1][n]+2*h,2)}')
                for h in range(2): a(f'v_cvt_pk_bf16_f32 {v(keep+2*n+h)}, {v(A+2*h)}, {v(A+2*h+1)}')
                if n in (1, 3):
                    for h in range(2): a(f'v_permlane16_swap_b32 {v(keep+2*n-2+h)}, {v(keep+2*n+h)}')
                if n != 0 and n != 2: out(n >> 1)
    def unpack(dst, src):
        a(f'v_lshlrev_b32 {v(dst)}, 16, {v(src)}')
        a(f'v_and_b32 {v(dst+1)}, 0xffff0000, {v(src)}')
    g = G5(10, L_WO, D2, sOb, 2, Base(a, [vTr, vFr], L_WO[0]))
    poll0(a, t2, vPo, sF1r)
    for i in range(LA): g.rd(i, 0); g.rd(i, 1)
    for i in range(10): unpack(g.acc[0][0] + 2 * i, keep + i)
    spoll(a, sF1r, 16, t2, vPo, t1)
    stamp(a)
    for k in range(D2): g.ld(k, 0); g.ld(k, 1)
    KG = env('KG', 0)
    stamp(a)
    g.run(lambda k: a('s_barrier') if k == KG and env('BGO', 1) else None)
    stamp(a)
    G_, S_, vOne = g.ring[0], g.ring[1], g.fB[0][0]
    for r in range(4): a(f'v_mov_b32 {v(vOne+r)}, 0x3f803f80')
    def out(i):
        if i < 2: dual(a, [f'buffer_store_dwordx4 {v(keep+4*i,4)}, {v(vL16s)}, {s(SRD_WS,4)}, {s(sHP)} offen offset:{1024*i}@'], 2)
        else: dual(a, [f'buffer_store_dwordx2 {v(keep+8,2)}, {v(vH4)}, {s(SRD_WS,4)}, {s(sH4)} offen@'], 2)
        a(f'{MFMA} {v(G_,4)}, {v(keep+4*i,4)}, {v(keep+4*i,4)}, {v(G_,4) if i else "0"}')
        a(f'{MFMA} {v(S_,4)}, {v(vOne,4)}, {v(keep+4*i,4)}, {v(S_,4) if i else "0"}')
    g.exchange(out)
    a(f'v_lshlrev_b32 {v(t1)}, 1, {v(vPo)}')
    a(f's_mov_b32 exec_lo, 0x00f0000f')
    a(f's_mov_b32 exec_hi, 0xf0000f00')
    a(f'v_cndmask_b32 {v(G_)}, {v(G_)}, {v(G_+1)}, {s(sC[0],2)}')
    a(f'v_cndmask_b32 {v(G_)}, {v(G_)}, {v(G_+2)}, {s(sC[1],2)}')
    a(f'v_cndmask_b32 {v(S_+1)}, {v(G_)}, {v(G_+3)}, {s(sC[2],2)}')
    dual(a, [f'buffer_store_dwordx2 {v(S_,2)}, {v(t1)}, {s(SRD_WS,4)}, {s(sSTw)} offen@'], 2)
    a(f's_mov_b64 exec, -1')
    stamp(a)
    base2 = g.base
    va = Alloc('v', p0, VLIM)
    acc = [va(16, 2) for _ in range(3)]
    ring = [va(4, 2) for _ in range(LA + 1)]
    fH = [va(4, 2) for _ in range(D3)]
    vA = [va(), va(), va()]
    vHs = va()
    hi[0] = max(hi[0], va.hi)
    stp = [acc[2] + 8 + 2 * q for q in range(4)] if False else [fH[D3-2], fH[D3-2] + 2, fH[D3-1], fH[D3-1] + 2]
    vS = t2; vRs = t1
    a(f'v_bfe_u32 {v(t0)}, v0, 2, 2')
    a(f'v_lshrrev_b32 {v(t2)}, 5, v0')
    a(f'v_lshl_add_u32 {v(t0)}, {v(t2)}, 3, {v(t0)}')
    a(f'v_bfe_u32 {v(t3)}, v0, 4, 1')
    a(f'v_and_b32 {v(vHs)}, 3, v0')
    a(f'v_lshlrev_b32 {v(vHs)}, 3, {v(vHs)}')
    a(f'v_lshl_add_u32 {v(vHs)}, {v(t3)}, 5, {v(vHs)}')
    a(f'v_lshl_add_u32 {v(vA[2])}, {v(t0)}, 6, {v(vHs)}')
    a(f'v_lshl_add_u32 {v(vA[1])}, {v(t0)}, 7, {v(vHs)}')
    a(f'v_bfe_u32 {v(t0)}, v0, 3, 1')
    a(f'v_lshl_add_u32 {v(vA[0])}, {v(t0)}, 6, {v(vA[1])}')
    a(f'v_xor_b32 {v(vA[1])}, 64, {v(vA[0])}')
    a(f'v_lshl_add_u32 {v(t1)}, {v(t2)}, 9, {v(t1)}')
    a(f'v_lshl_add_u32 {v(t1)}, {v(t3)}, 10, {v(t1)}')
    a(f'v_mul_u32_u24 {v(t3)}, 20480, {v(t3)}')
    a(f'v_lshl_add_u32 {v(t3)}, {v(t2)}, 8, {v(t3)}')
    a(f'v_lshl_add_u32 {v(vHs)}, {v(vPo)}, 2, {v(t3)}')
    publish(a, t0, sF2w)
    stamp(a)
    lg, vmc, base = Cnt(15), Cnt(63), Base(a, vA, 0)
    spoll(a, sF2r, 16, t0, vPo)
    stamp(a)
    def ld(k):
        if k >= 40: return
        if k and k % 4 == 0: a(f's_add_u32 {s(sHsrc)}, {s(sHsrc)}, {s(sR1) if R1 and k == 20 else 2048}')
        a(f'buffer_load_dwordx4 {v(fH[k % D3],4)}, {v(vHs)}, {s(SRD_WS,4)}, {s(sHsrc)} offen offset:{(k%4)*512} sc1')
        vmc.add(k)
    for k in range(4): ld(k)
    for q in range(4):
        a(f'buffer_load_dwordx2 {v(stp[q],2)}, {v(t1)}, {s(SRD_WS,4)}, {s(sSTr)} offen offset:{q*128} sc1')
        vmc.add('st')
    for k in range(4, D3 - 2): ld(k)
    a(f's_barrier')
    mark(a, 'w1')
    stamp(a)
    def rd3(i):
        k, n = divmod(i, 3)
        R = ring[i % (LA + 1)]
        if k == 40:
            a(f'ds_read_b64 {v(R,2)}, {v(t0)} offset:{n*256}')
            lg.add(i)
        if k >= 40: return
        o = base.off(L_W1[k >> 2], BLK1)
        for jh in range(2):
            r = 16 * (k & 3) + 4 * jh
            a(f'ds_read_b64_tr_b16 {v(R+2*jh,2)}, {v(vA[n])} offset:{o + (r*128 if n < 2 else 8192 + r*64)}')
        lg.add(i, 2)
    for i in range(LA): rd3(i)
    class LA_:
        def __init__(self): self.L = []
        def __call__(self, x): self.L.append(x)
    la = LA_()
    for h in range(2):
        la(f'v_add_f32 {v(vS+h)}, {v(stp[0]+h)}, {v(stp[1]+h)}')
        la(f'v_add_f32 {v(t0+h)}, {v(stp[2]+h)}, {v(stp[3]+h)}')
    nfirst = len(la.L)
    for h in range(2): la(f'v_add_f32 {v(vS+h)}, {v(vS+h)}, {v(t0+h)}')
    for h in range(2): la(f'v_mov_b32 {v(t0+h)}, {v(vS+h)}')
    for h in range(2): la(f'v_permlane32_swap_b32 {v(vS+h)}, {v(t0+h)}')
    for h in range(2): la(f'v_add_f32 {v(vS+h)}, {v(vS+h)}, {v(t0+h)}')
    la.L += ln_stats(vS, vS + 1, vRs, raw=True)
    la(f'v_cvt_pk_bf16_f32 {v(vS+1)}, -{v(vS)}, {v(vS+1)}')
    la(f'v_cvt_pk_bf16_f32 {v(vS)}, -{v(vS)}, -{v(vS)}')
    la(f'v_cmp_gt_u32 vcc, 32, v0')
    la(f'v_cndmask_b32 {v(vS)}, 0, {v(vS)}, vcc')
    la(f'v_cndmask_b32 {v(vS+1)}, 0, {v(vS+1)}, vcc')
    la(f'v_and_b32 {v(t0)}, 31, v0')
    la(f'v_lshlrev_b32 {v(t0)}, 3, {v(t0)}')
    la(f'v_add_u32 {v(t0)}, {L_CS}, {v(t0)}')
    fill = {}
    for i, x in enumerate(la.L): fill.setdefault(13 + (0 if i < nfirst else i), []).append(x)
    Bx = fH[40 % D3]
    fill.setdefault(112, []).extend([f'v_mov_b32 {v(Bx)}, {v(vS)}', f'v_mov_b32 {v(Bx+1)}, {v(vS+1)}'])
    fill.setdefault(113, []).extend([f'v_mov_b32 {v(Bx+2)}, 0', f'v_mov_b32 {v(Bx+3)}, 0'])
    fill.setdefault(114, []).extend([f'v_bfe_u32 {v(t3)}, v0, 4, 1', f'v_mul_u32_u24 {v(t3)}, {49152 - 20480}, {v(t3)}'])
    fill.setdefault(115, []).extend([f'v_add_u32 {v(vHs)}, {v(t3)}, {v(vHs)}'])
    assert 3 * (40 - D3) < 112
    for k in range(41):
        if k in (16, 28):
            a(f's_barrier')
            if env('XST', 0): stamp(a)
        for n in range(3):
            i = 3 * k + n
            w = f'lgkmcnt({lg.after(i)})'
            if n == 0 and k < 40: w = f'vmcnt({vmc.after(k)}) ' + w
            a(f's_waitcnt {w}')
            a(f'{MFMA32} {v(acc[n],16)}, {v(ring[i % (LA+1)],4)}, {v(fH[k % D3],4)}, {"0" if k == 0 else v(acc[n],16)}')
            rd3(i + LA)
            for x in fill.get(i, []): a(x)
            if i == 13: ld(D3 - 2); ld(D3 - 1); ld(D3); ld(D3 + 1); ld(D3 + 2); ld(D3 + 3)
            if n == 2 and k >= 4: ld(k + D3)
    stamp(a)
    if X3E: a(f's_barrier')
    for n in range(3):
        for c in range(2):
            A_ = acc[n] + 8 * c
            o_ = ring[(2 * n + c) % (LA + 1)]
            for r in range(8): a(f'v_max_f32 {v(A_+r)}, 0, {v(A_+r)}')
            for h in range(4): a(f'v_pk_mul_f32 {v(A_+2*h,2)}, {v(A_+2*h,2)}, {v(t0,2)} op_sel:[0,1] op_sel_hi:[1,1]')
            for h in range(4): a(f'v_pk_mul_f32 {v(A_+2*h,2)}, {v(A_+2*h,2)}, {v(A_+2*h,2)}')
            for h in range(4): a(f'v_cvt_pk_bf16_f32 {v(o_+h)}, {v(A_+2*h)}, {v(A_+2*h+1)}')
            dual(a, [f'buffer_store_dwordx4 {v(o_,4)}, {v(vHs)}, {s(SRD_WS,4)}, {s(sD01 if n < 2 else sD2)} offen offset:{(n&1)*1024 + c*512}@'], 4)
    stamp(a)
    if not X3E: a(f's_barrier')
    g = G5(24, L_W2, D4, sDb, 3, base2)
    b2 = g.fB[D4-1][0] - 4
    a(f'v_lshrrev_b32 {v(t1)}, 4, v0')
    a(f'v_lshlrev_b32 {v(t1)}, 3, {v(t1)}')
    a(f'v_add_u32 {v(t2)}, {L_B2}, {v(t1)}')
    for n in range(5): a(f'ds_read_b64 {v(b2+2*n,2)}, {v(t2)} offset:{32*n}')
    for i in range(8):
        if R2:
            a(f's_lshl1_add_u32 {s(sT)}, {s(S_C64)}, {i}')
            a(f's_and_b32 {s(sT)}, {s(sT)}, 7')
            a(f's_mul_i32 {s(sT)}, {s(sT)}, 3072')
            a(f's_add_u32 {s(sDb[i])}, {s(sDsrc)}, {s(sT)}')
        else: a(f's_add_u32 {s(sDb[i])}, {s(sDsrc)}, {3072*i}')
    for p in range(2):
        for h in range(2): a(f'v_permlane16_swap_b32 {v(keep+4*p+h)}, {v(keep+4*p+2+h)}')
    a(f'v_and_b32 {v(t3)}, 28, {v(vPo)}')
    publish(a, t0, sF3w)
    stamp(a)
    poll0(a, g.fB[0][1], t3, sF3r)
    for i in range(LA): g.rd(i, 0); g.rd(i, 1)
    a(f's_and_b32 {s(sT2)}, {s(S_W)}, 1')
    a(f's_mul_i32 {s(sT)}, {s(sT2)}, 49152')
    a(f'v_add_u32 {v(vB[0])}, {s(sT)}, {v(vL16)}')
    a(f's_sub_u32 {s(sT)}, 49152, {s(sT)}')
    a(f'v_add_u32 {v(vB[1])}, {s(sT)}, {v(vL16)}')
    a(f's_waitcnt lgkmcnt({len(g.lg.q)})')
    for i in range(10):
        unpack(g.acc[0][0] + 2 * i, keep + i)
        unpack(g.acc[1][0] + 2 * i, b2 + i)
    for i in range(10):
        A = g.acc[0][0] + 2 * i
        a(f'v_pk_add_f32 {v(A,2)}, {v(A,2)}, {v(g.acc[1][0] + 2*i,2)}')
    spoll(a, sF3r, 8, g.fB[0][1], t3, g.fB[0][1] + 1)
    stamp(a)
    for k in range(D4): g.ld(k, 0); g.ld(k, 1)
    a(f'v_mul_u32_u24 {v(t2)}, 640, {v(vPo)}')
    a(f'v_add_u32 {v(vH4)}, {v(t2)}, {v(t1)}')
    a(f'v_lshrrev_b32 {v(vL16s)}, 8, {v(vL16s)}')
    a(f'v_lshl_add_u32 {v(vL16s)}, {v(vL16s)}, 4, {v(t2)}')
    a(f'v_add_u32 {v(vXa)}, {hex((L_X4 - L_X2) & 0xffffffff)}, {v(vXa)}')
    stamp(a)
    def top(k):
        if k in YB:
            a(f's_barrier')
            if env('XST', 0): stamp(a)
    g.run(top)
    stamp(a)
    def out(i):
        if i < 2: a(f'buffer_store_dwordx4 {v(keep+4*i,4)}, {v(vL16s)}, {s(SRD_B,4)}, {s(sRowP)} offen offset:{64*i}' + OB)
        else: a(f'buffer_store_dwordx2 {v(keep+8,2)}, {v(vH4)}, {s(SRD_B,4)}, {s(sRow4)} offen' + OB)
    g.exchange(out)
    mark(a, 'end')
    if DG:
        ld_ = a.newlabel('diag'); le_ = a.newlabel('diage')
        a('s_memrealtime s[100:101]')
        a('s_waitcnt lgkmcnt(0)')
        a('s_sub_u32 s98, s98, s96')
        a(f's_mul_i32 s98, s98, {env("DK", 1)}')
        a('s_add_u32 s98, s98, s100')
        a(f's_mov_b32 {s(S_CNT)}, 20000')
        a.label(ld_)
        a('s_memrealtime s[100:101]')
        a(f's_sub_u32 {s(S_CNT)}, {s(S_CNT)}, 1')
        a(f's_cbranch_scc1 {le_}')
        a('s_waitcnt lgkmcnt(0)')
        a('s_sub_u32 s99, s100, s98')
        a('s_cmp_lt_i32 s99, 0')
        a(f's_cbranch_scc1 {ld_}')
        a.label(le_)
    stamp(a)
    stamps_flush(a)
    a('s_endpgm')
    nf = St.n
    a.label(lhelp)
    St.n = nh
    hi[0] = max(hi[0], helper(a))
    St.n = nf
    for ls, lj, L in DEFER:
        a.label(ls)
        for x in L: a(x)
        a(f's_branch {lj}')
    return hi[0]

EB = os.environ.get('EB', 'x')
EBV = 122
def burst(a):
    sT, sT2, sO = 52, 53, 54
    D = {'q': (S_PWQKV, 640*3840), 'x': (S_PX, 2048*1280), 'o': (S_PWO, 640*1280), 'a': (S_PW1, 640*3072), 'b': (S_PW2, 1536*1280)}
    a(f'v_lshlrev_b32 v1, 4, v0')
    a(f's_lshl3_add_u32 {s(sT)}, s2, {s(S_W)}')
    a(f's_lshl3_add_u32 {s(sT2)}, {s(S_C64)}, {s(S_J8)}')
    a(f's_lshl3_add_u32 {s(sT2)}, {s(sT2)}, {s(S_W)}')
    for q, m in enumerate(EB): a(f's_mul_i32 {s(sO+q)}, {s(sT2 if m == "x" else sT)}, {D[m][1] // 2048}')
    a(f's_mov_b32 {s(sT)}, {640*3840 - 64}')
    a(f's_waitcnt lgkmcnt(0)')
    if env('ES', 1):
        a(f's_load_dword {s(S_CNT)}, {s(S_PWQKV,2)}, 0')
        a(f's_load_dword {s(S_CNT)}, {s(S_PWQKV,2)}, {s(sT)}')
    nonce_load(a)
    for rnd in range(2):
        for q, m in enumerate(EB):
            ptr, nb = D[m]
            ln = min(64, (nb // 2048 - 1024 * rnd) // 16)
            if ln <= 0: continue
            if rnd == 0: srd(a, 60 + 4 * q, ptr, nb)
            if ln < 64:
                a(f's_mov_b32 exec_lo, {hex((1 << min(ln, 32)) - 1)}')
                a(f's_mov_b32 exec_hi, {hex((1 << max(ln - 32, 0)) - 1)}')
            a(f'buffer_load_dwordx4 {v(EBV,4)}, v1, {s(60 + 4*q,4)}, {s(sO+q)} offen offset:{1024 * rnd}')
    a('s_mov_b64 exec, -1')

def build():
    K = NAME + '_kernel'
    head = '; generated by gen/gen5.py: fused persistent kernel, 8 compute + 4 loader waves per workgroup\n'
    head += f'; @launch grid=(256,1,1) block=(768,1,1) lds={LDS_SIZE}\n'
    head += '.amdgcn_target "amdgcn-amd-amdhsa--gfx950"\n.text\n'
    a = Asm()
    a(f'.globl {K}\n.p2align 8\n.type {K},@function')
    a.label(K)
    lend, lld = a.newlabel('end'), a.newlabel('loader')
    a(f's_cmp_ge_u32 s2, 256')
    a(f's_cbranch_scc1 {lend}')
    a(f's_load_dwordx16 s[16:31], s[0:1], 0')
    a(f's_load_dwordx4 s[32:35], s[0:1], 64')
    a(f's_load_dwordx2 s[36:37], s[0:1], 80')
    if DG: a(f's_memrealtime s[96:97]')
    if STAMPS:
        a(f's_memrealtime s[96:97]')
        a(f's_memtime s[100:101]')
    a(f'v_lshrrev_b32 v1, 6, v0')
    a(f'v_and_b32 v0, 63, v0')
    a(f'v_readfirstlane_b32 {s(S_W)}, v1')
    if env('LF', 0):
        a(f's_sub_u32 {s(S_W)}, {s(S_W)}, 4')
        a(f's_cselect_b32 {s(S_XCD)}, 12, 0')
        a(f's_add_u32 {s(S_W)}, {s(S_W)}, {s(S_XCD)}')
    a(f's_and_b32 {s(S_XCD)}, s2, 7')
    a(f's_lshr_b32 {s(S_R)}, s2, 3')
    a(f's_lshr_b32 {s(S_C)}, {s(S_R)}, 4')
    a(f's_lshl1_add_u32 {s(S_C)}, {s(S_XCD)}, {s(S_C)}')
    a(f's_and_b32 {s(S_J)}, {s(S_R)}, 15')
    a(f's_lshr_b32 {s(S_C64)}, {s(S_J)}, 3')
    a(f's_lshl1_add_u32 {s(S_C64)}, {s(S_C)}, {s(S_C64)}')
    a(f's_and_b32 {s(S_J8)}, {s(S_J)}, 7')
    if STAMPS:
        a(f's_waitcnt lgkmcnt(0)')
        a(f'v_writelane_b32 v{VST}, s96, 0')
        a(f'v_writelane_b32 v{VST}, s100, 1')
        St.n = 2
        stamp(a)
    a(f's_cmp_lt_u32 {s(S_W)}, 8')
    lcomp = a.newlabel('compute')
    if EB:
        a(f's_cbranch_scc0 {lld}')
        burst(a)
        a(f's_branch {lcomp}')
        a.label(lld)
    else: a(f's_cbranch_scc1 {lcomp}')
    n0 = St.n
    nl = loader(a)
    print('loader stamps', St.n, file=sys.stderr)
    a.label(lend)
    a('s_endpgm')
    a.label(lcomp)
    St.n = n0
    nc = compute(a)
    print('compute stamps', St.n, 'vgprs', nl, nc, file=sys.stderr)
    print('nops inserted', a.pad(), file=sys.stderr)
    desc = f'''.section .rodata,"a"
.p2align 6
.amdhsa_kernel {K}
  .amdhsa_next_free_vgpr 168
  .amdhsa_next_free_sgpr 102
  .amdhsa_accum_offset 168
  .amdhsa_group_segment_fixed_size 0
  .amdhsa_kernarg_size 88
  .amdhsa_user_sgpr_count 2
  .amdhsa_user_sgpr_kernarg_segment_ptr 1
  .amdhsa_system_sgpr_workgroup_id_x 1
.end_amdhsa_kernel
'''
    return head + a.text() + desc

if __name__ == '__main__':
    out = sys.argv[1] if len(sys.argv) > 1 else f'cdna_kernels/{NAME}.s'
    open(out, 'w').write(build())
```

```python
import sys, os, struct, math
sys.path.insert(0, os.path.dirname(os.path.abspath(__file__)))
from asmlib import Asm, Alloc, v, s

NAME = 'sequential_preLN__sliding_local_dilated__dense_activation_squared_relu__prompt'
def env(n, d): return int(os.environ.get(n, d))
STAMPS = env('STAMPS', 0)
ROT    = env('ROT', 3)
FORCE_SLOW = env('SLOW', 0)
D2, D3, D4 = env('D2', 8), env('D3', 16), env('D4', 8)
LA     = env('LA', 5)
PRIO   = env('PRIO', 3)
PRIO2  = env('PRIO2', 3)
SPF    = env('SPF', 0)
NB8    = env('NB8', 0)
N1A, N1B = env('N1A', 4), env('N1B', 1)
NSTG   = env('NSTG', 7)
HA     = env('HA', 6)
TH, T1, TW = env('TH', 4), env('T1', 4), env('TW', 0)
RO, R1, R2 = env('RO', 1), env('R1', 1), env('R2', 1)
X3E    = env('X3E', 0)
MB     = env('MB', 0)
OB     = os.environ.get('OB', '').replace('_', ' ')
PFH    = env('PFH', 0)
PF     = os.environ.get('PF', ',,,,,,').split(',')

WS_OF  = 0
WS_HF  = 4 << 20
WS_DF  = 8 << 20
WS_ST  = 16 << 20
WS_WO4 = 20 << 20
WS_W24 = WS_WO4 + (256 << 10)
WS_FL  = 28 << 20
FL_HELLO, FL_WO, FL_W2 = WS_FL + 1024, WS_FL + 4096, WS_FL + 8192
FL_1, FL_2, FL_3 = WS_FL + 16384, WS_FL + 32768, WS_FL + 49152
WS_TS = 29 << 20
WS_SIZE = 32 << 20

WROW  = 1056
XIMG  = 32 * WROW
SLOT  = XIMG + 10240
BLK, BLK1 = 8 * WROW + 2048, 12288
L_DUMP = 2 * SLOT
L_WO  = [SLOT + BLK * b for b in range(4)] + [135808, 146304] + [BLK * b for b in range(4)]
L_W1  = [BLK1 * b for b in range(7)] + [115456 + BLK1 * b for b in range(3)]
L_W2  = [BLK * b for b in (9, 10, 0, 1, 2, 3, 4, 5, 6, 7, 8, 11, 12, 13, 14)]
L_W2 += L_W2[:9]
L_X2, L_X4 = 9 * BLK, 7 * BLK
L_STAGE = 156800
L_CSP = L_STAGE
L_STAT = 160896
L_TAG = L_STAT + 640
L_B2  = L_TAG + 64
L_CS  = L_TAG + 256
DROW = 488
LDS_SIZE = 163840
SPIN = 1 << 16

S_PX, S_PWQKV, S_PWO, S_PBX, S_PW1, S_PB1, S_PW2, S_PB2 = 16, 18, 20, 22, 24, 26, 28, 30
S_POUT, S_PDBG, S_PWS = 32, 34, 36
SRD_WS, SRD_A, SRD_B, SRD_C = 4, 8, 12, 48
S_W, S_XCD, S_R, S_C, S_J, S_C64, S_J8, S_TAG, S_SAME, S_CNT = 38, 39, 40, 41, 42, 43, 44, 45, 46, 47
S_FREE = 52
S_LIM = 96
VLIM = 167 if STAMPS else 168
VST = 167
MFMA = 'v_mfma_f32_16x16x32_bf16'
MFMA32 = 'v_mfma_f32_32x32x16_bf16'

class St:
    n = 0
def stamp(a, real=False, sidx=None, cnt=1):
    if not STAMPS: return
    a(f'{"s_memrealtime" if real else "s_memtime"} s[98:99]')
    a('s_waitcnt lgkmcnt(0)')
    if sidx is None:
        a(f'v_writelane_b32 v{VST}, s98, {St.n}')
    else:
        a(f's_add_u32 m0, {s(sidx)}, {St.n}')
        a(f'v_writelane_b32 v{VST}, s98, m0')
    St.n += cnt
    assert St.n <= 64
stamp_ = stamp
def stamps_flush(a):
    if not STAMPS: return
    a('s_waitcnt vmcnt(0)')
    stamp(a); stamp(a, True)
    a(f'v_writelane_b32 v{VST}, {St.n}, 63')
    a(f's_mul_i32 s3, s2, 12')
    a(f's_add_u32 s3, s3, {s(S_W)}')
    a(f's_lshl_b32 s3, s3, 8')
    a(f's_add_u32 s3, s3, {WS_TS}')
    a('s_mov_b64 exec, -1')
    a('v_lshlrev_b32 v1, 2, v0')
    a(f'buffer_store_dword v{VST}, v1, {s(SRD_WS,4)}, s3 offen')

DG = os.environ.get('DG', '')
def mark(a, n):
    if DG == n:
        a('s_memrealtime s[98:99]')
        a('s_waitcnt lgkmcnt(0)')
def srd(a, dst, ptr, size):
    a(f's_mov_b32 {s(dst)}, {s(ptr)}')
    a(f's_and_b32 {s(dst+1)}, {s(ptr+1)}, 0xffff')
    a(f's_mov_b32 {s(dst+2)}, {size}')
    a(f's_mov_b32 {s(dst+3)}, 0x00020000')

def bf16r(a, x):
    a(f'v_cvt_pk_bf16_f32 {v(x)}, {v(x)}, {v(x)}')
    a(f'v_lshlrev_b32 {v(x)}, 16, {v(x)}')

def xg_reduce(a, xs, tmps, op):
    for sw in ('v_permlane32_swap_b32', 'v_permlane16_swap_b32'):
        for x, t in zip(xs, tmps): a(f'v_mov_b32 {v(t)}, {v(x)}')
        for x, t in zip(xs, tmps): a(f'{sw} {v(x)}, {v(t)}')
        for x, t in zip(xs, tmps): a(f'{op} {v(x)}, {v(x)}, {v(t)}')

def ln_stats(vsum, vsq, t0, raw=False):
    L = []
    a = L.append
    inv = 0x3ACCCCCD
    a(f'v_mul_f32 {v(vsum)}, {hex(inv)}, {v(vsum)}')
    a(f'v_mul_f32 {v(vsq)}, {hex(inv)}, {v(vsq)}')
    a(f'v_fma_f32 {v(vsq)}, -{v(vsum)}, {v(vsum)}, {v(vsq)}')
    a(f'v_max_f32 {v(vsq)}, 0, {v(vsq)}')
    bf16r(a, vsq)
    a(f'v_add_f32 {v(vsq)}, 0x3727C5AC, {v(vsq)}')
    bf16r(a, vsq)
    a(f'v_sqrt_f32 {v(vsq)}, {v(vsq)}')
    bf16r(a, vsum)
    bf16r(a, vsq)
    a(f'v_rcp_f32 {v(t0)}, {v(vsq)}')
    if raw: return L
    a(f'v_mul_f32 {v(vsq)}, {v(vsum)}, {v(t0)}')
    a(f'v_mov_b32 {v(vsum)}, {v(t0)}')
    return L

DEFER = []
def dual(a, lines, bit=0):
    if env('SD', 7) & bit:
        for x in lines: a(x.replace('@', ' sc1'))
        return
    ls, lj = a.newlabel('slow'), a.newlabel('join')
    a(f's_cmp_eq_u32 {s(S_SAME)}, 0')
    a(f's_cbranch_scc1 {ls}')
    for x in lines: a(x.replace('@', os.environ.get('SB', '').replace('_', ' ')))
    a.label(lj)
    DEFER.append((ls, lj, [x.replace('@', ' sc1') for x in lines]))

def publish(a, vT, sFlag):
    a(f'v_mov_b32 {v(vT)}, {s(S_TAG)}')
    a(f's_mov_b64 exec, 1')
    a(f's_waitcnt vmcnt(0)')
    dual(a, [f'buffer_store_dword {v(vT)}, off, {s(SRD_WS,4)}, {s(sFlag)}@'])
    a(f's_mov_b64 exec, -1')

def poll0(a, vF, vOff, sOff):
    if env('PP', 1): a(f'buffer_load_dword {v(vF)}, {v(vOff)}, {s(SRD_WS,4)}, {s(sOff)} offen sc1')
def poll(a, vF, vOff, sOff, vG=None):
    lp, ld = a.newlabel('poll'), a.newlabel('polld')
    if vG is not None and env('PP', 1):
        ldf = lambda r: a(f'buffer_load_dword {v(r)}, {v(vOff)}, {s(SRD_WS,4)}, {s(sOff)} offen sc1')
        a(f's_mov_b32 {s(S_CNT)}, {SPIN}')
        a.label(lp)
        for x, y in ((vG, vF), (vF, vG)):
            ldf(x)
            a(f's_waitcnt vmcnt(1)')
            a(f'v_cmp_ne_u32 vcc, {s(S_TAG)}, {v(y)}')
            a(f's_cmp_eq_u64 vcc, 0')
            a(f's_cbranch_scc1 {ld}')
        a(f's_sub_u32 {s(S_CNT)}, {s(S_CNT)}, 1')
        a(f's_cbranch_scc0 {lp}')
        a.label(ld)
        return
    a(f's_mov_b32 {s(S_CNT)}, {SPIN}')
    a.label(lp)
    a(f'buffer_load_dword {v(vF)}, {v(vOff)}, {s(SRD_WS,4)}, {s(sOff)} offen sc1')
    a(f's_sub_u32 {s(S_CNT)}, {s(S_CNT)}, 1')
    a(f's_cbranch_scc1 {ld}')
    a(f's_waitcnt vmcnt(0)')
    a(f'v_cmp_ne_u32 vcc, {s(S_TAG)}, {v(vF)}')
    a(f's_cmp_lg_u64 vcc, 0')
    a(f's_cbranch_scc1 {lp}')
    a.label(ld)

TABS = {
 1: [list(range(10))] * 4,
 2: [list(range(10)), [5,6,7,8,9,0,1,2,3,4]] * 2,
 3: [[0,1,4,2,3,5,8,6,7,9], [0,2,1,3,6,4,5,7,9,8], [1,0,2,5,3,4,6,9,7,8], [1,3,0,2,4,7,5,6,8,9]],
 4: [[0,1,2,3,4,5,6,7,8,9], [1,2,3,0,5,6,7,4,9,8], [2,3,0,1,6,7,4,5,8,9], [3,0,1,2,7,4,5,6,9,8]],
 5: [[0,1,2,5,3,4,6,9,7,8], [0,2,1,3,6,4,5,7,8,9], [0,3,1,2,5,7,4,6,8,9], [0,1,4,2,3,5,8,6,7,9]],
}
def ord_init(a, sOrd, sT, inv=False):
    tab = [sum((i << (4 * c)) if inv else (c << (4 * i)) for i, c in enumerate(r)) for r in TABS[ROT]]
    a(f's_add_u32 {s(sT)}, {s(S_C64)}, {s(S_J8)}')
    a(f's_and_b32 {s(sT)}, {s(sT)}, 3')
    a(f's_mov_b32 {s(sOrd)}, {hex(tab[0] & 0xffffffff)}')
    a(f's_mov_b32 {s(sOrd+1)}, {hex(tab[0] >> 32)}')
    for q in range(1, 4):
        a(f's_cmp_eq_u32 {s(sT)}, {q}')
        a(f's_cselect_b32 {s(sOrd)}, {hex(tab[q] & 0xffffffff)}, {s(sOrd)}')
        a(f's_cselect_b32 {s(sOrd+1)}, {hex(tab[q] >> 32)}, {s(sOrd+1)}')
def ord_next(sOrd, dst, sT2):
    return [f's_and_b32 {s(dst)}, {s(sOrd)}, 15',
            f's_add_u32 {s(dst)}, {s(dst)}, {s(S_XCD)}',
            f's_sub_u32 {s(sT2)}, {s(dst)}, 10',
            f's_cselect_b32 {s(dst)}, {s(dst)}, {s(sT2)}',
            f's_lshr_b64 {s(sOrd,2)}, {s(sOrd,2)}, 4']

def nonce_load(a):
    a(f's_mov_b32 {s(S_TAG)}, {WS_FL}')
    a(f's_load_dword {s(S_TAG)}, {s(S_PWS,2)}, {s(S_TAG)}')
def nonce_to_tag(a):
    a(f's_and_b32 {s(S_TAG)}, {s(S_TAG)}, 0xfffffff8')
    a(f's_add_u32 {s(S_TAG)}, {s(S_TAG)}, 8')

def tr_patterns(a, vF, vH, t):
    a(f'v_bfe_u32 {v(t)}, v0, 2, 3')
    a(f'v_mul_u32_u24 {v(vF)}, {WROW}, {v(t)}')
    a(f'v_lshrrev_b32 {v(t)}, 5, v0')
    a(f'v_lshl_add_u32 {v(vF)}, {v(t)}, 7, {v(vF)}')
    if vH is not None:
        a(f'v_lshlrev_b32 {v(vH)}, 8, {v(t)}')
        a(f'v_bfe_u32 {v(t)}, v0, 4, 1')
        a(f'v_mul_u32_u24 {v(t)}, {WROW}, {v(t)}')
        a(f'v_add_u32 {v(vH)}, {v(t)}, {v(vH)}')
        a(f'v_bfe_u32 {v(t)}, v0, 2, 2')
        a(f'v_lshl_add_u32 {v(vH)}, {v(t)}, 6, {v(vH)}')
    a(f'v_and_b32 {v(t)}, 3, v0')
    a(f'v_lshl_add_u32 {v(vF)}, {v(t)}, 3, {v(vF)}')
    if vH is not None: a(f'v_lshl_add_u32 {v(vH)}, {v(t)}, 3, {v(vH)}')

class Cnt:
    def __init__(self, cap): self.q, self.cap, self.alias = [], cap, {}
    def add(self, tag, n=1): self.q += [tag] * n
    def after(self, pred):
        if not callable(pred): pred = self.alias.get(pred, pred)
        f = pred if callable(pred) else (lambda t: t == pred)
        idx = [i for i, t in enumerate(self.q) if f(t)]
        return min(len(self.q) - 1 - idx[-1], self.cap)

def w2_off(a, k, sQ6, sA, sB, sFb):
    if R2:
        a(f's_add_u32 {s(sA)}, {s(sQ6)}, {k}')
        a(f's_sub_u32 {s(sB)}, {s(sA)}, 24')
        a(f's_cselect_b32 {s(sA)}, {s(sA)}, {s(sB)}')
        a(f's_lshl_b32 {s(sB)}, {s(sA)}, 10')
        a(f's_mul_i32 {s(sA)}, {s(sA)}, {32*1280}')
        a(f's_add_u32 {s(sB)}, {s(sB)}, {s(sFb)}')
    else:
        a(f's_mov_b32 {s(sA)}, {32*k*1280}')
        a(f's_add_u32 {s(sB)}, {s(sFb)}, {k*1024}')
def row_pat(a, P, c1, c2, c3, rs, scol, t0, t1, t2, t3, dma=True):
    a(f'v_mul_u32_u24 {v(P[0])}, {c1*rs}, {v(t1)}')
    a(f'v_mul_u32_u24 {v(P[1])}, {c2*rs}, {v(t2)}')
    a(f'v_add3_u32 {v(P[0])}, {v(P[0])}, {v(P[1])}, {v(t0)}')
    a(f'v_mul_u32_u24 {v(P[1])}, {c3*rs}, {v(t3)}')
    a(f'v_add3_u32 {v(P[0])}, {v(P[0])}, {v(P[1])}, {s(scol)}')
    if dma: a(f'v_add_u32 {v(P[1])}, {rs - WROW}, {v(P[0])}')
def row_bits(a, sL, sT, sT2, t0, t1, t2, t3):
    a(f's_lshr_b32 {s(sT)}, {s(S_J8)}, 2')
    a(f's_add_u32 {s(sT)}, {s(sT)}, {s(S_J8)}')
    a(f's_lshl_b32 {s(sT)}, {s(sT)}, 7')
    a(f'v_and_b32 {v(t0)}, 7, v0')
    a(f'v_lshlrev_b32 {v(t0)}, 4, {v(t0)}')
    a(f'v_lshrrev_b32 {v(t1)}, 5, v0')
    a(f'v_bfe_u32 {v(t2)}, v0, 4, 1')
    a(f'v_bfe_u32 {v(t3)}, v0, 3, 1')
    a(f's_mul_i32 {s(sT2)}, {s(sL)}, 2560')
    a(f's_add_u32 {s(sT2)}, {s(sT2)}, {s(sT)}')

class Base:
    def __init__(self, a, regs, cur): self.a, self.regs, self.cur = a, regs, cur
    def off(self, addr, span):
        if not (self.cur <= addr and addr + span - self.cur <= 65536):
            for r in self.regs: self.a(f'v_add_u32 {v(r)}, {hex((addr - self.cur) & 0xffffffff)}, {v(r)}')
            self.cur = addr
        return addr - self.cur

import re
def scc_cuts(L):
    rd = lambda x: re.match(r's_(cselect|cbranch_scc|addc|subb|cmov)', x)
    wr = lambda x: x.startswith('s_') and not re.match(r's_(mov|mul_i32|cselect|cmov|waitcnt|nop|getreg|setprio)', x)
    ok = [True] * (len(L) + 1)
    live = False
    for i in range(len(L) - 1, -1, -1):
        if rd(L[i]): live = True
        elif wr(L[i]): live = False
        ok[i] = not live
    return ok

def claim(a, m, q, sL, sA, sB, vD, vL16):
    off = 0
    if m == 'D':
        a(f's_lshl2_add_u32 {s(sA)}, {s(S_C)}, {s(sL)}')
        a(f's_lshl_b32 {s(sA)}, {s(sA)}, 5')
        a(f's_add_u32 {s(sA)}, {s(sA)}, {s(S_J)}')
        a(f's_mul_i32 {s(sA)}, {s(sA)}, 3072')
        a(f's_add_u32 {s(sA)}, {s(sA)}, {WS_DF + 49152 * (q // 3)}')
        off = 1024 * (q % 3); assert q < 6
    elif m == 'S':
        a(f's_lshl2_add_u32 {s(sA)}, {s(S_C64)}, {s(sL)}')
        a(f's_lshl3_add_u32 {s(sA)}, {s(sA)}, {s(S_J8)}')
        a(f's_lshl_b32 {s(sA)}, {s(sA)}, 7')
        a(f's_add_u32 {s(sA)}, {s(sA)}, {WS_ST}')
        a(f's_mov_b64 exec, 0xff'); assert q < 1
    else:
        assert q < 3
        a(f's_lshl2_add_u32 {s(sA)}, {s(S_C64)}, {s(sL)}')
        a(f's_mul_i32 {s(sA)}, {s(sA)}, 40')
        a(f's_and_b32 {s(sB)}, {s(S_J8)}, 4')
        if q < 2:
            a(f's_lshl2_add_u32 {s(sA)}, {s(S_J8)}, {s(sA)}')
            a(f's_add_u32 {s(sA)}, {s(sA)}, {s(sB)}')
            off = 1024 * q
        else:
            a(f's_lshl2_add_u32 {s(sA)}, {s(sB)}, {s(sA)}')
            a(f's_add_u32 {s(sA)}, {s(sA)}, {s(S_J8)}')
            a(f's_add_u32 {s(sA)}, {s(sA)}, 16')
            a(f's_mov_b32 exec_hi, 0')
        a(f's_lshl_b32 {s(sA)}, {s(sA)}, 9')
        if m == 'H': a(f's_add_u32 {s(sA)}, {s(sA)}, {WS_HF}')
    if env('CLD', 1): a(f'buffer_load_dwordx4 {v(vD,4)}, {v(vL16)}, {s(SRD_WS,4)}, {s(sA)} offen offset:{off} sc1')
    else: a(f'buffer_store_dwordx4 {v(vD,4)}, {v(vL16)}, {s(SRD_WS,4)}, {s(sA)} offen offset:{off} sc1')
    a('s_mov_b64 exec, -1')

SS = env('SS', 64)
def region(m, sL, sA, sB, nw):
    L = []
    a = L.append
    if m in 'oab':
        ptr, nb = {'o': (S_PWO, 640 * 1280), 'a': (S_PW1, 640 * 3072), 'b': (S_PW2, 1536 * 1280)}[m]
        P = -(-nb // (128 * 256 * nw)) * 128
        a(f's_mul_i32 {s(sA)}, s2, {nw}')
        a(f's_add_u32 {s(sA)}, {s(sA)}, {s(sL)}')
        a(f's_mul_i32 {s(sA)}, {s(sA)}, {P}')
        a(f's_min_u32 {s(sA)}, {s(sA)}, {nb - P}')
        return [(L, ptr, list(range(0, P, SS)))]
    if m == 'U':
        a(f's_mul_i32 {s(sA)}, {s(S_C64)}, {64*1280}')
        return [(L, S_POUT, [0])]
    if m == 'T':
        return [(r[0], r[1], [0]) for x in 'OHDS' for r in region(x, sL, sA, sB, nw)[:1]]
    if m == 'x':
        a(f's_lshl3_add_u32 {s(sA)}, {s(S_C64)}, {s(S_J8)}')
        a(f's_lshl3_add_u32 {s(sA)}, {s(sA)}, {s(sL)}')
        a(f's_mul_i32 {s(sA)}, {s(sA)}, 1280')
        return [(L, S_PX, list(range(0, 1280, SS)))]
    R = []
    for q, nb in {'D': ((0, 3072), (3, 3072)), 'S': ((0, 128),), 'O': ((0, 2048), (2, 512)), 'H': ((0, 2048), (2, 512))}[m]:
        L = []
        claim(L.append, m, q, sL, sA, sB, 0, 0)
        R.append(([x for x in L if 'exec' not in x and 'buffer' not in x], S_PWS, list(range(0, nb, SS))))
    return R
class Touch:
    def __init__(self, a, spec, sL, sA, sB, sJ, nw):
        self.a, self.sA, self.sJ = a, sA, sJ
        self.q = [r for m in spec for r in region(m, sL, sA, sB, nw)]
    def go(self, n):
        while n and self.q:
            L, ptr, offs = self.q[0]
            for x in L: self.a(x)
            while n and offs:
                self.a(f's_load_dword {s(self.sJ)}, {s(ptr,2)}, {s(self.sA)} offset:{offs.pop(0)}'); n -= 1
            if not offs: self.q.pop(0)

STG = list(range(env('ST0', 11), env('ST0', 11) + NSTG))
YB = [int(x) for x in os.environ.get('YB', '2,6,14,20').split(',')]
YI, _lo = [], 11
for _j in range(len(YB)):
    _hi = min(15 + (YB[_j-1] if _j else 0), 24)
    _kw = YB[_j+1] if _j + 1 < len(YB) else 23
    assert _kw < _hi
    YI.append((_lo, _hi, _kw)); _lo = _hi

def loader(a):
    stamp = stamp_
    sa = Alloc('s', S_FREE, S_LIM)
    va = Alloc('v', 1, VLIM)
    sL, sT, sT2, sI, sOffW, sOffX, sMW, sMX, sMH, sSlot, sXm = [sa() for _ in range(11)]
    sOrd = sa(2); sHm = sa(2)
    SRD_D = sa(4)
    vL16 = va()
    t0, t1, t2, t3 = va(), va(), va(), va()
    pA, pB, pC = [[va(), va()] for _ in range(3)]
    pD, pE, vWf, vWh, vB1, vCp = [va() for _ in range(6)]
    vDm = va(4, 2)
    selF, selH, accC = va(4, 2), va(4, 2), va(4, 2)
    u0 = va.n
    stg = [va(4, 2) for _ in range(30)]
    va.release(u0)
    vW = [va() for _ in range(8)]
    vX = [va() for _ in range(3)]
    vN, vF, vFo, vU, vTg = va(), va(), va(), va(), va()
    sPf = sa()
    WMASK = '0x3fffffff'
    if PRIO: a(f's_setprio {PRIO}')
    a(f's_sub_u32 {s(sL)}, {s(S_W)}, 8')
    a(f'v_lshrrev_b32 {v(t0)}, 3, v0')
    a(f'v_lshrrev_b32 {v(t1)}, 4, v0')
    a(f'v_and_b32 {v(t2)}, 7, v0')
    a(f'v_xor_b32 {v(t1)}, {v(t1)}, {v(t2)}')
    a(f's_lshr_b32 {s(sT)}, {s(sL)}, 1')
    a(f's_lshl_b32 {s(sT2)}, {s(S_C64)}, 6')
    a(f's_add_u32 {s(sT2)}, {s(sT2)}, {s(sT)}')
    a(f's_and_b32 {s(sT)}, {s(sL)}, 1')
    a(f's_lshl3_add_u32 {s(sMH)}, {s(sT)}, {s(sT2)}')
    a(f's_sub_u32 {s(sMH)}, {s(sMH)}, 16')
    a(f's_lshl_b32 {s(sT)}, {s(sT)}, 5')
    a(f's_add_u32 {s(sT2)}, {s(sT2)}, {s(sT)}')
    a(f'v_lshl_add_u32 {v(t2)}, {v(t0)}, 1, {s(sT2)}')
    a(f'v_lshl_add_u32 {v(t3)}, {v(t0)}, 1, {s(sMH)}')
    a(f'v_mul_u32_u24 {v(t2)}, 1280, {v(t2)}')
    a(f'v_max_i32 {v(t3)}, 0, {v(t3)}')
    a(f'v_lshl_add_u32 {v(vX[0])}, {v(t1)}, 4, {v(t2)}')
    a(f'v_mul_u32_u24 {v(t3)}, 1280, {v(t3)}')
    a(f'v_xor_b32 {v(vX[1])}, 64, {v(vX[0])}')
    a(f's_lshl_b32 {s(sT)}, {s(sL)}, 1')
    a(f'v_xor_b32 {v(t1)}, {s(sT)}, {v(t1)}')
    a(f'v_add_u32 {v(vX[1])}, {16*1280 - 1024}, {v(vX[1])}')
    a(f'v_lshl_add_u32 {v(vX[2])}, {v(t1)}, 4, {v(t3)}')
    a(f's_cmp_eq_u32 {s(sL)}, 0')
    a(f's_cselect_b32 {s(sXm)}, 0xffffff00, -1')
    a(f's_lshl_b32 {s(sMX)}, {s(sL)}, 11')
    a(f's_add_u32 {s(sMX)}, {s(sMX)}, {XIMG}')
    a(f's_lshl_b32 {s(sMH)}, {s(sL)}, 9')
    a(f's_add_u32 {s(sMH)}, {s(sMH)}, {XIMG + 8192}')
    ord_init(a, sOrd, sT)
    nxt = ord_next(sOrd, sOffX, sOffW) + [f's_mul_i32 {s(sOffW)}, {s(sOffX)}, {64*3840}', f's_lshl_b32 {s(sOffX)}, {s(sOffX)}, 7']
    for x in nxt: a(x)
    a(f'v_and_b32 {v(t0)}, 31, v0')
    a(f'v_lshrrev_b32 {v(t1)}, 5, v0')
    a(f'v_mul_u32_u24 {v(t2)}, 26, {v(t0)}')
    a(f'v_lshrrev_b32 {v(t2)}, 8, {v(t2)}')
    a(f'v_mul_u32_u24 {v(t2)}, 1120, {v(t2)}')
    a(f'v_lshl_add_u32 {v(t2)}, {v(t0)}, 4, {v(t2)}')
    a(f'v_mul_u32_u24 {v(t3)}, {32*3840}, {v(t1)}')
    a(f's_mul_i32 {s(sT)}, {s(S_J8)}, 160')
    a(f's_mul_i32 {s(sT2)}, {s(sL)}, {8*3840}')
    a(f's_add_u32 {s(sT)}, {s(sT)}, {s(sT2)}')
    a(f'v_add3_u32 {v(vW[0])}, {v(t2)}, {v(t3)}, {s(sT)}')
    for i in range(1, 8):
        a(f'v_add_u32 {v(vW[i])}, {i*3840 - (i&3)*WROW}, {v(vW[0])}')
    a(f's_lshr_b32 {s(sMW)}, {s(sL)}, 1')
    a(f's_lshl_b32 {s(sMW)}, {s(sMW)}, 2')
    a(f's_and_b32 {s(sT2)}, {s(sL)}, 1')
    a(f's_add_u32 {s(sMW)}, {s(sMW)}, {s(sT2)}')
    a(f's_mul_i32 {s(sMW)}, {s(sMW)}, {4*WROW}')
    a(f's_mov_b32 {s(sSlot)}, 0')
    a(f's_waitcnt lgkmcnt(0)')
    srd(a, SRD_B, S_PX, 2048 * 1280)
    srd(a, SRD_A, S_PWQKV, 640 * 3840)

    def chunk_dma():
        P = []
        P.append([f's_add_u32 m0, {s(sSlot)}, {s(sMX)}', 's_mov_b64 exec, -1',
                  f'buffer_load_dwordx4 {v(vX[0])}, {s(SRD_B,4)}, {s(sOffX)} offen lds',
                  f'buffer_load_dwordx4 {v(vX[1])}, {s(SRD_B,4)}, {s(sOffX)} offen offset:1024 lds',
                  f's_add_u32 m0, {s(sSlot)}, {s(sMH)}', f's_mov_b32 exec_lo, {s(sXm)}', 's_mov_b32 exec_hi, 0',
                  f'buffer_load_dwordx4 {v(vX[2])}, {s(SRD_B,4)}, {s(sOffX)} offen lds'])
        P.append([f's_add_u32 m0, {s(sSlot)}, {s(sMW)}', f's_mov_b32 exec_lo, {WMASK}', f's_mov_b32 exec_hi, {WMASK}'])
        for i in range(8):
            p = []
            if i == 4: p += [f's_add_u32 m0, m0, {8*WROW}', 's_nop 0']
            p.append(f'buffer_load_dwordx4 {v(vW[i])}, {s(SRD_A,4)}, {s(sOffW)} offen offset:{(i&3)*WROW} lds')
            P.append(p)
        P.append(['s_mov_b64 exec, -1'] + nxt + [f's_add_u32 {s(sSlot)}, {s(sSlot)}, {SLOT}',
                  f's_cmp_eq_u32 {s(sSlot)}, {3*SLOT}',
                  f's_cselect_b32 {s(sSlot)}, 0, {s(sSlot)}'])
        return P
    NCH = 11
    Q0, Q1, Q2 = env('Q0', 5), env('Q1', 7), env('Q2', 9)
    qn = lambda q: q + 2 if q else 0
    fillq = []
    def emit(lo, hi, per=0):
        P = chunk_dma()
        wm = P[1][1:]
        for q in range(lo, hi):
            if q == 0:
                for x in P[0]: a(x)
            else:
                if q == 1 or q == lo:
                    for x in P[1]: a(x)
                    if q > 5: a(f's_add_u32 m0, m0, {8*WROW}'); a('s_nop 0')
                for x in P[q + 1]: a(x)
            if per and fillq:
                a('s_mov_b64 exec, -1')
                n = per
                ok = scc_cuts(fillq)
                while n < len(fillq) and not ok[n]: n += 1
                for x in fillq[:n]: a(x)
                del fillq[:n]
                if 0 < q < hi - 1:
                    for x in wm: a(x)
        if hi == 9 and lo < 9:
            for x in P[-1]: a(x)
        else: a('s_mov_b64 exec, -1')
    stamp(a)
    emit(0, 9)
    stamp(a)
    nonce_load(a)
    emit(0, Q0)
    stamp(a)
    real_a, unit = a, []
    class LB_:
        def __call__(self, x): unit.append(x)
        def label(self, l): unit.append(l + ':')
        def newlabel(self, x): return real_a.newlabel(x)
    a = LB_()
    sBase, sG, sJs, sD, sFlag = [sa() for _ in range(5)]
    l_w2, l_go, l_no = a.newlabel('cw2'), a.newlabel('cgo'), a.newlabel('cno')
    srd(a, SRD_C, S_PWO, 640 * 1280)
    srd(a, SRD_D, S_PW2, 1536 * 1280)
    a(f's_cmp_ge_u32 s2, 136')
    a(f's_cbranch_scc1 {l_no}')
    a(f's_and_b32 {s(sD)}, s2, 1')
    a(f's_lshl2_add_u32 {s(sFlag)}, {s(sD)}, {s(sL)}')
    a(f's_mul_i32 {s(sD)}, {s(sD)}, 640')
    a(f'v_and_b32 {v(t0)}, 7, v0')
    a(f'v_lshlrev_b32 {v(t0)}, 4, {v(t0)}')
    a(f'v_add3_u32 {v(t0)}, {v(t0)}, {s(sD)}, 64')
    a(f'v_lshrrev_b32 {v(t1)}, 5, v0')
    a(f'v_bfe_u32 {v(t2)}, v0, 3, 2')
    a(f's_lshl_b32 {s(sT)}, {s(sL)}, 10')
    a(f's_add_u32 m0, {s(sT)}, {L_STAGE - 448}')
    a(f's_cmp_ge_u32 s2, 40')
    a(f's_cbranch_scc1 {l_w2}')
    a(f's_lshr_b32 {s(sT)}, s2, 1')
    a(f's_cmp_ge_u32 {s(sT)}, 10')
    a(f's_cselect_b32 {s(sT2)}, 10, 0')
    a(f's_cselect_b32 {s(sBase)}, 320, 0')
    a(f's_sub_u32 {s(sT2)}, {s(sT)}, {s(sT2)}')
    a(f's_mul_i32 {s(sG)}, {s(sT2)}, 40')
    a(f's_mul_i32 {s(sJs)}, {s(sT2)}, 160')
    a(f's_sub_u32 {s(sJs)}, {s(sJs)}, {8*160-16}')
    a(f's_cmp_lt_u32 {s(sT2)}, 8')
    a(f's_cselect_b32 {s(sG)}, {s(sG)}, {s(sJs)}')
    a(f's_cselect_b32 {s(sJs)}, 4, 40')
    a(f's_add_u32 {s(sBase)}, {s(sBase)}, {s(sG)}')
    a(f's_mul_i32 {s(sJs)}, {s(sJs)}, {s(sL)}')
    a(f's_add_u32 {s(sBase)}, {s(sBase)}, {s(sJs)}')
    a(f's_mul_i32 {s(sBase)}, {s(sBase)}, 1280')
    a(f'v_mad_u32_u24 {v(t1)}, {v(t1)}, 20, {v(t2)}')
    a(f'v_mul_u32_u24 {v(t1)}, 1280, {v(t1)}')
    a(f'v_add_u32 {v(t0)}, {v(t0)}, {v(t1)}')
    a(f'buffer_load_dwordx4 {v(t0)}, {s(SRD_C,4)}, {s(sBase)} offen offset:448 lds')
    a(f's_mul_i32 {s(sD)}, {s(sFlag)}, 20')
    a(f's_add_u32 {s(sD)}, {s(sD)}, {WS_WO4 >> 10}')
    a(f's_lshl_b32 {s(sFlag)}, {s(sFlag)}, 7')
    a(f's_add_u32 {s(sFlag)}, {s(sFlag)}, {FL_WO}')
    a(f's_branch {l_go}')
    a.label(l_w2)
    a(f's_sub_u32 {s(sT)}, s2, 40')
    a(f's_lshr_b32 {s(sT)}, {s(sT)}, 1')
    a(f's_and_b32 {s(sG)}, {s(sL)}, 2')
    a(f's_add_u32 {s(sG)}, {s(sG)}, {s(sL)}')
    a(f's_lshl3_add_u32 {s(sBase)}, {s(sT)}, {s(sG)}')
    a(f's_mul_i32 {s(sBase)}, {s(sBase)}, {4*1280}')
    a(f'v_lshl_add_u32 {v(t1)}, {v(t1)}, 3, {v(t2)}')
    a(f'v_mul_u32_u24 {v(t1)}, 1280, {v(t1)}')
    a(f'v_add_u32 {v(t0)}, {v(t0)}, {v(t1)}')
    a(f'buffer_load_dwordx4 {v(t0)}, {s(SRD_D,4)}, {s(sBase)} offen offset:448 lds')
    a(f's_mul_i32 {s(sD)}, {s(sFlag)}, 48')
    a(f's_add_u32 {s(sD)}, {s(sD)}, {WS_W24 >> 10}')
    a(f's_lshl_b32 {s(sFlag)}, {s(sFlag)}, 8')
    a(f's_add_u32 {s(sFlag)}, {s(sFlag)}, {FL_W2}')
    a.label(l_go)
    a(f's_lshl2_add_u32 {s(sFlag)}, {s(sT)}, {s(sFlag)}')
    a(f's_add_u32 {s(sD)}, {s(sD)}, {s(sT)}')
    a(f's_lshl_b32 {s(sD)}, {s(sD)}, 10')
    a.label(l_no)
    a = real_a
    fS = [[va(4, 4) for st in range(2)] for tl in range(2)]
    accG = [va(4, 4) for _ in range(2)]; accS = [va(4, 4) for _ in range(2)]
    vOne = va(4, 4)
    vS = [va(), va()]; vSh = [va(), va()]
    F = va(8, 4)
    sFo, sRd = sa(), sa()
    p1hi = va.n
    a(f'v_and_b32 {v(t0)}, 15, v0')
    a(f'v_lshrrev_b32 {v(t1)}, 4, v0')
    a(f'v_lshrrev_b32 {v(t2)}, 1, {v(t0)}')
    a(f'v_xor_b32 {v(t2)}, {v(t2)}, {v(t1)}')
    a(f'v_lshlrev_b32 {v(t2)}, 4, {v(t2)}')
    a(f'v_lshl_add_u32 {v(t2)}, {v(t0)}, 7, {v(t2)}')
    a(f'v_add_u32 {v(vS[0])}, {s(sMX)}, {v(t2)}')
    a(f'v_add_u32 {v(vSh[0])}, {XIMG + 8192}, {v(t2)}')
    a(f'v_xor_b32 {v(vS[1])}, 64, {v(vS[0])}')
    a(f'v_xor_b32 {v(vSh[1])}, 64, {v(vSh[0])}')
    for r in range(4): a(f'v_mov_b32 {v(vOne+r)}, 0x3f803f80')
    a(f's_mov_b32 {s(sRd)}, 0')
    def stat_reads():
        for st in range(2): a(f'ds_read_b128 {v(fS[0][st],4)}, {v(vS[st])}')
        for st in range(2): a(f'ds_read_b128 {v(fS[1][st],4)}, {v(vSh[st])}')
    def stat_mfma(first=False, last=False):
        if not last:
            a(f's_add_u32 {s(sRd)}, {s(sRd)}, {SLOT}')
            a(f's_cmp_eq_u32 {s(sRd)}, {3*SLOT}')
            a(f's_cselect_b32 {s(sRd)}, 0, {s(sRd)}')
            a(f's_movk_i32 {s(sI)}, {SLOT//16}'); a(f's_cmovk_i32 {s(sI)}, {(-2*SLOT//16) & 0xffff}'); a(f's_mul_i32 {s(sI)}, {s(sI)}, 16')
            for r in vS + vSh: a(f'v_add_u32 {v(r)}, {s(sI)}, {v(r)}')
        a(f's_waitcnt lgkmcnt(0)')
        for st in range(2):
            for tl in range(2):
                z = first and st == 0
                a(f'{MFMA} {v(accG[tl],4)}, {v(fS[tl][st],4)}, {v(fS[tl][st],4)}, {"0" if z else v(accG[tl],4)}')
                a(f'{MFMA} {v(accS[tl],4)}, {v(vOne,4)}, {v(fS[tl][st],4)}, {"0" if z else v(accS[tl],4)}')
    def put_unit():
        for x in unit:
            if x.endswith(':'): a.label(x[:-1])
            else: a(x)
    UE = env('UE', 1)
    if UE:
        lu = a.newlabel('ue')
        unit.insert(-1, f's_branch {lu}')
        put_unit()
        a(f's_waitcnt vmcnt({qn(Q0)})')
        a.label(lu)
    a(f's_waitcnt vmcnt({qn(Q0) + UE}) lgkmcnt(0)')
    stamp(a)
    a(f's_barrier')
    stat_reads()
    emit(Q0, 9)
    if not UE: put_unit()
    late = []
    real_a, a = a, late.append
    srd(a, SRD_WS, S_PWS, WS_SIZE)
    a(f'v_lshlrev_b32 {v(vL16)}, 4, v0')
    a(f'v_lshrrev_b32 {v(t0)}, 4, v0')
    a(f'v_lshlrev_b32 {v(t0)}, 10, {v(t0)}')
    a(f'v_bfe_u32 {v(t1)}, v0, 2, 2')
    a(f'v_lshl_add_u32 {v(t0)}, {v(t1)}, 7, {v(t0)}')
    a(f'v_and_b32 {v(t1)}, 3, v0')
    a(f'v_lshl_add_u32 {v(t0)}, {v(t1)}, 3, {v(t0)}')
    a(f's_lshl_b32 {s(sT)}, {s(sL)}, 5')
    a(f's_add_u32 {s(sT)}, {s(sT)}, {L_STAGE}')
    a(f'v_add_u32 {v(vU)}, {s(sT)}, {v(t0)}')
    a(f'v_mov_b32 {v(vTg)}, {L_TAG}')
    nonce_to_tag(a)
    a(f'v_mov_b32 {v(vN)}, {s(S_TAG)}')
    SRD_E = S_PX
    srd(a, SRD_E, S_PW1, 640 * 3072)
    nearly = len(late)
    a(f's_lshl_b32 {s(sFo)}, {s(S_J8)}, 8')
    a(f's_add_u32 {s(sFo)}, {s(sFo)}, {FL_W2}')
    a(f's_mov_b32 {s(sT2)}, 47')
    a(f's_lshl_b32 {s(sT)}, {s(S_J8)}, 7')
    a(f's_add_u32 {s(sT)}, {s(sT)}, {FL_WO}')
    a(f's_cmp_eq_u32 {s(sL)}, 1')
    a(f's_cselect_b32 {s(sFo)}, {s(sT)}, {s(sFo)}')
    a(f's_cselect_b32 {s(sT2)}, 19, {s(sT2)}')
    a(f's_lshl_b32 {s(sT)}, {s(S_C)}, 6')
    a(f's_add_u32 {s(sT)}, {s(sT)}, {FL_HELLO}')
    a(f's_cmp_eq_u32 {s(sL)}, 0')
    a(f's_cselect_b32 {s(sFo)}, {s(sT)}, {s(sFo)}')
    a(f's_cselect_b32 {s(sT2)}, 15, {s(sT2)}')
    a(f'v_min_u32 {v(vFo)}, {s(sT2)}, v0')
    a(f'v_lshlrev_b32 {v(vFo)}, 2, {v(vFo)}')
    sM2, sMf, sFo4, sF24, sQ2, sQ6, sR1 = sBase, sG, sJs, sa(), sa(), sa(), sa()
    row_bits(a, sL, sT, sT2, t0, t1, t2, t3)
    row_pat(a, pA, 320, 20, 8, 1280, sT2, t0, t1, t2, t3)
    row_pat(a, pC, 768, 8, 16, 1280, sT2, t0, t1, t2, t3)
    a(f's_lshr_b32 {s(sT)}, {s(sL)}, 1')
    a(f's_sub_u32 {s(sHm)}, {s(sT)}, 1')
    a(f's_not_b32 {s(sHm+1)}, {s(sHm)}')
    a(f's_mul_i32 {s(sT)}, {s(sT)}, {36*1280}')
    a(f's_add_u32 {s(sT2)}, {s(sT2)}, {s(sT)}')
    a(f's_add_u32 {s(sT2)}, {s(sT2)}, {16*1280}')
    row_pat(a, pB, 320, 20, 80, 1280, sT2, t0, t1, t2, t3)
    a(f's_mul_i32 {s(sT)}, {s(S_J)}, 192')
    a(f's_mul_i32 {s(sT2)}, {s(sL)}, {16*3072}')
    a(f's_add_u32 {s(sT)}, {s(sT)}, {s(sT2)}')
    a(f's_bitcmp1_b32 {s(S_J)}, 0')
    a(f's_cselect_b32 {s(sT2)}, 64, 0')
    a(f's_cselect_b32 {s(sM2)}, 0, 128')
    a(f's_cselect_b32 {s(sMf)}, 16, 0')
    a(f's_add_u32 {s(sT2)}, {s(sT2)}, {s(sT)}')
    a(f's_add_u32 {s(sT)}, {s(sM2)}, {s(sT)}')
    a(f'v_lshrrev_b32 {v(t1)}, 3, v0')
    a(f'v_mul_u32_u24 {v(t1)}, 3072, {v(t1)}')
    a(f'v_add3_u32 {v(pD)}, {v(t1)}, {v(t0)}, {s(sT2)}')
    a(f'v_lshrrev_b32 {v(t1)}, 2, v0')
    a(f'v_mul_u32_u24 {v(t1)}, 3072, {v(t1)}')
    a(f'v_and_b32 {v(t0)}, 0x30, {v(t0)}')
    a(f'v_add3_u32 {v(pE)}, {v(t1)}, {v(t0)}, {s(sT)}')
    a(f'v_lshlrev_b32 {v(t2)}, 6, {v(t2)}')
    a(f'v_xor_b32 {v(t2)}, {v(t2)}, {v(vL16)}')
    a(f's_lshl_b32 {s(sT)}, {s(sL)}, 11')
    a(f'v_add_u32 {v(vWf)}, {s(sT)}, {v(t2)}')
    a(f's_lshl_b32 {s(sT)}, {s(sL)}, 10')
    a(f'v_add_u32 {v(vWh)}, {s(sT)}, {v(vL16)}')
    a(f'v_add_u32 {v(t0)}, {s(sMf)}, v0')
    a(f'v_subrev_u32 {v(t1)}, 48, {v(t0)}')
    a(f'v_min_u32 {v(t0)}, {v(t0)}, {v(t1)}')
    a(f'v_lshlrev_b32 {v(vB1)}, 2, {v(t0)}')
    a(f'v_and_b32 {v(t0)}, 1, v0')
    a(f'v_lshlrev_b32 {v(t0)}, 4, {v(t0)}')
    a(f'v_lshlrev_b32 {v(t0)}, {v(t0)}, {v(vOne)}')
    a(f'v_bfe_u32 {v(t1)}, v0, 0, 1')
    a(f'v_add_u32 {v(t1)}, -1, {v(t1)}')
    a(f'v_lshlrev_b32 {v(t1)}, 16, {v(t1)}')
    a(f'v_bfi_b32 {v(t0)}, {v(t1)}, 0, {v(t0)}')
    a(f'v_bfe_u32 {v(t1)}, v0, 1, 3')
    for r in range(8):
        a(f'v_cmp_eq_u32 vcc, {r}, {v(t1)}')
        a(f'v_cndmask_b32 {v(selF + r if r < 4 else selH + r - 4)}, 0, {v(t0)}, vcc')
    a(f'v_and_b32 {v(t0)}, 15, v0')
    a(f'v_lshlrev_b32 {v(t0)}, 5, {v(t0)}')
    a(f'v_and_b32 {v(t1)}, 16, v0')
    a(f'v_and_b32 {v(t2)}, 32, v0')
    a(f'v_lshl_add_u32 {v(t1)}, {v(t2)}, 3, {v(t1)}')
    a(f's_mul_i32 {s(sT)}, {s(sL)}, 384')
    a(f's_add_u32 {s(sT)}, {s(sT)}, {L_CSP}')
    a(f'v_add3_u32 {v(vCp)}, {v(t0)}, {v(t1)}, {s(sT)}')
    a(f's_mul_i32 {s(sM2)}, {s(sL)}, {2*WROW}')
    a(f's_and_b32 {s(sT)}, {s(sL)}, 1')
    a(f's_lshl_b32 {s(sMf)}, {s(sT)}, 10')
    a(f's_lshl1_add_u32 {s(sT)}, {s(S_J8)}, {s(sT)}')
    a(f's_mul_i32 {s(sFo4)}, {s(sT)}, 10240')
    a(f's_add_u32 {s(sFo4)}, {s(sFo4)}, {WS_WO4}')
    a(f's_mul_i32 {s(sF24)}, {s(sT)}, 24576')
    a(f's_add_u32 {s(sF24)}, {s(sF24)}, {WS_W24}')
    a(f's_and_b32 {s(sT)}, {s(S_C64)}, 3')
    a(f's_lshl_b32 {s(sQ2)}, {s(sT)}, 1')
    a(f's_mul_i32 {s(sQ6)}, {s(sT)}, 6')
    a(f's_and_b32 {s(sT)}, {s(S_C)}, 1')
    a(f's_mul_i32 {s(sR1)}, {s(sT)}, {5*64*3072}')
    a = real_a
    fillq += late
    FP = env('FP', 7)
    emit(0, Q1, env('FP0', 3))
    while len(late) - len(fillq) < nearly or not scc_cuts(fillq)[0]: a(fillq.pop(0))
    stat_mfma(first=True)
    SP, SN, S0 = os.environ.get('SP', 'oa'), env('SN', 7), env('S0', 0)
    tch = Touch(a, SP, sL, sI, sPf, S_CNT, 4)
    if SP: stamp = lambda *x, **k: None
    if S0 <= 0: tch.go(SN)
    a(f's_waitcnt vmcnt({qn(Q1)})')
    stamp(a)
    a(f's_barrier')
    stat_reads()
    for jh in range(2):
        a(f'ds_read_b64_tr_b16 {v(F+2*jh,2)}, {v(vU)} offset:{512*jh}')
    emit(Q1, 9, env('FP1', 0))
    emit(0, Q2, env('FP1', 0))
    stat_mfma()
    if S0 <= 1: tch.go(SN)
    a(f's_waitcnt vmcnt({qn(Q2)})')
    stamp(a)
    pfn = {x: 0 for x in 'oabOHDSFwu'}
    O1 = [7, 6, 8, 9, 0, 1, 2, 3, 4, 5]
    def touch(L):
        n = 0
        for m in L:
            if m in 'wu':
                assert not fillq
                q = pfn[m]; pfn[m] += 1
                if m == 'w':
                    assert stg[3*O1[q]] >= p1hi
                    blk1(O1[q]); n += 3
                else: blk('o', 4 + q, main=True); n += 2
                continue
            if m in 'OHDSF':
                q = pfn[m]; pfn[m] += 1; n += 1
                if m == 'F':
                    a(f'v_lshrrev_b32 {v(vDm)}, 2, v0')
                    a(f'v_lshlrev_b32 {v(vDm)}, 7, {v(vDm)}')
                    a(f'v_and_or_b32 {v(vDm)}, v0, 3, {v(vDm)}')
                    a(f'v_lshlrev_b32 {v(vDm)}, 7, {v(vDm)}')
                    a(f's_lshl_b32 {s(sI)}, {s(S_C)}, 9')
                    a(f's_add_u32 {s(sI)}, {s(sI)}, {FL_1}')
                    a(f's_mov_b64 exec, 0xfff')
                    a(f'buffer_load_dword {v(vDm)}, {v(vDm)}, {s(SRD_WS,4)}, {s(sI)} offen sc1')
                    a('s_mov_b64 exec, -1')
                    continue
                claim(a, m, q, sL, sI, sPf, vDm, vL16)
                continue
            n += 1
            sr, nb = {'o': (SRD_C, 800), 'a': (SRD_E, 1920), 'b': (SRD_D, 1920)}[m]
            ln = 50 if m == 'o' else 60
            a(f's_lshl2_add_u32 {s(sI)}, s2, {s(sL)}')
            a(f's_mul_i32 {s(sI)}, {s(sI)}, {nb}')
            a(f's_mov_b32 exec_hi, {hex((1 << (ln - 32)) - 1)}')
            a(f'buffer_load_dwordx4 {v(vDm,4)}, {v(vL16)}, {s(sr,4)}, {s(sI)} offen offset:{pfn[m] * ln * 16}')
            pfn[m] += 1
            assert pfn[m] * ln * 16 <= nb
        if L: a('s_mov_b64 exec, -1')
        return n

    vm = Cnt(63)
    def thr(n):
        if n: a(f's_waitcnt vmcnt({n-1})')
    early = []
    def blk(kind, k, th=0, main=False):
        if kind == 'o':
            P, sr, lb = (pA if k < 8 else pB), SRD_C, L_WO[k]
            if RO and k < 8:
                a(f's_add_u32 {s(sT)}, {s(sQ2)}, {k}')
                a(f's_and_b32 {s(sT)}, {s(sT)}, 7')
                a(f's_lshl_b32 {s(sT2)}, {s(sT)}, 10')
                a(f's_mul_i32 {s(sT)}, {s(sT)}, {40*1280}')
                a(f's_add_u32 {s(sT2)}, {s(sT2)}, {s(sFo4)}')
            else:
                a(f's_mov_b32 {s(sT)}, {(40*k if k < 8 else 160*(k-8))*1280}')
                a(f's_add_u32 {s(sT2)}, {s(sFo4)}, {k*1024}')
        else:
            P, sr, lb = pC, SRD_D, L_W2[k]
            w2_off(a, k, sQ6, sT, sT2, sF24)
        if (kind, k) not in early:
            a(f's_add_u32 m0, {s(sM2)}, {lb}')
            for e in range(2):
                thr(th)
                a(f'buffer_load_dwordx4 {v(P[e])}, {s(sr,4)}, {s(sT)} offen offset:{e*WROW} lds')
            vm.add((kind, k), 2)
        if main:
            early.append((kind, k)); return
        a(f's_add_u32 m0, {s(sMf)}, {lb + 8*WROW}')
        a(f's_mov_b64 exec, {s(sHm,2)}')
        if env('NOFR', 0): a(f'buffer_load_dwordx4 {v(vL16)}, {s(sr,4)}, {s(sT)} offen lds')
        else: a(f'buffer_load_dwordx4 {v(vL16)}, {s(SRD_WS,4)}, {s(sT2)} offen sc1 lds')
        a(f's_mov_b64 exec, -1')
        vm.add((kind, k), 1)
    def blk1(c, th=0):
        if R1: a(f's_add_u32 {s(sT)}, {s(sR1)}, {64*c*3072}' if c < 5 else f's_sub_u32 {s(sT)}, {64*c*3072}, {s(sR1)}')
        else: a(f's_mov_b32 {s(sT)}, {64*c*3072}')
        a(f's_add_u32 {s(sT2)}, {s(sT)}, {8*3072}')
        for e in range(3):
            thr(th)
            a(f'buffer_load_dwordx4 {v(stg[3*c+e],4)}, {v(pD if e < 2 else pE)}, {s(SRD_E,4)}, {s(sT2 if e == 1 else sT)} offen')
        vm.add(('1', c), 3)
    SH = env('SH', 5)
    for it in range(2, 8):
        a(f's_barrier')
        if it > SH: a(f's_waitcnt vmcnt(8)')
        stat_reads()
        if it == 2: emit(Q2, 9, FP)
        if it in (2, 4):
            lsk = a.newlabel('ev')
            a(f's_cmp_ge_u32 s2, 136')
            a(f's_cbranch_scc1 {lsk}')
            if it == 2: a(f'buffer_store_dwordx4 {v(F,4)}, {v(vL16)}, {s(SRD_WS,4)}, {s(sD)} offen sc1')
            else:
                a(f's_mov_b64 exec, 1')
                a(f'buffer_store_dword {v(vN)}, off, {s(SRD_WS,4)}, {s(sFlag)} sc1')
                a(f's_mov_b64 exec, -1')
            a.label(lsk)
        if it == 6:
            assert not fillq
            a(f'buffer_load_dword {v(vF)}, {v(vFo)}, {s(SRD_WS,4)}, {s(sFo)} offen sc1')
        npf = touch(PF[it - 2])
        emit(0, 9, FP)
        if it < 7: vm.add('c', NCH)
        stamp(a)
        stat_mfma()
        if it == SH:
            assert it not in (2, 4)
            a(f's_waitcnt vmcnt({NCH + npf + (it == 6) + 8})')
            stat_reads()
            stat_mfma()
        if it == 7: break
        if S0 <= it: tch.go(SN)
        if it in (2, 4):
            lsk = a.newlabel('ew')
            a(f's_cmp_lt_u32 s2, 136')
            a(f's_cbranch_scc1 {lsk}')
            a(f's_waitcnt vmcnt({NCH + npf})')
            a.label(lsk)
        a(f's_waitcnt vmcnt({NCH + npf + (it in (2, 4, 6))})')
        stamp(a)
    vm.add('x9', 3); vm.add('c9', 8)
    stamp = stamp_
    assert not tch.q
    srd(a, SRD_B, S_PB1, 1536 * 2)
    lchk, lok = a.newlabel('chk'), a.newlabel('ok')
    a(f's_mov_b32 {s(S_CNT)}, {SPIN}')
    a(f's_waitcnt vmcnt({NCH + npf})')
    a.label(lchk)
    a(f'v_and_b32 {v(t0)}, -8, {v(vF)}')
    a(f'v_cmp_ne_u32 vcc, {s(S_TAG)}, {v(t0)}')
    a(f's_cmp_eq_u64 vcc, 0')
    a(f's_cbranch_scc1 {lok}')
    a(f's_sub_u32 {s(S_CNT)}, {s(S_CNT)}, 1')
    a(f's_cbranch_scc1 {lok}')
    a(f'buffer_load_dword {v(vF)}, {v(vFo)}, {s(SRD_WS,4)}, {s(sFo)} offen sc1')
    a(f's_waitcnt vmcnt(0)')
    a(f's_branch {lchk}')
    a.label(lok)
    stamp(a)
    a(f's_barrier')
    if SH < 8: a(f's_waitcnt vmcnt(8)')
    stat_reads()
    N17 = pfn['w']
    N18 = N17 + env('N18', 0)
    assert all(stg[3*c] >= p1hi for c in O1[:N18])
    for b in range(NB8): blk('o', b)
    lns = a.newlabel('ns')
    a(f's_cmp_lg_u32 {s(sL)}, 0')
    a(f's_cbranch_scc1 {lns}')
    a(f'v_readfirstlane_b32 {s(sT)}, {v(vF)}')
    a(f'v_cmp_ne_u32 vcc, {s(sT)}, {v(vF)}')
    a(f's_cmp_eq_u64 vcc, 0')
    a(f's_cselect_b32 {s(sT)}, {0 if FORCE_SLOW else 1}, 0')
    a(f'v_mov_b32 {v(t0)}, {s(sT)}')
    a(f'ds_write_b32 {v(vTg)}, {v(t0)}')
    a.label(lns)
    if SH >= 8:
        stat_mfma()
        a(f's_waitcnt vmcnt({vm.after("x9")})')
        stat_reads()
    a(f'v_and_b32 {v(t2)}, 3, v0')
    a(f'v_and_b32 {v(t1)}, 15, v0')
    a(f'v_lshlrev_b32 {v(t1)}, 3, {v(t1)}')
    a(f'v_add_u32 {v(t3)}, {L_STAT + 512}, {v(t1)}')
    a(f's_lshl_b32 {s(sT)}, {s(sL)}, 7')
    a(f's_add_u32 {s(sT)}, {s(sT)}, {L_STAT}')
    a(f'v_add_u32 {v(t1)}, {s(sT)}, {v(t1)}')
    sC = [sa(2) for _ in range(3)]
    for q in range(3): a(f'v_cmp_eq_u32 {s(sC[q],2)}, {q+1}, {v(t2)}')
    a(f's_mul_i32 {s(sT)}, {s(sL)}, 20')
    a(f's_lshl_b64 {s(sOrd,2)}, 15, {s(sT)}')
    stat_mfma(last=True)
    ch = []
    for tl in range(2):
        G = accG[tl]; vSum = F + 2 * tl; vSq = vSum + 1
        L = [f'v_cndmask_b32 {v(vSq)}, {v(G)}, {v(G+1)}, {s(sC[0],2)}',
             f'v_cndmask_b32 {v(vSq)}, {v(vSq)}, {v(G+2)}, {s(sC[1],2)}',
             f'v_cndmask_b32 {v(vSq)}, {v(vSq)}, {v(G+3)}, {s(sC[2],2)}',
             f'v_mov_b32 {v(vSum)}, {v(accS[tl])}'] + ln_stats(vSum, vSq, F + 4 + tl)
        ch.append(L)
    for x, y in zip(*ch): a(x); a(y)
    a(f's_mov_b32 exec_lo, 0x00f0000f')
    a(f's_mov_b32 exec_hi, 0xf0000f00')
    a(f'ds_write_b64 {v(t1)}, {v(F,2)}')
    a(f's_mov_b64 exec, {s(sOrd,2)}')
    a(f'ds_write_b64 {v(t3)}, {v(F+2,2)}')
    a(f's_mov_b64 exec, -1')
    stamp(a)
    NB9 = env('NB9', 3)
    for b in range(NB8, NB8 + NB9): blk('o', b)
    for c in O1[N17:N18]: blk1(c)
    a(f's_waitcnt vmcnt({vm.after("c9")}) lgkmcnt(0)')
    stamp(a)
    a(f's_barrier')
    a(f's_setprio {env("PRIO3", 0)}')
    vm.add('pf', touch(PF[6]))
    for b in range(NB8 + NB9, 6): blk('o', b)
    a(f's_mul_i32 {s(sT)}, {s(S_J)}, 192')
    a(f'buffer_load_dword {v(vB1)}, {v(vB1)}, {s(SRD_B,4)}, {s(sT)} offen')
    srd(a, SRD_B, S_PB2, 640 * 2)
    a(f's_lshr_b32 {s(sT)}, {s(S_J8)}, 2')
    a(f's_add_u32 {s(sT2)}, {s(sT)}, {s(S_J8)}')
    a(f's_lshl_b32 {s(sT2)}, {s(sT2)}, 7')
    a(f's_lshl4_add_u32 {s(sT)}, {s(sT)}, {s(S_J8)}')
    a(f's_lshl_b32 {s(sT)}, {s(sT)}, 5')
    a(f's_add_u32 {s(sT)}, {s(sT)}, {512 - 128}')
    a(f'v_mov_b32 {v(t0)}, {s(sT2)}')
    a(f'v_mov_b32 {v(t1)}, {s(sT)}')
    a(f'v_cmp_gt_u32 vcc, 32, v0')
    a(f'v_cndmask_b32 {v(t0)}, {v(t1)}, {v(t0)}, vcc')
    a(f'v_lshl_add_u32 {v(t0)}, v0, 2, {v(t0)}')
    a(f's_mov_b32 m0, {L_B2}')
    a(f's_mov_b32 exec_hi, 0xff')
    a(f'buffer_load_dword {v(t0)}, {s(SRD_B,4)}, 0 offen lds')
    a(f's_mov_b64 exec, -1')
    vm.add('b', 2)
    N1C = env('N1C', 0)
    global N1A
    N1A += N18
    for c in O1[N18:N1A]: blk1(c)
    LP, LN = os.environ.get('LP', 'b'), [int(x) for x in os.environ.get('LN', '15,15,15,15').split(',')]
    tch = Touch(a, LP, sL, sI, sPf, S_CNT, 4)
    if LP: stamp = lambda *x, **k: None
    tch.go(LN[0])
    stamp(a)
    a(f's_barrier')
    for b in range(6, 10): blk('o', b)
    for c in O1[N1A:N1A+N1B]: blk1(c)
    tch.go(LN[1])
    a(f's_waitcnt vmcnt({vm.after(lambda t: t[0] == "o")})')
    stamp(a)
    a(f's_barrier')
    base = Base(a, [vWf, vWh], 0)
    csn = [0]
    def csum(c):
        a(f's_waitcnt vmcnt({vm.after(("1", c))})')
        for e in range(3):
            a(f'{MFMA} {v(accC,4)}, {v(selF if e < 2 else selH,4)}, {v(stg[3*c+e],4)}, {v(accC,4) if csn[0] else "0"}')
            csn[0] += 1
    def put(c):
        o = base.off(L_W1[c], BLK1)
        for e in range(3):
            a(f'ds_write_b128 {v(vWf if e < 2 else vWh)}, {v(stg[3*c+e],4)} offset:{o + (e*1024 if e < 2 else 8192)}')
    T1N, N1X = env('T1N', 10), env('N1X', 0)
    th1 = lambda c: T1 if O1.index(c) < N1A + N1B + T1N else 0
    for c in O1[N1A+N1B:N1A+N1B+N1C]: blk1(c, th1(c))
    for c in O1[:N1A]: csum(c)
    if N1A: put(7)
    tch.go(LN[2])
    stamp(a)
    if env('BGO', 1): a(f's_barrier')
    for c in O1[N1A+N1B+N1C:10-N1X]: blk1(c, th1(c))
    CSE = max(N1A, env('CSE', N1A + N1B + N1C))
    tch.go(LN[3])
    for c in O1[N1A:CSE]: csum(c)
    assert not tch.q
    stamp(a)
    stamp = stamp_
    a(f's_barrier')
    for c in O1[10-N1X:]: blk1(c)
    for i, c in enumerate(O1):
        if i >= CSE: a(f's_waitcnt vmcnt({vm.after(("1", c))})')
        if c != 7 or not N1A: put(c)
    for c in O1[CSE:]: csum(c)
    for r in range(4): a(f'v_add_f32_dpp {v(accC+r)}, {v(accC+r)}, {v(accC+r)} row_ror:8 row_mask:0xf bank_mask:0xf')
    for r in range(4): a(f'v_add_f32_dpp {v(accC+r)}, {v(accC+r)}, {v(accC+r)} row_ror:4 row_mask:0xc bank_mask:0xf')
    a(f's_mov_b32 exec_lo, 0x00ff00ff')
    a(f's_mov_b32 exec_hi, 0x000f000f')
    a(f'ds_write_b128 {v(vCp)}, {v(accC,4)}')
    a(f's_mov_b64 exec, -1')
    a(f's_waitcnt lgkmcnt(0)')
    stamp(a)
    a(f's_barrier')
    W2A = env('W2A', 2)
    for k in range(W2A): blk('2', k, TW)
    lcs = a.newlabel('lcs')
    a(f's_cmp_lg_u32 {s(sL)}, 3')
    a(f's_cbranch_scc1 {lcs}')
    q = stg[0]
    a(f'v_lshlrev_b32 {v(t0)}, 3, v0')
    a(f'v_add_u32 {v(t0)}, {L_CSP}, {v(t0)}')
    for p in range(4): a(f'ds_read_b64 {v(q+2*p,2)}, {v(t0)} offset:{384*p}')
    a(f'v_add_u32 {v(t0)}, {L_CS}, {v(vL16)}')
    a(f's_waitcnt lgkmcnt(0)')
    a(f'v_pk_add_f32 {v(q,2)}, {v(q,2)}, {v(q+2,2)}')
    a(f'v_pk_add_f32 {v(q+4,2)}, {v(q+4,2)}, {v(q+6,2)}')
    a(f'v_pk_add_f32 {v(q,2)}, {v(q,2)}, {v(q+4,2)}')
    for lv in range(3):
        a(f'v_cvt_pk_bf16_f32 {v(q+8+lv)}, {v(q)}, {v(q+1)}')
        if lv < 2:
            a(f'v_lshlrev_b32 {v(q+2)}, 16, {v(q+8+lv)}')
            a(f'v_and_b32 {v(q+3)}, 0xffff0000, {v(q+8+lv)}')
            a(f'v_pk_add_f32 {v(q,2)}, {v(q,2)}, {v(q+2,2)} neg_lo:[0,1] neg_hi:[0,1]')
    a(f's_mov_b32 {s(sT)}, 0x05040100')
    a(f's_mov_b32 {s(sT2)}, 0x07060302')
    a(f'v_perm_b32 {v(q+4)}, {v(q+9)}, {v(q+8)}, {s(sT)}')
    a(f'v_perm_b32 {v(q+5)}, {v(vB1)}, {v(q+10)}, {s(sT)}')
    a(f'v_perm_b32 {v(q+6)}, {v(q+9)}, {v(q+8)}, {s(sT2)}')
    a(f'v_perm_b32 {v(q+7)}, {v(vB1)}, {v(q+10)}, {s(sT2)}')
    a(f's_mov_b32 exec_hi, 0xffff')
    a(f'ds_write_b128 {v(t0)}, {v(q+4,4)}')
    a(f's_mov_b64 exec, -1')
    a(f's_waitcnt lgkmcnt(0)')
    a.label(lcs)
    stamp(a)
    a(f's_barrier')
    W2B = env('W2B', 6)
    for k in range(W2A, W2B): blk('2', k, TW)
    stamp(a)
    a(f's_barrier')
    for k in range(W2B, 11): blk('2', k, TW)
    def w2wait(kmax):
        a(f's_waitcnt vmcnt({vm.after(lambda t: t[0] == "2" and t[1] <= kmax)})')
    w2wait(YB[0])
    stamp(a)
    a(f's_barrier')
    a(f's_setprio {env("PRIO4", 3)}')
    for lo, hi_, kw in YI:
        for k in range(lo, hi_):
            if k not in STG: blk('2', k, TW)
        w2wait(kw)
        stamp(a)
        a(f's_barrier')
    F4 = stg[0]
    lend = a.newlabel('lend')
    a(f's_or_b32 {s(sT)}, s2, {s(sL)}')
    a(f's_cmp_lg_u32 {s(sT)}, 0')
    a(f's_cbranch_scc1 {lend}')
    lp, ld = a.newlabel('bp'), a.newlabel('bd')
    a(f's_mov_b32 {s(S_CNT)}, {SPIN}')
    a(f's_mov_b32 {s(sT)}, {FL_HELLO}')
    a.label(lp)
    a(f'buffer_load_dwordx4 {v(F4,4)}, {v(vL16)}, {s(SRD_WS,4)}, {s(sT)} offen sc1')
    a(f's_sub_u32 {s(S_CNT)}, {s(S_CNT)}, 1')
    a(f's_cbranch_scc1 {ld}')
    a(f's_waitcnt vmcnt(0)')
    for r in range(4): a(f'v_xor_b32 {v(F4+r)}, {s(S_TAG)}, {v(F4+r)}')
    a(f'v_or3_b32 {v(F4)}, {v(F4)}, {v(F4+1)}, {v(F4+2)}')
    a(f'v_or_b32 {v(F4)}, {v(F4)}, {v(F4+3)}')
    a(f'v_cmp_lt_u32 vcc, 7, {v(F4)}')
    a(f's_cmp_lg_u64 vcc, 0')
    a(f's_cbranch_scc1 {lp}')
    a.label(ld)
    a(f'v_mov_b32 {v(t0)}, {s(S_TAG)}')
    a(f's_mov_b32 {s(sT)}, {WS_FL}')
    a(f's_mov_b64 exec, 1')
    a(f'buffer_store_dword {v(t0)}, off, {s(SRD_WS,4)}, {s(sT)} sc1')
    a.label(lend)
    stamps_flush(a)
    a('s_endpgm')
    return va.hi

def spoll(a, sOff, n, vF, vOff, vG=None):
    if not env('SPOLL', 0):
        poll(a, vF, vOff, sOff, vG); return
    ls, lp, ld = a.newlabel('pslow'), a.newlabel('sp'), a.newlabel('spd')
    a(f's_mov_b32 {s(S_CNT)}, {SPIN}')
    a(f's_cmp_eq_u32 {s(S_SAME)}, 0')
    a(f's_cbranch_scc1 {ls}')
    a.label(lp)
    a(f's_load_dwordx{n} {s(16,n)}, {s(S_PWS,2)}, {s(sOff)} glc')
    a(f's_sub_u32 {s(S_CNT)}, {s(S_CNT)}, 1')
    a(f's_cbranch_scc1 {ld}')
    a(f's_waitcnt lgkmcnt(0)')
    for i in range(n // 2):
        a(f's_cmp_eq_u64 {s(16+2*i,2)}, {s(S_TAG2,2)}')
        a(f's_cbranch_scc0 {lp}')
    a.label(ld)
    lq = a.newlabel('pq')
    DEFER.append((ls, ld, [f'{lq}:', f'buffer_load_dword {v(vF)}, {v(vOff)}, {s(SRD_WS,4)}, {s(sOff)} offen sc1',
                           f's_sub_u32 {s(S_CNT)}, {s(S_CNT)}, 1', f's_cbranch_scc1 {ld}', 's_waitcnt vmcnt(0)',
                           f'v_cmp_ne_u32 vcc, {s(S_TAG)}, {v(vF)}', 's_cmp_lg_u64 vcc, 0', f's_cbranch_scc1 {lq}']))
S_TAG2 = 34

def helper(a):
    stamp = stamp_ if 't' not in os.environ.get('HS', '') else (lambda *x, **k: None)
    sa = Alloc('s', S_FREE, S_LIM)
    va = Alloc('v', 2, VLIM)
    vL16 = 1
    sL, sT, sT2, sF24, sQ6 = [sa() for _ in range(5)]
    t0, t1, t2, t3, vFs, vWf, vWr = [va() for _ in range(7)]
    pC = [va(), va()]
    R = {k: (va(4, 2), va(4, 2), va(2)) for k in STG}
    a(f's_sub_u32 {s(sL)}, {s(S_W)}, 4')
    a(f's_setprio {env("PRIOH", 0)}')
    srd(a, SRD_A, S_PW2, 1536 * 1280)
    row_bits(a, sL, sT, sT2, t0, t1, t2, t3)
    row_pat(a, pC, 768, 8, 16, 1280, sT2, t0, t1, t2, t3, dma=False)
    a(f's_and_b32 {s(sT)}, {s(sL)}, 1')
    a(f's_lshl1_add_u32 {s(sF24)}, {s(S_J8)}, {s(sT)}')
    a(f's_mul_i32 {s(sF24)}, {s(sF24)}, 24576')
    a(f's_lshr_b32 {s(sT2)}, {s(sL)}, 1')
    a(f's_lshl_b32 {s(sT2)}, {s(sT2)}, 9')
    a(f's_add_u32 {s(sF24)}, {s(sF24)}, {WS_W24}')
    a(f'v_lshl_add_u32 {v(vFs)}, v0, 3, {s(sT2)}')
    a(f's_lshl_b32 {s(sT)}, {s(sT)}, 10')
    a(f'v_add_u32 {v(vWr)}, {s(sT)}, {v(vFs)}')
    a(f's_mul_i32 {s(sT)}, {s(sL)}, {2*WROW}')
    a(f'v_add_u32 {v(vWf)}, {s(sT)}, {v(vL16)}')
    a(f's_and_b32 {s(sQ6)}, {s(S_C64)}, 3')
    a(f's_mul_i32 {s(sQ6)}, {s(sQ6)}, 6')
    def get(k):
        w2_off(a, k, sQ6, sT, sT2, sF24)
        for e in range(2):
            if TH: a(f's_waitcnt vmcnt({TH-1})')
            a(f'buffer_load_dwordx4 {v(R[k][e],4)}, {v(pC[0])}, {s(SRD_A,4)}, {s(sT)} offen offset:{e*1280}')
        if env('NOFR', 0): a(f'buffer_load_dwordx2 {v(R[k][2],2)}, {v(vFs)}, {s(SRD_A,4)}, {s(sT)} offen')
        else: a(f'buffer_load_dwordx2 {v(R[k][2],2)}, {v(vFs)}, {s(SRD_WS,4)}, {s(sT2)} offen sc1')
    base = Base(a, [vWf, vWr], 0)
    def put(k):
        o = base.off(L_W2[k], BLK)
        for e in range(2): a(f'ds_write_b128 {v(vWf)}, {v(R[k][e],4)} offset:{o + e*WROW}')
        a(f'ds_write_b64 {v(vWr)}, {v(R[k][2],2)} offset:{o + 8*WROW}')
    HS = os.environ.get('HS', ',gg,,gg,ggg').split(',')
    todo, nd = list(STG), [sum(x.count('D') for x in PF)]
    tch = Touch(a, os.environ.get('HP_', 'D'), sL, sT, sT2, S_CNT, 4)
    def seq(L):
        for m in L:
            if m == 'g': get(todo.pop(0))
            elif m == 't': tch.go(env('HN', 15))
            else:
                if TH: a(f's_waitcnt vmcnt({TH-1})')
                claim(a, 'D', nd[0], sL, sT, sT2, R[STG[-1]][0], vL16); nd[0] += 1
    if MB: a(f's_barrier')
    seq(HS[0])
    stamp(a)
    if env('BGO', 1): a(f's_barrier')
    seq(HS[1])
    stamp(a)
    a(f's_barrier')
    seq(HS[2])
    stamp(a)
    a(f's_barrier')
    seq(HS[3])
    stamp(a)
    a(f's_barrier')
    seq(HS[4] if len(HS) > 4 else '')
    if 'D' in ''.join(HS): a(f's_waitcnt vmcnt(0)')
    a(f's_barrier')
    seq(HS[5] if len(HS) > 5 else '')
    assert not todo and (not tch.q or 't' not in ''.join(HS))
    a(f's_barrier')
    a(f's_waitcnt vmcnt(0)')
    for lo, hi_, kw in YI:
        for k in range(lo, hi_):
            if k in STG: put(k)
        a(f's_waitcnt lgkmcnt(0)')
        stamp(a)
        a(f's_barrier')
    stamps_flush(a)
    a('s_endpgm')
    return va.hi

def compute(a):
    sa = Alloc('s', S_FREE, S_LIM)
    vL16 = 1
    sT, sT2, sTau, sKh, sTile, sKf = [sa() for _ in range(6)]
    sO1, sO2, sF1w, sF1r, sIP, sI4 = [sa() for _ in range(6)]
    sMask = sa(2); sCexp = sa(2)
    sOb = [sa() for _ in range(5)]
    sRowP, sRow4, sHP, sH4, sSTw, sF2w = [sa() for _ in range(6)]
    sF2r, sSTr, sHsrc, sD01, sD2, sF3w, sF3r, sDsrc, sR1 = [sa() for _ in range(9)]
    sC = [sa(2) for _ in range(3)]
    sDb = [sO1, sO2, sF1w, sF1r, sIP, sI4, sMask, sMask + 1]
    sBeta, sB4 = sRowP, sRow4
    hi = [0]
    va = Alloc('v', 2, VLIM)
    keep = va(12, 2)
    t0, t1, t2, t3 = va(), va(), va(), va()
    vL16s, vH4, vTr, vFr, vPo, vXa = [va() for _ in range(6)]
    vB = [va(), va()]
    p0 = va.n
    wk0 = va.n
    acc = [[va(4, 2) for m in range(5)] for n in range(2)]
    fX = [[va(4, 2) for m in range(5)] for st in range(2)]
    fW = [[va(4, 2) for n in range(2)] for st in range(2)]
    wk1 = va.n
    Cc, Cp = va(4, 2), va(4, 2)
    Mc, Mp = va(2), va(2)
    vX = [va(), va()]
    vW, vG0, vDump, vStat, vN, vXC = [va() for _ in range(6)]
    aC, aP, aVc, aVp, aVc4, aVp4 = [va() for _ in range(6)]
    hi[0] = va.hi
    if env('PRIOC', 1): a(f's_setprio {env("PRIOC", 1)}')
    assert EBV == Cc
    if not EB:
        a(f's_waitcnt lgkmcnt(0)')
        nonce_load(a)
    ET = env('ET', 1)
    if ET & 2:
        lf = a.newlabel('ep')
        a(f's_cmp_lg_u32 {s(S_W)}, 3')
        a(f's_cbranch_scc1 {lf}')
        a(f's_mul_i32 {s(sO1)}, {s(S_C64)}, {64*1280}')
        a(f's_load_dword {s(S_CNT)}, {s(S_POUT,2)}, {s(sO1)}')
        for ptr in (S_PWO, S_PW1, S_PW2, S_PB1, S_PB2): a(f's_load_dword {s(S_CNT)}, {s(ptr,2)}, 0')
        for m in 'OHDS':
            L, ptr, offs = region(m, S_W, sO1, sO2, 4)[0]
            for x in L: a(x)
            a(f's_load_dword {s(S_CNT)}, {s(ptr,2)}, {s(sO1)}')
        a.label(lf)
    a(f'v_and_b32 {v(t0)}, 15, v0')
    a(f'v_lshrrev_b32 {v(t1)}, 4, v0')
    a(f'v_lshrrev_b32 {v(t2)}, 1, {v(t0)}')
    a(f'v_xor_b32 {v(t3)}, {v(t2)}, {v(t1)}')
    a(f'v_lshlrev_b32 {v(t3)}, 4, {v(t3)}')
    a(f'v_lshl_add_u32 {v(t3)}, {v(t0)}, 7, {v(t3)}')
    a(f'v_add_u32 {v(vX[0])}, {XIMG}, {v(t3)}')
    a(f'v_xor_b32 {v(vX[1])}, 64, {v(vX[0])}')
    a(f'v_lshrrev_b32 {v(t3)}, 5, v0')
    a(f'v_xor_b32 {v(t2)}, {v(t2)}, {v(t3)}')
    a(f'v_lshlrev_b32 {v(t2)}, 4, {v(t2)}')
    a(f'v_lshl_add_u32 {v(t2)}, {v(t0)}, 7, {v(t2)}')
    a(f'v_and_b32 {v(vXC)}, 1, {v(t1)}')
    a(f'v_lshl_add_u32 {v(t2)}, {v(vXC)}, 3, {v(t2)}')
    a(f's_and_b32 {s(sTau)}, {s(S_W)}, 3')
    a(f's_lshl_b32 {s(sT)}, {s(sTau)}, 11')
    a(f'v_add_u32 {v(vXC)}, {s(sT)}, {v(t2)}')
    a(f'v_lshlrev_b32 {v(t2)}, 4, {v(t3)}')
    a(f'v_bfe_u32 {v(t3)}, v0, 2, 3')
    a(f'v_add_u32 {v(t2)}, {v(t2)}, {v(t3)}')
    a(f'v_mul_u32_u24 {v(t2)}, {WROW}, {v(t2)}')
    a(f'v_and_b32 {v(t3)}, 3, v0')
    a(f'v_lshl_add_u32 {v(t2)}, {v(t3)}, 3, {v(t2)}')
    a(f's_lshl_b32 {s(sT)}, {s(S_W)}, 6')
    a(f'v_add_u32 {v(vW)}, {s(sT)}, {v(t2)}')
    a(f's_lshr_b32 {s(sB4)}, {s(S_J8)}, 2')
    a(f's_add_u32 {s(sBeta)}, {s(sB4)}, {s(S_J8)}')
    a(f's_mul_i32 {s(sB4)}, {s(sB4)}, 5')
    a(f's_add_u32 {s(sB4)}, {s(sB4)}, 4')
    ord_init(a, sMask, sT, inv=True)
    for src, dst in ((sBeta, sIP), (sB4, sI4)):
        a(f's_sub_u32 {s(sT)}, {s(src)}, {s(S_XCD)}')
        a(f's_cselect_b32 {s(sT2)}, 10, 0')
        a(f's_add_u32 {s(sT)}, {s(sT)}, {s(sT2)}')
        a(f's_lshl_b32 {s(sT)}, {s(sT)}, 2')
        a(f's_lshr_b64 {s(sCexp,2)}, {s(sMask,2)}, {s(sT)}')
        a(f's_and_b32 {s(dst)}, {s(sCexp)}, 15')
    a(f's_and_b32 {s(sKf)}, {s(S_J8)}, 3')
    a(f's_lshl_b32 {s(sKf)}, {s(sKf)}, 5')
    ln0, ln1 = a.newlabel('n0'), a.newlabel('n1')
    a(f's_cmp_lg_u32 {s(S_W)}, 1')
    a(f's_cbranch_scc1 {ln1}')
    a(f'v_mov_b32 {v(vN)}, 0x3f803f80')
    a(f'v_and_b32 {v(t2)}, 31, v0')
    a(f'v_lshlrev_b32 {v(t2)}, 2, {v(t2)}')
    a(f'v_add_u32 {v(t3)}, {SLOT}, {v(t2)}')
    a(f'ds_write_b32 {v(t2)}, {v(vN)} offset:{XIMG + 64*128}')
    a(f'ds_write_b32 {v(t3)}, {v(vN)} offset:{XIMG + 64*128}')
    a(f'v_add_u32 {v(t3)}, {2*SLOT}, {v(t2)}')
    a(f'ds_write_b32 {v(t3)}, {v(vN)} offset:{XIMG + 64*128}')
    a.label(ln1)
    Touch(a, os.environ.get('CS', ''), S_W, sT, sT2, S_CNT, 8).go(99)
    srd(a, SRD_WS, S_PWS, WS_SIZE)
    if ET & 1:
        lf = a.newlabel('ef')
        a(f's_cmp_lg_u32 {s(S_W)}, 2')
        a(f's_cbranch_scc1 {lf}')
        a(f'v_lshrrev_b32 {v(vN)}, 2, v0')
        a(f'v_lshlrev_b32 {v(vN)}, 7, {v(vN)}')
        a(f'v_and_or_b32 {v(vN)}, v0, 3, {v(vN)}')
        a(f'v_lshlrev_b32 {v(vN)}, 7, {v(vN)}')
        a(f's_lshl_b32 {s(sT)}, {s(S_C)}, 9')
        a(f's_add_u32 {s(sT)}, {s(sT)}, {FL_1}')
        a(f's_mov_b64 exec, 0xfff')
        a(f'buffer_load_dword {v(vN)}, {v(vN)}, {s(SRD_WS,4)}, {s(sT)} offen sc1')
        a('s_mov_b64 exec, -1')
        a.label(lf)
    late = []
    real_a, a = a, late.append
    a(f'v_lshlrev_b32 {v(vL16)}, 4, v0')
    srd(a, SRD_B, S_POUT, 2048 * 1280)
    a(f'v_lshlrev_b32 {v(vStat)}, 3, {v(t0)}')
    a(f'v_add_u32 {v(vStat)}, {L_STAT}, {v(vStat)}')
    a(f'v_mul_u32_u24 {v(t2)}, {DROW}, {v(t0)}')
    a(f'v_lshl_add_u32 {v(t2)}, {v(t1)}, 3, {v(t2)}')
    a(f's_lshl_b32 {s(sT)}, {s(S_W)}, 6')
    a(f's_add_u32 {s(sT)}, {s(sT)}, {L_DUMP}')
    a(f'v_add_u32 {v(vDump)}, {s(sT)}, {v(t2)}')
    sCur, sPrev = sO1, sO2
    a(f's_lshr_b32 {s(sKh)}, {s(S_W)}, 2')
    a(f's_lshl_b32 {s(sCur)}, {s(sTau)}, 4')
    a(f's_sub_u32 {s(sPrev)}, {s(sCur)}, 16')
    a(f's_lshl_b32 {s(sT)}, {s(sTau)}, 2')
    a(f's_add_u32 {s(sT)}, {s(sT)}, 56')
    a(f's_bitcmp1_b32 {s(sTau)}, 0')
    a(f's_cselect_b32 {s(sPrev)}, {s(sPrev)}, {s(sT)}')
    a(f's_mul_i32 {s(sT)}, {s(sKh)}, 80')
    a(f's_add_u32 {s(sT)}, {s(sT)}, {L_DUMP}')
    a(f's_mul_i32 {s(sCur)}, {s(sCur)}, {DROW}')
    a(f's_mul_i32 {s(sPrev)}, {s(sPrev)}, {DROW}')
    a(f's_add_u32 {s(sCur)}, {s(sCur)}, {s(sT)}')
    a(f's_add_u32 {s(sPrev)}, {s(sPrev)}, {s(sT)}')
    a(f'v_add_u32 {v(aC)}, {s(sCur)}, {v(t2)}')
    a(f'v_add_u32 {v(aP)}, {s(sPrev)}, {v(t2)}')
    a(f'v_lshrrev_b32 {v(t2)}, 2, v0')
    a(f'v_mul_u32_u24 {v(t2)}, {DROW}, {v(t2)}')
    a(f'v_add_u32 {v(aVc4)}, {s(sCur)}, {v(t2)}')
    a(f'v_add_u32 {v(aVp4)}, {s(sPrev)}, {v(t2)}')
    a(f'v_and_b32 {v(t2)}, 3, v0')
    a(f'v_lshl_add_u32 {v(aVc)}, {v(t2)}, 3, {v(aVc4)}')
    a(f'v_lshl_add_u32 {v(aVp)}, {v(t2)}, 3, {v(aVp4)}')
    for q in range(3): a(f'v_cmp_eq_u32 {s(sC[q],2)}, {q+1}, {v(t2)}')
    a(f'v_bfe_u32 {v(t2)}, v0, 4, 1')
    a(f'v_lshrrev_b32 {v(t3)}, 5, v0')
    a(f'v_and_b32 {v(vL16s)}, 0xf0, {v(vL16)}')
    a(f'v_lshl_add_u32 {v(vH4)}, {v(t3)}, 8, {v(vL16s)}')
    a(f'v_lshl_add_u32 {v(vH4)}, {v(t2)}, 3, {v(vH4)}')
    a(f'v_lshl_add_u32 {v(t3)}, {v(t2)}, 1, {v(t3)}')
    a(f'v_lshl_add_u32 {v(vL16s)}, {v(t3)}, 8, {v(vL16s)}')
    tr_patterns(a, vTr, None, t2)
    a(f's_and_b32 {s(sT2)}, {s(S_W)}, 1')
    a(f's_lshl_b32 {s(sT)}, {s(sT2)}, 9')
    a(f's_add_u32 {s(sT)}, {s(sT)}, {L_WO[0]}')
    a(f'v_add_u32 {v(vTr)}, {s(sT)}, {v(vTr)}')
    a(f's_lshl_b32 {s(sT)}, {s(sT2)}, 10')
    a(f's_add_u32 {s(sT)}, {s(sT)}, {L_WO[0]}')
    a(f'v_add_u32 {v(vFr)}, {s(sT)}, {v(vL16)}')
    a(f's_mul_i32 {s(sT)}, {s(sT2)}, 20480')
    a(f'v_add_u32 {v(vB[0])}, {s(sT)}, {v(vL16)}')
    a(f's_sub_u32 {s(sT)}, 20480, {s(sT)}')
    a(f'v_add_u32 {v(vB[1])}, {s(sT)}, {v(vL16)}')
    a(f's_mul_i32 {s(sT)}, {s(sTau)}, 5120')
    a(f's_add_u32 {s(sT)}, {s(sT)}, {L_X2}')
    a(f'v_add_u32 {v(vXa)}, {s(sT)}, {v(vL16)}')
    a(f'v_lshlrev_b32 {v(vPo)}, 2, {v(t0)}')
    a(f'v_mov_b32 {v(keep+10)}, 0')
    a(f'v_mov_b32 {v(keep+11)}, 0')
    a(f's_and_b32 {s(sT)}, {s(sTau)}, 1')
    a(f's_or_b32 {s(sT)}, {s(sT)}, {s(S_C64)}')
    a(f's_cmp_eq_u32 {s(sT)}, 0')
    a(f's_cselect_b32 {s(sT)}, 100, 9')
    a(f'v_lshlrev_b32 {v(t1)}, 2, {v(t1)}')
    a(f'v_sub_u32 {v(t1)}, {v(t1)}, {v(t0)}')
    a(f'v_mov_b32 {v(t3)}, 0xf149f2ca')
    for r in range(4):
        a(f'v_add_u32 {v(t2)}, {r+7}, {v(t1)}')
        a(f'v_cmp_ge_u32 vcc, 7, {v(t2)}')
        a(f'v_cndmask_b32 {v(Cc+r)}, {v(t3)}, 0, vcc')
        a(f'v_add_u32 {v(t2)}, {r}, {v(t1)}')
        a(f'v_cmp_le_i32 vcc, {s(sT)}, {v(t2)}')
        a(f'v_cndmask_b32 {v(Cp+r)}, {v(t3)}, 0, vcc')
        a(f'v_cmp_ge_i32 vcc, 0, {v(t2)}')
        half = '0xffff' if r % 2 == 0 else '0xffff0000'
        a(f'v_mov_b32 {v(vG0)}, {half}')
        if r % 2 == 0:
            a(f'v_cndmask_b32 {v(Mc+r//2)}, 0, {v(vG0)}, vcc')
        else:
            a(f'v_cndmask_b32 {v(vG0)}, 0, {v(vG0)}, vcc')
            a(f'v_or_b32 {v(Mc+r//2)}, {v(Mc+r//2)}, {v(vG0)}')
    a(f'v_not_b32 {v(Mp)}, {v(Mc)}')
    a(f'v_not_b32 {v(Mp+1)}, {v(Mc+1)}')
    a(f'v_cmp_gt_u32 vcc, 16, v0')
    a(f'v_cndmask_b32 {v(vG0)}, 0, -1, vcc')
    cexp = struct.unpack('<I', struct.pack('<f', 20 ** -0.5 * math.log2(math.e)))[0]
    a(f's_mov_b32 {s(sCexp)}, {hex(cexp)}')
    a(f's_mov_b32 {s(sCexp+1)}, {hex(cexp)}')
    a(f's_lshl2_add_u32 {s(sTile)}, {s(S_C64)}, {s(sTau)}')
    a(f's_mul_i32 {s(sH4)}, {s(sTile)}, 20480')
    a(f's_lshl1_add_u32 {s(sT2)}, {s(S_J8)}, {s(sKh)}')
    a(f's_lshr_b32 {s(sT)}, {s(sT2)}, 3')
    a(f's_lshl1_add_u32 {s(sO1)}, {s(sT)}, {s(sT2)}')
    a(f's_lshl_b32 {s(sO1)}, {s(sO1)}, 10')
    a(f's_add_u32 {s(sO1)}, {s(sO1)}, {s(sH4)}')
    a(f's_lshl3_add_u32 {s(sF1w)}, {s(sT)}, {s(sT2)}')
    a(f's_mul_i32 {s(sO2)}, {s(sT)}, 10')
    a(f's_bfe_u32 {s(sT)}, {s(sT2)}, 0x10002')
    a(f's_add_u32 {s(sO2)}, {s(sO2)}, {s(sT)}')
    a(f's_add_u32 {s(sO2)}, {s(sO2)}, 8')
    a(f's_lshl_b32 {s(sO2)}, {s(sO2)}, 10')
    a(f's_add_u32 {s(sO2)}, {s(sO2)}, {s(sH4)}')
    a(f's_and_b32 {s(sT)}, {s(sT2)}, 3')
    a(f's_lshl_b32 {s(sT)}, {s(sT)}, 4')
    a(f's_mov_b64 {s(sMask,2)}, 0xffff')
    a(f's_lshl_b64 {s(sMask,2)}, {s(sMask,2)}, {s(sT)}')
    a(f's_and_b32 {s(sT2)}, {s(sTile)}, 1')
    a(f's_lshr_b32 {s(sT)}, {s(sTile)}, 1')
    a(f's_mul_i32 {s(sOb[4])}, {s(sT)}, 40960')
    a(f's_mul_i32 {s(sDsrc)}, {s(sT)}, 98304')
    a(f's_lshl_b32 {s(sT)}, {s(sT)}, 7')
    a(f's_lshl3_add_u32 {s(sF1w)}, {s(sT2)}, {s(sF1w)}')
    a(f's_lshl2_add_u32 {s(sF1w)}, {s(sF1w)}, {s(sT)}')
    a(f's_add_u32 {s(sF1w)}, {s(sF1w)}, {FL_1}')
    a(f's_lshl3_add_u32 {s(sF2w)}, {s(sT2)}, {s(S_J8)}')
    a(f's_lshl2_add_u32 {s(sF2w)}, {s(sF2w)}, {s(sT)}')
    a(f's_add_u32 {s(sF2w)}, {s(sF2w)}, {FL_2}')
    a(f's_lshl_b32 {s(sF3r)}, {s(sT2)}, 5')
    a(f's_lshl1_add_u32 {s(sF1r)}, {s(sF3r)}, {s(sT)}')
    a(f's_add_u32 {s(sF1r)}, {s(sF1r)}, {FL_1}')
    a(f's_add_u32 {s(sF3r)}, {s(sF3r)}, {s(sT)}')
    a(f's_add_u32 {s(sF3r)}, {s(sF3r)}, {FL_3}')
    a(f's_mul_i32 {s(sT)}, {s(sT2)}, 10240')
    a(f's_add_u32 {s(sOb[4])}, {s(sOb[4])}, {s(sT)}')
    a(f's_mul_i32 {s(sT)}, {s(sT2)}, 24576')
    a(f's_add_u32 {s(sDsrc)}, {s(sDsrc)}, {s(sT)}')
    a(f's_add_u32 {s(sDsrc)}, {s(sDsrc)}, {WS_DF}')
    for i in range(4):
        if RO:
            a(f's_add_u32 {s(sT)}, {s(S_C64)}, {i}')
            a(f's_and_b32 {s(sT)}, {s(sT)}, 3')
            a(f's_lshl_b32 {s(sT)}, {s(sT)}, 11')
            a(f's_add_u32 {s(sOb[i])}, {s(sOb[4])}, {s(sT)}')
        else: a(f's_add_u32 {s(sOb[i])}, {s(sOb[4])}, {2048*i}')
    a(f's_add_u32 {s(sOb[4])}, {s(sOb[4])}, 8192')
    a(f's_lshl3_add_u32 {s(sSTw)}, {s(sTile)}, {s(S_J8)}')
    a(f's_lshl_b32 {s(sSTw)}, {s(sSTw)}, 7')
    a(f's_add_u32 {s(sSTw)}, {s(sSTw)}, {WS_ST}')
    a(f's_add_u32 {s(sH4)}, {s(sH4)}, {WS_HF}')
    a(f's_lshl_b32 {s(sT)}, {s(sBeta)}, 11')
    a(f's_add_u32 {s(sHP)}, {s(sH4)}, {s(sT)}')
    a(f's_lshl_b32 {s(sB4)}, {s(sB4)}, 7')
    a(f's_add_u32 {s(sB4)}, {s(sB4)}, {s(sKf)}')
    a(f's_lshl4_add_u32 {s(sH4)}, {s(sB4)}, {s(sH4)}')
    a(f's_lshl_b32 {s(sBeta)}, {s(sBeta)}, 7')
    a(f's_lshl_b32 {s(sT2)}, {s(sT2)}, 5')
    a(f's_lshr_b32 {s(sT)}, {s(sTau)}, 1')
    a(f's_add_u32 {s(sT2)}, {s(sT2)}, {s(sT)}')
    a(f's_lshl_b32 {s(sT)}, {s(S_C64)}, 6')
    a(f's_add_u32 {s(sT2)}, {s(sT2)}, {s(sT)}')
    a(f's_mul_i32 {s(sT2)}, {s(sT2)}, 1280')
    a(f's_add_u32 {s(sRowP)}, {s(sBeta)}, {s(sT2)}')
    a(f's_add_u32 {s(sRow4)}, {s(sB4)}, {s(sT2)}')
    a(f's_lshl2_add_u32 {s(sT2)}, {s(S_C)}, {s(sTau)}')
    a(f's_lshl_b32 {s(sF2r)}, {s(sT2)}, 7')
    a(f's_lshl2_add_u32 {s(sF3w)}, {s(S_J)}, {s(sF2r)}')
    a(f's_add_u32 {s(sF3w)}, {s(sF3w)}, {FL_3}')
    a(f's_add_u32 {s(sF2r)}, {s(sF2r)}, {FL_2}')
    a(f's_lshl_b32 {s(sSTr)}, {s(sT2)}, 11')
    a(f's_add_u32 {s(sSTr)}, {s(sSTr)}, {WS_ST}')
    a(f's_mul_i32 {s(sHsrc)}, {s(sT2)}, 40960')
    a(f's_add_u32 {s(sHsrc)}, {s(sHsrc)}, {WS_HF}')
    a(f's_mul_i32 {s(sD2)}, {s(sT2)}, 98304')
    a(f's_mul_i32 {s(sT)}, {s(S_J)}, 3072')
    a(f's_add_u32 {s(sD2)}, {s(sD2)}, {s(sT)}')
    a(f's_add_u32 {s(sD2)}, {s(sD2)}, {WS_DF}')
    a(f's_bitcmp1_b32 {s(S_J)}, 0')
    a(f's_cselect_b32 {s(sT)}, 1024, 0')
    a(f's_cselect_b32 {s(sT2)}, 0, 2048')
    a(f's_add_u32 {s(sD01)}, {s(sD2)}, {s(sT)}')
    a(f's_add_u32 {s(sD2)}, {s(sD2)}, {s(sT2)}')
    if R1:
        a(f's_and_b32 {s(sT)}, {s(S_C)}, 1')
        a(f's_mul_i32 {s(sR1)}, {s(sT)}, 10240')
        a(f's_add_u32 {s(sHsrc)}, {s(sHsrc)}, {s(sR1)}')
        a(f's_lshl_b32 {s(sR1)}, {s(sR1)}, 1')
        a(f's_sub_u32 {s(sR1)}, 2048, {s(sR1)}')
    a = real_a
    ok = scc_cuts(late)
    NP = env('NP', 8)
    cuts = [0]
    for i in range(1, NP):
        c = len(late) * i // NP
        while not ok[c]: c += 1
        cuts.append(c)
    cuts.append(len(late))
    def hello():
        lh = a.newlabel('hello')
        nonce_to_tag(a)
        a(f's_mov_b32 {s(S_TAG2)}, {s(S_TAG)}')
        a(f's_mov_b32 {s(S_TAG2+1)}, {s(S_TAG)}')
        a(f's_cmp_lg_u32 {s(S_W)}, 0')
        a(f's_cbranch_scc1 {lh}')
        a(f's_getreg_b32 {s(S_CNT)}, hwreg(HW_REG_XCC_ID, 0, 3)')
        a(f's_or_b32 {s(S_CNT)}, {s(S_CNT)}, {s(S_TAG)}')
        a(f'v_mov_b32 {v(vG0)}, {s(S_CNT)}')
        a(f's_lshl4_add_u32 {s(S_CNT)}, {s(S_C)}, {s(S_J)}')
        a(f's_lshl_b32 {s(S_CNT)}, {s(S_CNT)}, 2')
        a(f's_add_u32 {s(S_CNT)}, {s(S_CNT)}, {FL_HELLO}')
        a(f's_mov_b64 exec, 1')
        a(f'buffer_store_dword {v(vG0)}, off, {s(SRD_WS,4)}, {s(S_CNT)} sc1')
        a(f's_mov_b64 exec, -1')
        a.label(lh)
    def reads(st):
        L = []
        for n in range(2):
            for jh in range(2):
                L.append(f'ds_read_b64_tr_b16 {v(fW[st][n]+2*jh,2)}, {v(vW)} offset:{st*512 + jh*8*WROW + n*32}')
        for m in range(5):
            L.append(f'ds_read_b128 {v(fX[st][m],4)}, {v(vX[st])} offset:{m*2048}')
        return L
    def mfmas(st, z=False):
        return [f'{MFMA} {v(acc[n][m],4)}, {v(fW[st][n],4)}, {v(fX[st][m],4)}, {"0" if z else v(acc[n][m],4)}'
                for m in range(5) for n in range(2)]
    def capture(it):
        base = (it % 3) * SLOT + XIMG
        for sI_, ns in ((sIP, 4), (sI4, 1)):
            lo, lb = a.newlabel('cap'), a.newlabel('capb')
            a(f's_cmp_eq_u32 {s(sI_)}, {it}')
            a(f's_cbranch_scc1 {lo}')
            a.label(lb)
            if ns == 4:
                L = [f'v_add_u32 {v(keep)}, {base}, {v(vXC)}'] + [f'v_xor_b32 {v(keep+2*n)}, {32*n}, {v(keep)}' for n in (1, 2, 3)]
                L += [f'ds_read_b64 {v(keep+2*n,2)}, {v(keep+2*n)}' for n in range(4)]
            else:
                L = [f'v_add_u32 {v(keep+8)}, {base}, {v(vXC)}', f'v_xor_b32 {v(keep+8)}, {s(sKf)}, {v(keep+8)}',
                     f'ds_read_b64 {v(keep+8,2)}, {v(keep+8)}']
            DEFER.append((lo, lb, L))
    st_ = fX[0][0]; cs = fX[0][3]; pk = fW[0][0]
    stamp(a)
    for it in range(10):
        a(f's_waitcnt lgkmcnt(0)')
        a(f's_barrier')
        stamp(a)
        mark(a, f'b{it}')
        M, RD = mfmas(1), reads(0)
        for i in range(10):
            if i < 5:
                for x in RD[2*i:2*i+2]: a(x)
            if it: a(M[i])
        capture(it)
        a(f's_waitcnt lgkmcnt(0)')
        M, RD = mfmas(0, it == 0), reads(1)
        for i in range(10):
            a(M[i])
            if i < 5:
                for x in RD[2*i:2*i+2]: a(x)
        if it < 9:
            d = hex(SLOT if it % 3 < 2 else (-2 * SLOT) & 0xffffffff)
            for r in (vX[0], vW, vX[1]): a(f'v_add_u32 {v(r)}, {d}, {v(r)}')
        if it == 2 and EB:
            assert not any(re.search(rf'v{Cc}\b', x) for x in late[:cuts[1]])
            a('s_waitcnt vmcnt(0)')
        if it == 0: hello()
        elif it <= NP:
            for x in late[cuts[it-1]:cuts[it]]: a(x)
    M = mfmas(1)
    M = M[8:] + M[:8]
    a(f'v_mov_b32 {v(t0)}, {L_TAG}')
    for m in (4, 0, 1, 2, 3):
        a(f'ds_read_b64 {v(st_+2*m,2)}, {v(vStat)} offset:{m*128}')
    a(f'ds_read_b32 {v(t3)}, {v(t0)}')
    a(f's_waitcnt lgkmcnt(6)')
    def norm(n, m, q):
        A = acc[n][m]
        L = []
        for h in range(2): L.append(f'v_pk_mul_f32 {v(A+2*h,2)}, {v(A+2*h,2)}, {v(st_+2*m,2)} op_sel_hi:[1,0]')
        for h in range(2): L.append(f'v_pk_fma_f32 {v(A+2*h,2)}, {v(st_+2*m,2)}, {v(cs+4*n+2*h,2)}, {v(A+2*h,2)} op_sel:[1,0,0] op_sel_hi:[1,1,1] neg_lo:[1,0,0] neg_hi:[1,0,0]')
        p = pk + 2 * (q % 4)
        L.append(f'v_cvt_pk_bf16_f32 {v(p)}, {v(A)}, {v(A+1)}')
        L.append(f'v_cvt_pk_bf16_f32 {v(p+1)}, {v(A+2)}, {v(A+3)}')
        L.append(f'ds_write_b64 {v(vDump)}, {v(p,2)} offset:{m*16*DROW + n*32}')
        return L
    dpp = [f'v_mov_b32_dpp {v(cs+4*n+r)}, {v(acc[n][4]+r)} row_newbcast:0 row_mask:0xf bank_mask:0xf' for n in range(2) for r in range(4)]
    for i, x in enumerate(M):
        a(x)
        if i >= 6: a(dpp[2*(i-6)]); a(dpp[2*(i-6)+1])
    a(f's_waitcnt lgkmcnt(0)')
    a(f'v_readfirstlane_b32 {s(S_SAME)}, {v(t3)}')
    lsk = a.newlabel('p1sk')
    for n in range(2):
        if env('XST', 0): stamp(a)
        if n == 1:
            a(f's_cmp_eq_u32 {s(S_W)}, 7')
            a(f's_cbranch_scc1 {lsk}')
        for q, m in enumerate((4, 0, 1, 2, 3)):
            for x in norm(n, m, q): a(x)
    a.label(lsk)
    if env('XST', 0): stamp(a)
    a(f's_waitcnt lgkmcnt(0)')
    a(f's_barrier')
    stamp(a)
    va2 = Alloc('v', wk0, wk1)
    Q = [va2(4, 2) for _ in range(2)]; Kc = [va2(4, 2) for _ in range(2)]; Kp = [va2(4, 2) for _ in range(2)]
    Vm = [va2(4, 2) for _ in range(2)]; V4 = [va2(4, 2) for _ in range(2)]
    Sc = [va2(4, 2) for _ in range(2)]; Sp = [va2(4, 2) for _ in range(2)]
    Om, O4 = va2(4, 2), va2(4, 2)
    for h in range(2):
        a(f'ds_read2_b64 {v(Q[h],4)}, {v(aC)} offset0:{5*h} offset1:{5*h+4}')
        a(f'ds_read2_b64 {v(Kc[h],4)}, {v(aC)} offset0:{20+5*h} offset1:{24+5*h}')
        a(f'ds_read2_b64 {v(Kp[h],4)}, {v(aP)} offset0:{20+5*h} offset1:{24+5*h}')
    for h in range(2):
        a(f'ds_read_b64_tr_b16 {v(Vm[h],2)}, {v(aVp)} offset:{320+40*h}')
        a(f'ds_read_b64_tr_b16 {v(Vm[h]+2,2)}, {v(aVc)} offset:{320+40*h}')
        a(f'ds_read_b64_tr_b16 {v(V4[h],2)}, {v(aVp4)} offset:{320+40*h+32}')
        a(f'ds_read_b64_tr_b16 {v(V4[h]+2,2)}, {v(aVc4)} offset:{320+40*h+32}')
    for h in range(2):
        a(f's_waitcnt lgkmcnt({8 + 3*(1-h)})')
        a(f'v_and_b32 {v(Q[h]+2)}, {v(Q[h]+2)}, {v(vG0)}')
        a(f'v_and_b32 {v(Q[h]+3)}, {v(Q[h]+3)}, {v(vG0)}')
        a(f'{MFMA} {v(Sc[h],4)}, {v(Kc[h],4)}, {v(Q[h],4)}, {v(Cc,4)}')
        a(f'{MFMA} {v(Sp[h],4)}, {v(Kp[h],4)}, {v(Q[h],4)}, {v(Cp,4)}')
    mx = [t0, t1]; tm = [t2, t3]
    for h in range(2):
        for r in range(4): a(f'v_max_f32 {v(Sc[h]+r)}, {v(Sc[h]+r)}, {v(Sp[h]+r)}')
        a(f'v_max3_f32 {v(mx[h])}, {v(Sc[h])}, {v(Sc[h]+1)}, {v(Sc[h]+2)}')
        a(f'v_max_f32 {v(mx[h])}, {v(mx[h])}, {v(Sc[h]+3)}')
    xg_reduce(a, mx, tm, 'v_max_f32')
    a(f'v_pk_mul_f32 {v(t0,2)}, {v(t0,2)}, {s(sCexp,2)}')
    for h in range(2):
        for p in range(2):
            a(f'v_pk_fma_f32 {v(Sc[h]+2*p,2)}, {v(Sc[h]+2*p,2)}, {s(sCexp,2)}, {v(t0,2)} op_sel:[0,0,{h}] op_sel_hi:[1,1,{h}] neg_lo:[0,0,1] neg_hi:[0,0,1]')
    for h in range(2):
        for r in range(4): a(f'v_exp_f32 {v(Sc[h]+r)}, {v(Sc[h]+r)}')
    for h in range(2): a(f'v_pk_add_f32 {v(Sp[h],2)}, {v(Sc[h],2)}, {v(Sc[h]+2,2)}')
    for h in range(2): a(f'v_add_f32 {v(mx[h])}, {v(Sp[h])}, {v(Sp[h]+1)}')
    xg_reduce(a, mx, tm, 'v_add_f32')
    for h in range(2): a(f'v_rcp_f32 {v(mx[h])}, {v(mx[h])}')
    for h in range(2):
        for p in range(2):
            a(f'v_pk_mul_f32 {v(Sc[h]+2*p,2)}, {v(Sc[h]+2*p,2)}, {v(t0,2)} op_sel:[0,{h}] op_sel_hi:[1,{h}]')
        a(f'v_cvt_pk_bf16_f32 {v(Sc[h])}, {v(Sc[h])}, {v(Sc[h]+1)}')
        a(f'v_cvt_pk_bf16_f32 {v(Sc[h]+1)}, {v(Sc[h]+2)}, {v(Sc[h]+3)}')
        a(f'v_and_b32 {v(Sp[h])}, {v(Sc[h])}, {v(Mp)}')
        a(f'v_and_b32 {v(Sp[h]+1)}, {v(Sc[h]+1)}, {v(Mp+1)}')
        a(f'v_and_b32 {v(Sp[h]+2)}, {v(Sc[h])}, {v(Mc)}')
        a(f'v_and_b32 {v(Sp[h]+3)}, {v(Sc[h]+1)}, {v(Mc+1)}')
        if h == 0: a(f's_waitcnt lgkmcnt(0)')
        a(f'{MFMA} {v(Q[h],4)}, {v(Vm[h],4)}, {v(Sp[h],4)}, 0')
        a(f'{MFMA} {v(Kc[h],4)}, {v(V4[h],4)}, {v(Sp[h],4)}, 0')
    for h in range(2):
        a(f'v_cvt_pk_bf16_f32 {v(Om+2*h)}, {v(Q[h])}, {v(Q[h]+1)}')
        a(f'v_cvt_pk_bf16_f32 {v(Om+2*h+1)}, {v(Q[h]+2)}, {v(Q[h]+3)}')
        a(f'v_cvt_pk_bf16_f32 {v(O4+2*h)}, {v(Kc[h])}, {v(Kc[h]+1)}')
        a(f'v_cvt_pk_bf16_f32 {v(O4+2*h+1)}, {v(Kc[h]+2)}, {v(Kc[h]+3)}')
    dual(a, [f'buffer_store_dwordx4 {v(Om,4)}, {v(vL16)}, {s(SRD_WS,4)}, {s(sO1)} offen@',
             f's_mov_b64 exec, {s(sMask,2)}',
             f'buffer_store_dwordx4 {v(O4,4)}, {v(vL16)}, {s(SRD_WS,4)}, {s(sO2)} offen@',
             f's_mov_b64 exec, -1'], 1)
    stamp(a)
    if env('BATT', 0): a(f's_barrier')
    publish(a, t0, sF1w)
    if not env('BATT', 0) and not MB: a(f's_barrier')
    stamp(a)
    lhelp = a.newlabel('helper')
    a(f's_cmp_ge_u32 {s(S_W)}, 4')
    a(f's_cbranch_scc1 {lhelp}')
    nh = St.n
    if PRIO2: a(f's_setprio {PRIO2}')
    class G5:
        def __init__(g, K, LB, D, sB, per, base):
            va = Alloc('v', p0, VLIM)
            g.K, g.LB, g.D, g.sB, g.per, g.base = K, LB, D, sB, per, base
            g.acc = [[va(4, 2) for n in range(5)] for t in range(2)]
            g.ring = [va(4, 2) for _ in range(LA + 1)]
            g.fB = [[va(4, 2) for t in range(2)] for _ in range(D)]
            hi[0] = max(hi[0], va.hi)
            g.lg, g.vm = Cnt(15), Cnt(63)
        def rd(g, i, part):
            k, n = divmod(i, 5)
            if k >= g.K: return
            o = g.base.off(g.LB[k], BLK)
            R = g.ring[i % (LA + 1)]
            if n < 4: a(f'ds_read_b64_tr_b16 {v(R+2*part,2)}, {v(vTr)} offset:{o + part*256 + n*32}')
            elif part == 0: a(f'ds_read_b128 {v(R,4)}, {v(vFr)} offset:{o + 8*WROW}')
            else: return
            g.lg.add(i)
        def ld(g, k, t):
            if k >= g.K: return
            a(f'buffer_load_dwordx4 {v(g.fB[k % g.D][t],4)}, {v(vB[t])}, {s(SRD_WS,4)}, {s(g.sB[k // g.per])} offen offset:{(k % g.per)*1024} sc1')
            g.vm.add((k, t))
        def run(g, top):
            for k in range(g.K):
                top(k)
                for n in range(5):
                    i = 5 * k + n
                    for p, t in enumerate((0, 1) if k < g.K - 1 else (1, 0)):
                        w = []
                        if n == 0 and (p == 0 or k == 0): w.append(f'vmcnt({g.vm.after((k, t if k == 0 else 1))})')
                        if p == 0: w.append(f'lgkmcnt({g.lg.after(i)})')
                        if w: a('s_waitcnt ' + ' '.join(w))
                        C = '0' if k == 0 and t == 1 else v(g.acc[t][n], 4)
                        a(f'{MFMA} {v(g.acc[t][n],4)}, {v(g.ring[i % (LA+1)],4)}, {v(g.fB[k % g.D][t],4)}, {C}')
                        g.rd(i + LA, p)
                        if n == 4: g.ld(k + g.D, t)
        def exchange(g, out):
            for n in range(5): a(f'ds_write_b128 {v(vXa)}, {v(g.acc[1][n],4)} offset:{n*1024}')
            a(f's_bitcmp1_b32 {s(S_W)}, 0')
            a(f's_movk_i32 {s(sT)}, 5120')
            a(f's_cmovk_i32 {s(sT)}, {(-5120) & 0xffff}')
            a(f'v_add_u32 {v(t0)}, {s(sT)}, {v(vXa)}')
            a(f's_waitcnt lgkmcnt(0)')
            a(f's_barrier')
            stamp(a)
            for n in range(5): a(f'ds_read_b128 {v(g.acc[1][n],4)}, {v(t0)} offset:{n*1024}')
            for n in range(5):
                a(f's_waitcnt lgkmcnt({4-n})')
                A = g.acc[0][n]
                for h in range(2): a(f'v_pk_add_f32 {v(A+2*h,2)}, {v(A+2*h,2)}, {v(g.acc[1][n]+2*h,2)}')
                for h in range(2): a(f'v_cvt_pk_bf16_f32 {v(keep+2*n+h)}, {v(A+2*h)}, {v(A+2*h+1)}')
                if n in (1, 3):
                    for h in range(2): a(f'v_permlane16_swap_b32 {v(keep+2*n-2+h)}, {v(keep+2*n+h)}')
                if n != 0 and n != 2: out(n >> 1)
    def unpack(dst, src):
        a(f'v_lshlrev_b32 {v(dst)}, 16, {v(src)}')
        a(f'v_and_b32 {v(dst+1)}, 0xffff0000, {v(src)}')
    g = G5(10, L_WO, D2, sOb, 2, Base(a, [vTr, vFr], L_WO[0]))
    poll0(a, t2, vPo, sF1r)
    if not MB:
        for i in range(LA): g.rd(i, 0); g.rd(i, 1)
    for i in range(10): unpack(g.acc[0][0] + 2 * i, keep + i)
    spoll(a, sF1r, 16, t2, vPo, t1)
    stamp(a)
    for k in range(D2):
        if MB and k == MB:
            a(f's_barrier')
            for i in range(LA): g.rd(i, 0); g.rd(i, 1)
        g.ld(k, 0); g.ld(k, 1)
    if MB >= D2:
        a(f's_barrier')
        for i in range(LA): g.rd(i, 0); g.rd(i, 1)
    KG = env('KG', 0)
    stamp(a)
    g.run(lambda k: a('s_barrier') if k == KG and env('BGO', 1) else None)
    stamp(a)
    G_, S_, vOne = g.ring[0], g.ring[1], g.fB[0][0]
    for r in range(4): a(f'v_mov_b32 {v(vOne+r)}, 0x3f803f80')
    def out(i):
        if i < 2: dual(a, [f'buffer_store_dwordx4 {v(keep+4*i,4)}, {v(vL16s)}, {s(SRD_WS,4)}, {s(sHP)} offen offset:{1024*i}@'], 2)
        else: dual(a, [f'buffer_store_dwordx2 {v(keep+8,2)}, {v(vH4)}, {s(SRD_WS,4)}, {s(sH4)} offen@'], 2)
        a(f'{MFMA} {v(G_,4)}, {v(keep+4*i,4)}, {v(keep+4*i,4)}, {v(G_,4) if i else "0"}')
        a(f'{MFMA} {v(S_,4)}, {v(vOne,4)}, {v(keep+4*i,4)}, {v(S_,4) if i else "0"}')
    g.exchange(out)
    a(f'v_lshlrev_b32 {v(t1)}, 1, {v(vPo)}')
    a(f's_mov_b32 exec_lo, 0x00f0000f')
    a(f's_mov_b32 exec_hi, 0xf0000f00')
    a(f'v_cndmask_b32 {v(G_)}, {v(G_)}, {v(G_+1)}, {s(sC[0],2)}')
    a(f'v_cndmask_b32 {v(G_)}, {v(G_)}, {v(G_+2)}, {s(sC[1],2)}')
    a(f'v_cndmask_b32 {v(S_+1)}, {v(G_)}, {v(G_+3)}, {s(sC[2],2)}')
    dual(a, [f'buffer_store_dwordx2 {v(S_,2)}, {v(t1)}, {s(SRD_WS,4)}, {s(sSTw)} offen@'], 2)
    a(f's_mov_b64 exec, -1')
    stamp(a)
    base2 = g.base
    va = Alloc('v', p0, VLIM)
    acc = [va(16, 2) for _ in range(3)]
    ring = [va(4, 2) for _ in range(LA + 1)]
    fH = [va(4, 2) for _ in range(D3)]
    vA = [va(), va(), va()]
    vHs = va()
    hi[0] = max(hi[0], va.hi)
    stp = [acc[2] + 8 + 2 * q for q in range(4)] if False else [fH[D3-2], fH[D3-2] + 2, fH[D3-1], fH[D3-1] + 2]
    vS = t2; vRs = t1
    a(f'v_bfe_u32 {v(t0)}, v0, 2, 2')
    a(f'v_lshrrev_b32 {v(t2)}, 5, v0')
    a(f'v_lshl_add_u32 {v(t0)}, {v(t2)}, 3, {v(t0)}')
    a(f'v_bfe_u32 {v(t3)}, v0, 4, 1')
    a(f'v_and_b32 {v(vHs)}, 3, v0')
    a(f'v_lshlrev_b32 {v(vHs)}, 3, {v(vHs)}')
    a(f'v_lshl_add_u32 {v(vHs)}, {v(t3)}, 5, {v(vHs)}')
    a(f'v_lshl_add_u32 {v(vA[2])}, {v(t0)}, 6, {v(vHs)}')
    a(f'v_lshl_add_u32 {v(vA[1])}, {v(t0)}, 7, {v(vHs)}')
    a(f'v_bfe_u32 {v(t0)}, v0, 3, 1')
    a(f'v_lshl_add_u32 {v(vA[0])}, {v(t0)}, 6, {v(vA[1])}')
    a(f'v_xor_b32 {v(vA[1])}, 64, {v(vA[0])}')
    a(f'v_lshl_add_u32 {v(t1)}, {v(t2)}, 9, {v(t1)}')
    a(f'v_lshl_add_u32 {v(t1)}, {v(t3)}, 10, {v(t1)}')
    a(f'v_mul_u32_u24 {v(t3)}, 20480, {v(t3)}')
    a(f'v_lshl_add_u32 {v(t3)}, {v(t2)}, 8, {v(t3)}')
    a(f'v_lshl_add_u32 {v(vHs)}, {v(vPo)}, 2, {v(t3)}')
    publish(a, t0, sF2w)
    stamp(a)
    lg, vmc, base = Cnt(15), Cnt(63), Base(a, vA, 0)
    spoll(a, sF2r, 16, t0, vPo)
    stamp(a)
    def ld(k):
        if k >= 40: return
        if k and k % 4 == 0: a(f's_add_u32 {s(sHsrc)}, {s(sHsrc)}, {s(sR1) if R1 and k == 20 else 2048}')
        a(f'buffer_load_dwordx4 {v(fH[k % D3],4)}, {v(vHs)}, {s(SRD_WS,4)}, {s(sHsrc)} offen offset:{(k%4)*512} sc1')
        vmc.add(k)
    for k in range(4): ld(k)
    for q in range(4):
        a(f'buffer_load_dwordx2 {v(stp[q],2)}, {v(t1)}, {s(SRD_WS,4)}, {s(sSTr)} offen offset:{q*128} sc1')
        vmc.add('st')
    for k in range(4, D3 - 2): ld(k)
    a(f's_barrier')
    mark(a, 'w1')
    stamp(a)
    def rd3(i):
        k, n = divmod(i, 3)
        R = ring[i % (LA + 1)]
        if k == 40:
            a(f'ds_read_b64 {v(R,2)}, {v(t0)} offset:{n*256}')
            lg.add(i)
        if k >= 40: return
        o = base.off(L_W1[k >> 2], BLK1)
        for jh in range(2):
            r = 16 * (k & 3) + 4 * jh
            a(f'ds_read_b64_tr_b16 {v(R+2*jh,2)}, {v(vA[n])} offset:{o + (r*128 if n < 2 else 8192 + r*64)}')
        lg.add(i, 2)
    for i in range(LA): rd3(i)
    class LA_:
        def __init__(self): self.L = []
        def __call__(self, x): self.L.append(x)
    la = LA_()
    for h in range(2):
        la(f'v_add_f32 {v(vS+h)}, {v(stp[0]+h)}, {v(stp[1]+h)}')
        la(f'v_add_f32 {v(t0+h)}, {v(stp[2]+h)}, {v(stp[3]+h)}')
    nfirst = len(la.L)
    for h in range(2): la(f'v_add_f32 {v(vS+h)}, {v(vS+h)}, {v(t0+h)}')
    for h in range(2): la(f'v_mov_b32 {v(t0+h)}, {v(vS+h)}')
    for h in range(2): la(f'v_permlane32_swap_b32 {v(vS+h)}, {v(t0+h)}')
    for h in range(2): la(f'v_add_f32 {v(vS+h)}, {v(vS+h)}, {v(t0+h)}')
    la.L += ln_stats(vS, vS + 1, vRs, raw=True)
    la(f'v_cvt_pk_bf16_f32 {v(vS+1)}, -{v(vS)}, {v(vS+1)}')
    la(f'v_cvt_pk_bf16_f32 {v(vS)}, -{v(vS)}, -{v(vS)}')
    la(f'v_cmp_gt_u32 vcc, 32, v0')
    la(f'v_cndmask_b32 {v(vS)}, 0, {v(vS)}, vcc')
    la(f'v_cndmask_b32 {v(vS+1)}, 0, {v(vS+1)}, vcc')
    la(f'v_and_b32 {v(t0)}, 31, v0')
    la(f'v_lshlrev_b32 {v(t0)}, 3, {v(t0)}')
    la(f'v_add_u32 {v(t0)}, {L_CS}, {v(t0)}')
    fill = {}
    for i, x in enumerate(la.L): fill.setdefault(13 + (0 if i < nfirst else i), []).append(x)
    Bx = fH[40 % D3]
    fill.setdefault(112, []).extend([f'v_mov_b32 {v(Bx)}, {v(vS)}', f'v_mov_b32 {v(Bx+1)}, {v(vS+1)}'])
    fill.setdefault(113, []).extend([f'v_mov_b32 {v(Bx+2)}, 0', f'v_mov_b32 {v(Bx+3)}, 0'])
    fill.setdefault(114, []).extend([f'v_bfe_u32 {v(t3)}, v0, 4, 1', f'v_mul_u32_u24 {v(t3)}, {49152 - 20480}, {v(t3)}'])
    fill.setdefault(115, []).extend([f'v_add_u32 {v(vHs)}, {v(t3)}, {v(vHs)}'])
    assert 3 * (40 - D3) < 112
    for k in range(41):
        if k in (16, 28):
            a(f's_barrier')
            if env('XST', 0): stamp(a)
        for n in range(3):
            i = 3 * k + n
            w = f'lgkmcnt({lg.after(i)})'
            if n == 0 and k < 40: w = f'vmcnt({vmc.after(k)}) ' + w
            a(f's_waitcnt {w}')
            a(f'{MFMA32} {v(acc[n],16)}, {v(ring[i % (LA+1)],4)}, {v(fH[k % D3],4)}, {"0" if k == 0 else v(acc[n],16)}')
            rd3(i + LA)
            for x in fill.get(i, []): a(x)
            if i == 13: ld(D3 - 2); ld(D3 - 1); ld(D3); ld(D3 + 1); ld(D3 + 2); ld(D3 + 3)
            if n == 2 and k >= 4: ld(k + D3)
    stamp(a)
    if X3E: a(f's_barrier')
    for n in range(3):
        for c in range(2):
            A_ = acc[n] + 8 * c
            o_ = ring[(2 * n + c) % (LA + 1)]
            for r in range(8): a(f'v_max_f32 {v(A_+r)}, 0, {v(A_+r)}')
            for h in range(4): a(f'v_pk_mul_f32 {v(A_+2*h,2)}, {v(A_+2*h,2)}, {v(t0,2)} op_sel:[0,1] op_sel_hi:[1,1]')
            for h in range(4): a(f'v_pk_mul_f32 {v(A_+2*h,2)}, {v(A_+2*h,2)}, {v(A_+2*h,2)}')
            for h in range(4): a(f'v_cvt_pk_bf16_f32 {v(o_+h)}, {v(A_+2*h)}, {v(A_+2*h+1)}')
            dual(a, [f'buffer_store_dwordx4 {v(o_,4)}, {v(vHs)}, {s(SRD_WS,4)}, {s(sD01 if n < 2 else sD2)} offen offset:{(n&1)*1024 + c*512}@'], 4)
    stamp(a)
    if not X3E: a(f's_barrier')
    g = G5(24, L_W2, D4, sDb, 3, base2)
    b2 = g.fB[D4-1][0] - 4
    a(f'v_lshrrev_b32 {v(t1)}, 4, v0')
    a(f'v_lshlrev_b32 {v(t1)}, 3, {v(t1)}')
    a(f'v_add_u32 {v(t2)}, {L_B2}, {v(t1)}')
    for n in range(5): a(f'ds_read_b64 {v(b2+2*n,2)}, {v(t2)} offset:{32*n}')
    for i in range(8):
        if R2:
            a(f's_lshl1_add_u32 {s(sT)}, {s(S_C64)}, {i}')
            a(f's_and_b32 {s(sT)}, {s(sT)}, 7')
            a(f's_mul_i32 {s(sT)}, {s(sT)}, 3072')
            a(f's_add_u32 {s(sDb[i])}, {s(sDsrc)}, {s(sT)}')
        else: a(f's_add_u32 {s(sDb[i])}, {s(sDsrc)}, {3072*i}')
    for p in range(2):
        for h in range(2): a(f'v_permlane16_swap_b32 {v(keep+4*p+h)}, {v(keep+4*p+2+h)}')
    a(f'v_and_b32 {v(t3)}, 28, {v(vPo)}')
    publish(a, t0, sF3w)
    stamp(a)
    poll0(a, g.fB[0][1], t3, sF3r)
    for i in range(LA): g.rd(i, 0); g.rd(i, 1)
    a(f's_and_b32 {s(sT2)}, {s(S_W)}, 1')
    a(f's_mul_i32 {s(sT)}, {s(sT2)}, 49152')
    a(f'v_add_u32 {v(vB[0])}, {s(sT)}, {v(vL16)}')
    a(f's_sub_u32 {s(sT)}, 49152, {s(sT)}')
    a(f'v_add_u32 {v(vB[1])}, {s(sT)}, {v(vL16)}')
    a(f's_waitcnt lgkmcnt({len(g.lg.q)})')
    for i in range(10):
        unpack(g.acc[0][0] + 2 * i, keep + i)
        unpack(g.acc[1][0] + 2 * i, b2 + i)
    for i in range(10):
        A = g.acc[0][0] + 2 * i
        a(f'v_pk_add_f32 {v(A,2)}, {v(A,2)}, {v(g.acc[1][0] + 2*i,2)}')
    spoll(a, sF3r, 8, g.fB[0][1], t3, g.fB[0][1] + 1)
    stamp(a)
    for k in range(D4): g.ld(k, 0); g.ld(k, 1)
    a(f'v_mul_u32_u24 {v(t2)}, 640, {v(vPo)}')
    a(f'v_add_u32 {v(vH4)}, {v(t2)}, {v(t1)}')
    a(f'v_lshrrev_b32 {v(vL16s)}, 8, {v(vL16s)}')
    a(f'v_lshl_add_u32 {v(vL16s)}, {v(vL16s)}, 4, {v(t2)}')
    a(f'v_add_u32 {v(vXa)}, {hex((L_X4 - L_X2) & 0xffffffff)}, {v(vXa)}')
    stamp(a)
    def top(k):
        if k in YB:
            a(f's_barrier')
            if env('XST', 0): stamp(a)
    g.run(top)
    stamp(a)
    def out(i):
        if i < 2: a(f'buffer_store_dwordx4 {v(keep+4*i,4)}, {v(vL16s)}, {s(SRD_B,4)}, {s(sRowP)} offen offset:{64*i}' + OB)
        else: a(f'buffer_store_dwordx2 {v(keep+8,2)}, {v(vH4)}, {s(SRD_B,4)}, {s(sRow4)} offen' + OB)
    g.exchange(out)
    mark(a, 'end')
    if DG:
        ld_ = a.newlabel('diag'); le_ = a.newlabel('diage')
        a('s_memrealtime s[100:101]')
        a('s_waitcnt lgkmcnt(0)')
        a('s_sub_u32 s98, s98, s96')
        a(f's_mul_i32 s98, s98, {env("DK", 1)}')
        a('s_add_u32 s98, s98, s100')
        a(f's_mov_b32 {s(S_CNT)}, 20000')
        a.label(ld_)
        a('s_memrealtime s[100:101]')
        a(f's_sub_u32 {s(S_CNT)}, {s(S_CNT)}, 1')
        a(f's_cbranch_scc1 {le_}')
        a('s_waitcnt lgkmcnt(0)')
        a('s_sub_u32 s99, s100, s98')
        a('s_cmp_lt_i32 s99, 0')
        a(f's_cbranch_scc1 {ld_}')
        a.label(le_)
    stamp(a)
    stamps_flush(a)
    a('s_endpgm')
    nf = St.n
    a.label(lhelp)
    St.n = nh
    hi[0] = max(hi[0], helper(a))
    St.n = nf
    for ls, lj, L in DEFER:
        a.label(ls)
        for x in L: a(x)
        a(f's_branch {lj}')
    return hi[0]

EB = os.environ.get('EB', 'x')
EBV = 122
def burst(a):
    sT, sT2, sO = 52, 53, 54
    D = {'q': (S_PWQKV, 640*3840), 'x': (S_PX, 2048*1280), 'o': (S_PWO, 640*1280), 'a': (S_PW1, 640*3072), 'b': (S_PW2, 1536*1280)}
    a(f'v_lshlrev_b32 v1, 4, v0')
    a(f's_lshl3_add_u32 {s(sT)}, s2, {s(S_W)}')
    a(f's_lshl3_add_u32 {s(sT2)}, {s(S_C64)}, {s(S_J8)}')
    a(f's_lshl3_add_u32 {s(sT2)}, {s(sT2)}, {s(S_W)}')
    for q, m in enumerate(EB): a(f's_mul_i32 {s(sO+q)}, {s(sT2 if m == "x" else sT)}, {D[m][1] // 2048}')
    a(f's_mov_b32 {s(sT)}, {640*3840 - 64}')
    a(f's_waitcnt lgkmcnt(0)')
    if env('ES', 1):
        a(f's_load_dword {s(S_CNT)}, {s(S_PWQKV,2)}, 0')
        a(f's_load_dword {s(S_CNT)}, {s(S_PWQKV,2)}, {s(sT)}')
    nonce_load(a)
    for rnd in range(2):
        for q, m in enumerate(EB):
            ptr, nb = D[m]
            ln = min(64, (nb // 2048 - 1024 * rnd) // 16)
            if ln <= 0: continue
            if rnd == 0: srd(a, 60 + 4 * q, ptr, nb)
            if ln < 64:
                a(f's_mov_b32 exec_lo, {hex((1 << min(ln, 32)) - 1)}')
                a(f's_mov_b32 exec_hi, {hex((1 << max(ln - 32, 0)) - 1)}')
            a(f'buffer_load_dwordx4 {v(EBV,4)}, v1, {s(60 + 4*q,4)}, {s(sO+q)} offen offset:{1024 * rnd}')
    a('s_mov_b64 exec, -1')

def build():
    K = NAME + '_kernel'
    head = '; generated by gen/gen5.py: fused persistent kernel, 8 compute + 4 loader waves per workgroup\n'
    head += f'; @launch grid=(256,1,1) block=(768,1,1) lds={LDS_SIZE}\n'
    head += '.amdgcn_target "amdgcn-amd-amdhsa--gfx950"\n.text\n'
    a = Asm()
    a(f'.globl {K}\n.p2align 8\n.type {K},@function')
    a.label(K)
    lend, lld = a.newlabel('end'), a.newlabel('loader')
    a(f's_cmp_ge_u32 s2, 256')
    a(f's_cbranch_scc1 {lend}')
    a(f's_load_dwordx16 s[16:31], s[0:1], 0')
    a(f's_load_dwordx4 s[32:35], s[0:1], 64')
    a(f's_load_dwordx2 s[36:37], s[0:1], 80')
    if DG: a(f's_memrealtime s[96:97]')
    if STAMPS:
        a(f's_memrealtime s[96:97]')
        a(f's_memtime s[100:101]')
    a(f'v_lshrrev_b32 v1, 6, v0')
    a(f'v_and_b32 v0, 63, v0')
    a(f'v_readfirstlane_b32 {s(S_W)}, v1')
    if env('LF', 0):
        a(f's_sub_u32 {s(S_W)}, {s(S_W)}, 4')
        a(f's_cselect_b32 {s(S_XCD)}, 12, 0')
        a(f's_add_u32 {s(S_W)}, {s(S_W)}, {s(S_XCD)}')
    a(f's_and_b32 {s(S_XCD)}, s2, 7')
    a(f's_lshr_b32 {s(S_R)}, s2, 3')
    a(f's_lshr_b32 {s(S_C)}, {s(S_R)}, 4')
    a(f's_lshl1_add_u32 {s(S_C)}, {s(S_XCD)}, {s(S_C)}')
    a(f's_and_b32 {s(S_J)}, {s(S_R)}, 15')
    a(f's_lshr_b32 {s(S_C64)}, {s(S_J)}, 3')
    a(f's_lshl1_add_u32 {s(S_C64)}, {s(S_C)}, {s(S_C64)}')
    a(f's_and_b32 {s(S_J8)}, {s(S_J)}, 7')
    if STAMPS:
        a(f's_waitcnt lgkmcnt(0)')
        a(f'v_writelane_b32 v{VST}, s96, 0')
        a(f'v_writelane_b32 v{VST}, s100, 1')
        St.n = 2
        stamp(a)
    a(f's_cmp_lt_u32 {s(S_W)}, 8')
    lcomp = a.newlabel('compute')
    if EB:
        a(f's_cbranch_scc0 {lld}')
        burst(a)
        a(f's_branch {lcomp}')
        a.label(lld)
    else: a(f's_cbranch_scc1 {lcomp}')
    n0 = St.n
    nl = loader(a)
    print('loader stamps', St.n, file=sys.stderr)
    a.label(lend)
    a('s_endpgm')
    a.label(lcomp)
    St.n = n0
    nc = compute(a)
    print('compute stamps', St.n, 'vgprs', nl, nc, file=sys.stderr)
    print('nops inserted', a.pad(), file=sys.stderr)
    desc = f'''.section .rodata,"a"
.p2align 6
.amdhsa_kernel {K}
  .amdhsa_next_free_vgpr 168
  .amdhsa_next_free_sgpr 102
  .amdhsa_accum_offset 168
  .amdhsa_group_segment_fixed_size 0
  .amdhsa_kernarg_size 88
  .amdhsa_user_sgpr_count 2
  .amdhsa_user_sgpr_kernarg_segment_ptr 1
  .amdhsa_system_sgpr_workgroup_id_x 1
.end_amdhsa_kernel
'''
    return head + a.text() + desc

if __name__ == '__main__':
    out = sys.argv[1] if len(sys.argv) > 1 else f'cdna_kernels/{NAME}.s'
    open(out, 'w').write(build())
```
